```python
import torch

def _softmax(x, axis=-1):
    return torch.softmax(x, dim=axis)
def _gelu(x):
    return torch.nn.functional.gelu(x, approximate="tanh")
def _silu(x):
    return torch.nn.functional.silu(x)
def _sigmoid(x):
    return torch.sigmoid(x)
def _layernorm(x, axis=-1, eps=1e-5):
    m = x.mean(dim=axis, keepdim=True)
    v = x.var(dim=axis, keepdim=True, unbiased=False)
    return (x - m) / torch.sqrt(v + eps)
def _scatter_add(tgt, idx, src, axis=0):
    return tgt.clone().index_add_(axis, idx, src)
def _segment_sum(src, seg, n):
    out = torch.zeros((n,) + src.shape[1:], dtype=src.dtype)
    return out.index_add_(0, seg, src)
def _pad(x, pw):
    flat = tuple(v for pair in reversed(pw) for v in pair)
    return torch.nn.functional.pad(x, flat)

kernel_name = 'parallel_sum__compressed_kv_cla__swiglu_ffn__prompt'

def setup_inputs():

    _w = (lambda a: (lambda t: t.to(torch.bfloat16) if t.is_floating_point() else t)(torch.as_tensor(a)))
    def _A_setup():
        B, H, Sq, Sk, D, M = 1, 32, 2048, 2048, 128, 512
        Dc = 4 * D
        return {
            "x": _w((lambda *s: torch.randn(*s, dtype=torch.bfloat16) * 0.05)(B, Sq, M)),
            "c_kv": _w((lambda *s: torch.randn(*s, dtype=torch.bfloat16) * 1.6)(B, Sk, Dc)),
            "w_q": _w((lambda *s: torch.randn(*s, dtype=torch.bfloat16) * 0.8)(M, H, D) * (M ** -0.5)),
            "w_uk": _w((lambda *s: torch.randn(*s, dtype=torch.bfloat16) * 0.8)(Dc, H, D) * (Dc ** -0.5)),
            "w_uv": _w((lambda *s: torch.randn(*s, dtype=torch.bfloat16) * 1.6)(Dc, H, D) * (Dc ** -0.5)),
            "w_o": _w((lambda *s: torch.randn(*s, dtype=torch.bfloat16) * 1.6)(H, D, M) * ((H * D) ** -0.5)),
        }
    _A_in = _A_setup()

    def _B_setup():
        B, S, D, F = 1, 2048, 512, 1376
        return {
            "x": _w((lambda *s: torch.randn(*s, dtype=torch.bfloat16) * 0.05)(B, S, D)),
            "w_gate": _w((lambda *s: torch.randn(*s, dtype=torch.bfloat16) * 0.05)(D, F)),
            "w_up": _w((lambda *s: torch.randn(*s, dtype=torch.bfloat16) * 0.05)(D, F)),
            "w_down": _w((lambda *s: torch.randn(*s, dtype=torch.bfloat16) * 0.05)(F, D)),
        }
    _B_in = _B_setup()

    return {
        "A_x": _A_in["x"],
        "A_c_kv": _A_in["c_kv"],
        "A_w_q": _A_in["w_q"],
        "A_w_uk": _A_in["w_uk"],
        "A_w_uv": _A_in["w_uv"],
        "A_w_o": _A_in["w_o"],
        "B_x": _B_in["x"],
        "B_w_gate": _B_in["w_gate"],
        "B_w_up": _B_in["w_up"],
        "B_w_down": _B_in["w_down"],
    }

def reference(A_x, A_c_kv, A_w_q, A_w_uk, A_w_uv, A_w_o, B_x, B_w_gate, B_w_up, B_w_down):
    def _A_ref(x, c_kv, w_q, w_uk, w_uv, w_o):
        B, Sq, M = x.shape[0], x.shape[1], x.shape[2]
        Sk = c_kv.shape[1]
        H, D = w_q.shape[1], w_q.shape[2]
        q = torch.einsum("bqm,mhd->bhqd", x, w_q)
        k = torch.einsum("bkc,chd->bhkd", c_kv, w_uk)
        v = torch.einsum("bkc,chd->bhkd", c_kv, w_uv)
        scores = torch.einsum("bhqd,bhkd->bhqk", q, k) * (D ** -0.5)
        off = Sk - Sq
        qi = torch.arange(Sq)[:, None]
        kj = torch.arange(Sk)[None, :]
        cmask = kj <= (qi + off)
        scores = torch.where(cmask[None, None], scores, -1e9)
        p = _softmax(scores, axis=-1)
        ctx = torch.einsum("bhqk,bhkd->bhqd", p, v)
        return torch.einsum("bhqd,hdm->bqm", ctx, w_o)

    def _B_ref(x, w_gate, w_up, w_down):
        g = _silu(x @ w_gate)
        u = x @ w_up
        return (g * u) @ w_down

    x = A_x
    xn = _layernorm(x, axis=-1)
    return x + _A_ref(xn, A_c_kv, A_w_q, A_w_uk, A_w_uv, A_w_o) + _B_ref(xn, B_w_gate, B_w_up, B_w_down)
```

```python
import re

class Ins:
    __slots__ = ("text", "op", "kind", "wr", "rd", "passes", "comment")
    def __init__(self, text):
        self.text = text
        t = text.split(";")[0].strip()
        self.op = t.split()[0] if t else ""
        self.kind, self.wr, self.rd, self.passes = classify(t)

_reg_re = re.compile(r"\b([vas])\[(\d+):(\d+)\]|\b([vas])(\d+)\b|\b(vcc|exec|m0|scc)\b")
def regs_of(s):
    out = []
    for m in _reg_re.finditer(s):
        if m.group(1):
            out += [(m.group(1), i) for i in range(int(m.group(2)), int(m.group(3)) + 1)]
        elif m.group(4):
            out.append((m.group(4), int(m.group(5))))
        else:
            n = m.group(6)
            out.append((n, 0))
    return out

def split_ops(t):
    parts = t.split(None, 1)
    if len(parts) == 1: return []
    ops, depth, cur = [], 0, ""
    for ch in parts[1]:
        if ch == "[": depth += 1
        if ch == "]": depth -= 1
        if ch == "," and depth == 0:
            ops.append(cur.strip()); cur = ""
        else: cur += ch
    ops.append(cur.strip())
    return ops

TRANS = ("v_exp_f32", "v_log_f32", "v_rcp_f32", "v_rsq_f32", "v_sqrt_f32", "v_sin_f32", "v_cos_f32")
def classify(t):
    if not t or t.endswith(":") or t.startswith("."):
        return "none", [], [], 0
    op = t.split()[0]
    ops = split_ops(t)
    R = lambda i: regs_of(ops[i]) if i < len(ops) else []
    allr = lambda a: [r for i in range(a, len(ops)) for r in regs_of(ops[i])]
    if op.startswith("v_mfma"):
        p = 8 if "32x32x16" in op else 4
        return "mfma", R(0), allr(1), p
    if op.startswith("v_cmp"):
        wr = R(0)
        if op.startswith("v_cmpx"): wr = wr + [("exec", 0)]
        return "valu", wr, allr(1), 0
    if op.startswith("v_readfirstlane") or op.startswith("v_readlane"):
        return "valu", R(0), allr(1), 0
    if op.startswith("v_permlane") and "swap" in op:
        return "valu", R(0) + R(1), R(0) + R(1), 0
    if op.startswith("v_add_co") or op.startswith("v_addc_co") or op.startswith("v_sub_co") or op.startswith("v_subb_co"):
        return "valu", R(0) + R(1), allr(2), 0
    if op.startswith("v_"):
        rd = allr(1)
        if op.startswith("v_fmac") or op.startswith("v_writelane") or op.startswith("v_dot2c") or "dpp" in t or "_dpp" in op:
            rd = rd + R(0)
        if op.startswith("v_cndmask") and len(ops) == 3: rd = rd + [("vcc", 0)]
        k = "trans" if any(op.startswith(x) for x in TRANS) else "valu"
        return k, R(0), rd, 0
    if op.startswith("ds_read") or op.startswith("ds_bpermute") or op.startswith("ds_swizzle") or op.startswith("ds_permute"):
        return "ds_read", R(0), allr(1), 0
    if op.startswith("ds_write") or op.startswith("ds_add") or op.startswith("ds_or"):
        return "ds_write", [], allr(0), 0
    if op.startswith("buffer_load") or op.startswith("global_load"):
        if " lds" in t or "_lds_" in op:
            return "dma", [], allr(0) + [("m0", 0)], 0
        return "vload", R(0), allr(1), 0
    if op.startswith("buffer_store") or op.startswith("global_store"):
        return "vstore", [], allr(0), 0
    if op.startswith("buffer_atomic") or op.startswith("global_atomic"):
        if " sc0" in t: return "vload", R(0), allr(0), 0
        return "vstore", [], allr(0), 0
    if op.startswith("buffer_wbl2") or op.startswith("buffer_inv"):
        return "vstore", [], [], 0
    if op.startswith("s_load") or op.startswith("s_memtime") or op.startswith("s_memrealtime"):
        return "sload", R(0), allr(1), 0
    if op == "s_waitcnt": return "wait", [], [], 0
    if op == "s_nop": return "nop", [], [], int(ops[0], 0) + 1
    if op == "s_barrier": return "barrier", [], [], 0
    if op.startswith("s_cbranch") or op == "s_branch" or op == "s_endpgm" or op == "s_sleep" or op == "s_setprio":
        return "branch", [], [], 0
    if op.startswith("s_cmp") or op.startswith("s_bitcmp"):
        return "salu", [("scc", 0)], allr(0), 0
    if op.startswith("s_and_saveexec") or op.startswith("s_or_saveexec"):
        return "salu", R(0) + [("exec", 0)], allr(1), 0
    if op.startswith("s_"):
        rd = allr(1)
        if op.startswith("s_cselect") or op.startswith("s_addc") or op.startswith("s_subb"): rd = rd + [("scc", 0)]
        if op.startswith("s_addk") or op.startswith("s_mulk"): rd = rd + R(0)
        return "salu", R(0), rd, 0
    raise ValueError("unknown instr: " + t)

class Asm:
    def __init__(self):
        self.lines = []
        self.blocks = {}
        self.cur = None
        self.uid = 0
    def raw(self, s):
        self.lines.append(s)
    def e(self, s):
        for l in s.split("\n"):
            l = l.strip()
            if not l: continue
            self.lines.append("    " + l if not l.endswith(":") else l)
            if self.cur is not None and not l.endswith(":") and not l.startswith(";") and not l.startswith("."):
                self.blocks[self.cur].append(Ins(l))
    def block(self, name):
        self.cur = name
        self.blocks.setdefault(name, [])
    def label(self, name):
        self.lines.append(name + ":")
    def newlabel(self, p="L"):
        self.uid += 1
        return f"{p}_{self.uid}"
    def text(self):
        return "\n".join(self.lines) + "\n"

def parse_wait(t):
    vm = re.search(r"vmcnt\((\d+)\)", t); lg = re.search(r"lgkmcnt\((\d+)\)", t)
    return (int(vm.group(1)) if vm else None, int(lg.group(1)) if lg else None)

def check_trace(trace, name="", verbose=False):
    probs = []
    last_valu_wr = {}
    last_trans_wr = {}
    last_mfma_wr = {}
    last_mfma_rdC = {}
    last_salu_wr = {}
    last_valu_sgpr_wr = {}
    last_store_data = {}
    vmq = []
    lgq = []
    smem_out = False
    t = 0
    def P(i, ins, msg): probs.append(f"[{name}] #{i} '{ins.text.strip()}': {msg}")
    for i, ins in enumerate(trace):
        k = ins.kind
        if k == "none": continue
        if k == "wait":
            vm, lg = parse_wait(ins.text)
            if vm is not None:
                while len(vmq) > vm: vmq.pop(0)
            if lg is not None:
                if lg == 0: lgq.clear(); smem_out = False
                else:
                    if smem_out: P(i, ins, "counted lgkmcnt with SMEM outstanding")
                    while len(lgq) > lg: lgq.pop(0)
            t += 1
            continue
        rd, wr = ins.rd, ins.wr
        for r in list(rd) + list(wr):
            for q in vmq:
                if r in q: P(i, ins, f"uses {r} with VMEM load outstanding"); break
            for q in lgq:
                if r in q: P(i, ins, f"uses {r} with LDS/SMEM op outstanding"); break
        isvalu = k in ("valu", "trans")
        if k == "mfma":
            for r in rd:
                if r[0] in "va" and r in last_valu_wr and t - last_valu_wr[r] - 1 < 2:
                    P(i, ins, f"VALU->MFMA {r} dist {t-last_valu_wr[r]-1} <2")
            ops = split_ops(ins.text.split(";")[0].strip())
            D = tuple(regs_of(ops[0])); A = regs_of(ops[1]); B = regs_of(ops[2]); C = tuple(regs_of(ops[3]))
            for r in A + B:
                if r in last_mfma_wr:
                    tt, p, _ = last_mfma_wr[r]
                    need = {4: 8, 8: 12}[p]
                    if t - tt - 1 < need: P(i, ins, f"MFMA D->SrcA/B {r} dist {t-tt-1} < {need}")
            for r in C:
                if r in last_mfma_wr:
                    tt, p, d = last_mfma_wr[r]
                    if d == C and p == ins.passes: continue
                    need = {4: 6, 8: 10}[p]
                    if t - tt - 1 < need: P(i, ins, f"MFMA D->SrcC overlap {r} dist {t-tt-1} < {need}")
            if D != C:
                for r in D:
                    if r in last_mfma_wr:
                        tt, p, d = last_mfma_wr[r]
                        need = {4: 6, 8: 10}[p]
                        if t - tt - 1 < need: P(i, ins, f"MFMA D->D WAW {r} dist {t-tt-1} < {need} (conservative)")
        if isvalu or k in ("vload", "vstore", "ds_read", "ds_write", "dma"):
            for r in (list(rd) + list(wr)):
                if r in last_mfma_wr:
                    tt, p, _ = last_mfma_wr[r]
                    need = {4: 8, 8: 12}[p]
                    if t - tt - 1 < need: P(i, ins, f"MFMA D->{k} {r} dist {t-tt-1} < {need}")
        if isvalu:
            for r in wr:
                if r in last_mfma_rdC:
                    tt, p = last_mfma_rdC[r]
                    need = {4: 3, 8: 7}[p]
                    if t - tt - 1 < need: P(i, ins, f"MFMA SrcC read->VALU write {r} dist {t-tt-1} < {need}")
                if r in last_store_data and t - last_store_data[r] - 1 < 2:
                    P(i, ins, f"store data WAR {r}")
            for r in rd:
                if r in last_trans_wr and t - last_trans_wr[r] - 1 < 1 and k != "trans":
                    P(i, ins, f"trans->VALU {r}")
                if r in last_valu_sgpr_wr and t - last_valu_sgpr_wr[r] - 1 < 2:
                    P(i, ins, f"VALU sgpr write->VALU read {r}")
            if ("dpp" in ins.text or "row_" in ins.text or "quad_perm" in ins.text or "permlane" in ins.op):
                for r in rd:
                    if r in last_valu_wr and t - last_valu_wr[r] - 1 < 2: P(i, ins, f"VALU->DPP/permlane {r}")
            if ins.op.startswith("v_readlane") or ins.op.startswith("v_readfirstlane"):
                for r in rd:
                    if r[0] == "v" and r in last_valu_wr and t - last_valu_wr[r] - 1 < 1: P(i, ins, f"VALU->readlane {r}")
        if k in ("vload", "vstore", "dma"):
            for r in rd:
                if r in last_valu_sgpr_wr and t - last_valu_sgpr_wr[r] - 1 < 5: P(i, ins, f"VALU sgpr->VMEM {r}")
            if k == "dma" and ("m0", 0) in last_salu_wr and t - last_salu_wr[("m0", 0)] - 1 < 1:
                P(i, ins, "m0 write -> LDS DMA needs 1 state")
        if k in ("ds_read", "vload"):
            for r in wr:
                if r in last_mfma_rdC:
                    tt, p = last_mfma_rdC[r]
        if isvalu:
            for r in wr:
                if r[0] in "va": last_valu_wr[r] = t
                else: last_valu_sgpr_wr[r] = t
                if k == "trans": last_trans_wr[r] = t
                else: last_trans_wr.pop(r, None)
                last_mfma_wr.pop(r, None)
        elif k == "mfma":
            ops = split_ops(ins.text.split(";")[0].strip())
            D = tuple(regs_of(ops[0])); C = regs_of(ops[3])
            for r in D:
                last_mfma_wr[r] = (t, ins.passes, D); last_valu_wr.pop(r, None); last_trans_wr.pop(r, None)
            for r in C: last_mfma_rdC[r] = (t, ins.passes)
        elif k == "salu":
            for r in wr:
                last_salu_wr[r] = t; last_valu_sgpr_wr.pop(r, None)
        if k in ("vload", "vstore", "dma"):
            vmq.append(set(wr))
            if k == "vstore" and ("x4" in ins.op or "x3" in ins.op):
                ops = split_ops(ins.text.split(";")[0].strip())
                di = 0 if ins.op.startswith("buffer") else 1
                for r in regs_of(ops[di]): last_store_data[r] = t
            for r in wr:
                last_mfma_wr.pop(r, None); last_valu_wr.pop(r, None)
        if k in ("ds_read", "ds_write"):
            lgq.append(set(wr))
            for r in wr:
                last_mfma_wr.pop(r, None); last_valu_wr.pop(r, None)
        if k == "sload":
            lgq.append(set(wr)); smem_out = True
        t += ins.passes if k == "nop" else 1
    return probs
```

```python
from asmlib import *
KA = dict(x=0, ckv=8, wq=16, wuk=24, wuv=32, wo=40, bx=48, wg=56, wu=64, wd=72, out=80, dbg=88, ws=96)
XN = 0x0000000
QF = 0x1000000
KF = 0x2000000
VF = 0x3000000
CF = 0x4000000
HF = 0x5000000
WF = 0x6000000
WS_USED = 0x6800000

def srd(a, base_lo, base_hi, size, s):
    a.e(f"s_mov_b32 s{s}, {base_lo}")
    a.e(f"s_and_b32 s{s+1}, {base_hi}, 0xffff")
    a.e(f"s_mov_b32 s{s+2}, {size}")
    a.e(f"s_mov_b32 s{s+3}, 0x20000")

def kernel_header(a, name):
    a.raw(f".globl {name}\n.p2align 8\n.type {name},@function\n{name}:")

def kernel_desc(name, vgpr, sgpr, accum):
    return f""".amdhsa_kernel {name}
  .amdhsa_next_free_vgpr {vgpr}
  .amdhsa_next_free_sgpr {sgpr}
  .amdhsa_accum_offset {accum}
  .amdhsa_group_segment_fixed_size 0
  .amdhsa_kernarg_size 104
  .amdhsa_user_sgpr_count 2
  .amdhsa_user_sgpr_kernarg_segment_ptr 1
  .amdhsa_system_sgpr_workgroup_id_x 1
.end_amdhsa_kernel
"""

def spread(fill, ops, start, end):
    n = len(ops)
    if n == 0: return
    span = end - start + 1
    for k, op in enumerate(ops):
        idx = start + (k * span) // n
        fill.setdefault(idx, []).append(op)

DIAG = False
VERB = True
STAMP_WS = 0x8000000
def stamp(a, n, cyc=False):
    import common
    if not common.DIAG: return
    if cyc: a.e(f"s_memtime s[{78+2*n}:{79+2*n}]")
    else: a.e(f"s_memrealtime s[{78+2*n}:{79+2*n}]")
    a.e("s_waitcnt lgkmcnt(0)")
def stamp_flush(a, kidx, nst):
    import common
    if not common.DIAG: return
    a.e(f"s_load_dwordx2 s[76:77], s[0:1], {KA['ws']}")
    a.e("s_waitcnt lgkmcnt(0)")
    a.e(f"s_add_u32 s76, s76, {STAMP_WS + kidx*0x20000}")
    a.e("s_addc_u32 s77, s77, 0")
    a.e("s_lshl_b32 s75, s2, 9")
    a.e("v_lshrrev_b32 v250, 6, v0")
    a.e("v_lshlrev_b32 v250, 7, v250")
    a.e("v_add_u32 v250, s75, v250")
    for n in range(nst):
        a.e(f"v_mov_b32 v252, s{78+2*n}")
        a.e(f"v_mov_b32 v253, s{79+2*n}")
        a.e(f"global_store_dwordx2 v250, v[252:253], s[76:77] offset:{8*n}")
        a.e("s_nop 1")
```

```python
from common import *
def ln_rows(a, rows, vx, vt, sbase):
    n = rows
    F = lambda r, i: vt + 20 * r + i
    T = lambda r, i: vt + 20 * r + 8 + i
    for r in range(n):
        for i in range(4):
            a.e(f"v_lshlrev_b32 v{F(r,2*i)}, 16, v{vx+4*r+i}")
            a.e(f"v_and_b32 v{F(r,2*i+1)}, 0xffff0000, v{vx+4*r+i}")
    def reduce(src_is, dst):
        for sh in (8, 4, 2, 1):
            for r in range(n):
                a.e(f"s_nop 1")
                a.e(f"v_add_f32_dpp v{T(r,dst)}, v{T(r,dst)}, v{T(r,dst)} row_ror:{sh} row_mask:0xf bank_mask:0xf")
        a.e("s_nop 1")
        for r in range(n):
            for k in range(4):
                a.e(f"v_readlane_b32 s{sbase+4*r+k}, v{T(r,dst)}, {16*k}")
        a.e("s_nop 1")
        for r in range(n):
            a.e(f"v_mov_b32 v{T(r,dst)}, s{sbase+4*r}")
            a.e(f"v_add_f32 v{T(r,dst)}, s{sbase+4*r+1}, v{T(r,dst)}")
            a.e(f"v_add_f32 v{T(r,dst)}, s{sbase+4*r+2}, v{T(r,dst)}")
            a.e(f"v_add_f32 v{T(r,dst)}, s{sbase+4*r+3}, v{T(r,dst)}")
    for r in range(n):
        a.e(f"v_add_f32 v{T(r,0)}, v{F(r,0)}, v{F(r,1)}")
        for i in range(2, 8): a.e(f"v_add_f32 v{T(r,0)}, v{T(r,0)}, v{F(r,i)}")
    reduce(None, 0)
    for r in range(n):
        a.e(f"v_mul_f32 v{T(r,0)}, 0x3b000000, v{T(r,0)}")
    for r in range(n):
        a.e(f"v_sub_f32 v{T(r,2)}, v{F(r,0)}, v{T(r,0)}")
        a.e(f"v_mul_f32 v{T(r,1)}, v{T(r,2)}, v{T(r,2)}")
        for i in range(1, 8):
            a.e(f"v_sub_f32 v{T(r,2)}, v{F(r,i)}, v{T(r,0)}")
            a.e(f"v_fmac_f32 v{T(r,1)}, v{T(r,2)}, v{T(r,2)}")
    reduce(None, 1)
    for r in range(n):
        a.e(f"v_mul_f32 v{T(r,1)}, 0x3b000000, v{T(r,1)}")
        a.e(f"v_cvt_pk_bf16_f32 v{T(r,2)}, v{T(r,0)}, v{T(r,1)}")
        a.e(f"v_and_b32 v{T(r,1)}, 0xffff0000, v{T(r,2)}")
        a.e(f"v_lshlrev_b32 v{T(r,0)}, 16, v{T(r,2)}")
        a.e(f"v_add_f32 v{T(r,1)}, 0x3727c5ac, v{T(r,1)}")
        a.e(f"v_cvt_pk_bf16_f32 v{T(r,1)}, v{T(r,1)}, v{T(r,1)}")
        a.e(f"v_and_b32 v{T(r,1)}, 0xffff0000, v{T(r,1)}")
        a.e(f"v_sqrt_f32 v{T(r,1)}, v{T(r,1)}")
        a.e("s_nop 0")
        a.e(f"v_cvt_pk_bf16_f32 v{T(r,1)}, v{T(r,1)}, v{T(r,1)}")
        a.e(f"v_and_b32 v{T(r,1)}, 0xffff0000, v{T(r,1)}")
        a.e(f"v_rcp_f32 v{T(r,1)}, v{T(r,1)}")
        a.e("s_nop 0")
        for i in range(4):
            a.e(f"v_sub_f32 v{F(r,2*i)}, v{F(r,2*i)}, v{T(r,0)}")
            a.e(f"v_sub_f32 v{F(r,2*i+1)}, v{F(r,2*i+1)}, v{T(r,0)}")
            a.e(f"v_cvt_pk_bf16_f32 v{T(r,2)}, v{F(r,2*i)}, v{F(r,2*i+1)}")
            a.e(f"v_lshlrev_b32 v{F(r,2*i)}, 16, v{T(r,2)}")
            a.e(f"v_and_b32 v{F(r,2*i+1)}, 0xffff0000, v{T(r,2)}")
            a.e(f"v_mul_f32 v{F(r,2*i)}, v{F(r,2*i)}, v{T(r,1)}")
            a.e(f"v_mul_f32 v{F(r,2*i+1)}, v{F(r,2*i+1)}, v{T(r,1)}")
            a.e(f"v_cvt_pk_bf16_f32 v{vx+4*r+i}, v{F(r,2*i)}, v{F(r,2*i+1)}")

def gen_k0(a, name="ln_kernel"):
    kernel_header(a, name)
    a.block("k0")
    a.e("s_cmp_ge_u32 s2, 256")
    a.e("s_cbranch_scc1 K0_END")
    a.e(f"s_load_dwordx2 s[4:5], s[0:1], {KA['x']}")
    a.e(f"s_load_dwordx2 s[6:7], s[0:1], {KA['ws']}")
    a.e("v_lshrrev_b32 v1, 6, v0")
    a.e("v_and_b32 v2, 63, v0")
    a.e("v_lshlrev_b32 v1, 11, v1")
    a.e("v_lshl_add_u32 v1, v2, 4, v1")
    a.e("s_lshl_b32 s3, s2, 13")
    a.e("s_waitcnt lgkmcnt(0)")
    srd(a, "s4", "s5", 0x200000, 8)
    srd(a, "s6", "s7", 0x200000, 12)
    a.e("buffer_load_dwordx4 v[4:7], v1, s[8:11], s3 offen")
    a.e("buffer_load_dwordx4 v[8:11], v1, s[8:11], s3 offen offset:1024")
    a.e("s_waitcnt vmcnt(0)")
    ln_rows(a, 2, 4, 16, 16)
    a.e("buffer_store_dwordx4 v[4:7], v1, s[12:15], s3 offen")
    a.e("buffer_store_dwordx4 v[8:11], v1, s[12:15], s3 offen offset:1024")
    a.label("K0_END")
    a.e("s_endpgm")
    return kernel_desc(name, 64, 32, 64)
```

```python
from common import *
import common
ST_FLAG = ""
XB = 16
ACC = [48, 64]
TMP = 80

def k1_period(a, typ, stflag):
    fill = {}
    def acc(tt, c): return ACC[tt] + 4 * c
    mf = []
    for tt in range(2):
        for ks in range(16):
            f = tt * 16 + ks
            xb = XB + 4 * (f % 4)
            for c in range(4):
                w = (c * 16 + ks) * 4
                d = acc(tt, c)
                cin = "0" if ks == 0 else f"v[{d}:{d+3}]"
                if typ == "V":
                    mf.append(f"v_mfma_f32_16x16x32_bf16 v[{d}:{d+3}], v[{xb}:{xb+3}], a[{w}:{w+3}], {cin}")
                else:
                    mf.append(f"v_mfma_f32_16x16x32_bf16 v[{d}:{d+3}], a[{w}:{w+3}], v[{xb}:{xb+3}], {cin}")
    pre = {}
    for f in range(3, 35):
        ff = f % 32
        tt, ks = ff // 16, ff % 16
        xb = XB + 4 * (f % 4)
        base = "v3" if ks % 2 == 0 else "v4"
        off = (ks >> 1) * 4096 + tt * 2048
        idx = 4 * (f - 3)
        rd = f"ds_read_b128 v[{xb}:{xb+3}], {base} offset:{off}"
        if f == 32:
            fill.setdefault(idx - 3, []).append("v_add_u32 v3, 0x8000, v3")
            fill.setdefault(idx - 2, []).append("v_and_b32 v3, 0x1ffff, v3")
            fill.setdefault(idx - 1, []).append("v_xor_b32 v4, 64, v3")
        fill.setdefault(idx, []).append(rd)
    for f in range(32):
        pre.setdefault(4 * f, []).append("s_waitcnt lgkmcnt(2)")
    def cvt(dst, s0, s1): return f"v_cvt_pk_bf16_f32 v{dst}, v{s0}, v{s1}"
    def st(q, soff, off): return f"buffer_store_dwordx4 v[{q}:{q+3}], v8, s[16:19], {soff} offen offset:{off}{stflag}"
    def epi(tt, soff):
        ops = []
        if typ in "KQ":
            for pr in range(2):
                q = TMP + 8 * tt + 4 * pr
                if typ == "Q":
                    for c in (2 * pr, 2 * pr + 1):
                        for j in range(4): ops.append(f"v_mul_f32 v{acc(tt,c)+j}, s30, v{acc(tt,c)+j}")
                for h, c in enumerate((2 * pr, 2 * pr + 1)):
                    ops.append(cvt(q + 2 * h, acc(tt, c), acc(tt, c) + 1))
                    ops.append(cvt(q + 2 * h + 1, acc(tt, c) + 2, acc(tt, c) + 3))
                off = pr * 2048 + tt * (128 if typ == "K" else 256)
                ops.append(st(q, soff, off))
        elif typ == "V":
            for c in range(4):
                q = TMP + 4 * c
                ops.append(cvt(q + 2 * tt, acc(tt, c), acc(tt, c) + 1))
                ops.append(cvt(q + 2 * tt + 1, acc(tt, c) + 2, acc(tt, c) + 3))
                if tt == 1:
                    ops.append(st(q, soff, (c & 1) * 256 + (c >> 1) * 2048))
        else:
            T = TMP + 16
            groups = [[(c, j) for j in range(4)] for c in range(2)]
            for grp in groups:
                for n, (c, j) in enumerate(grp): ops.append(f"v_mul_f32 v{T+n}, s31, v{acc(tt,c)+j}")
                for n, (c, j) in enumerate(grp): ops.append(f"v_exp_f32 v{T+n}, v{T+n}")
                for n, (c, j) in enumerate(grp): ops.append(f"v_add_f32 v{T+n}, 1.0, v{T+n}")
                for n, (c, j) in enumerate(grp): ops.append(f"v_rcp_f32 v{T+n}, v{T+n}")
                for n, (c, j) in enumerate(grp): ops.append(f"v_mul_f32 v{acc(tt,c)+j}, v{acc(tt,c)+j}, v{acc(tt,c+2)+j}")
                for n, (c, j) in enumerate(grp): ops.append(f"v_mul_f32 v{acc(tt,c)+j}, v{acc(tt,c)+j}, v{T+n}")
                c = grp[0][0]
                q = TMP + 4 * tt
                ops.append(cvt(q + 2 * c, acc(tt, c), acc(tt, c) + 1))
                ops.append(cvt(q + 2 * c + 1, acc(tt, c) + 2, acc(tt, c) + 3))
            ops.append(st(TMP + 4 * tt, soff, 0))
        return ops
    e1 = epi(1, "s27" if typ != "G" else "s29")
    e0 = epi(0, "s25")
    spread(fill, e1, 3, 58)
    dma = []
    for slab in range(8):
        m0 = "s_mov_b32 m0, s26" if slab == 0 else "s_add_u32 m0, m0, 3968"
        dma.append((m0, f"buffer_load_dwordx4 v2, s[4:7], s24 offen offset:{slab*128} lds"))
    spread(fill, e0, 67, 104)
    for n, (m0, ld) in enumerate(dma):
        g = 106 + 2 * n
        fill.setdefault(g, []).append(m0)
        fill.setdefault(g + 1, []).append(ld)
    book = ["s_add_u32 s24, s24, 0x8000", "s_add_u32 s26, s26, 0x8000", "s_and_b32 s26, s26, 0x1ffff"]
    if typ == "G":
        book += ["s_add_u32 s29, s25, 44032", "s_add_u32 s25, s25, 88064"]
    else:
        book += ["s_mov_b32 s27, s25", "s_add_u32 s25, s25, 8192"]
    fill.setdefault(124, []).extend(book[:3]); fill.setdefault(125, []).extend(book[3:])
    nst1 = sum(1 for o in e1 if o.startswith("buffer_store")); nst0 = sum(1 for o in e0 if o.startswith("buffer_store"))
    N = nst1 + nst0 + 8 + nst1
    pre.setdefault(64, []).insert(0, f"s_waitcnt vmcnt({N})")
    pre[64].insert(1, "s_barrier")
    for i, m in enumerate(mf):
        for p in pre.get(i, []): a.e(p)
        a.e(m)
        for p in fill.get(i, []): a.e(p)
    return e1

def gen_k1(a, name="proj_kernel", stflag=""):
    kernel_header(a, name)
    a.block("k1_pro")
    a.e("s_cmp_ge_u32 s2, 256")
    a.e("s_cbranch_scc1 K1_END")
    stamp(a, 0)
    a.e(f"s_load_dwordx4 s[36:39], s[0:1], {KA['x']}")
    a.e(f"s_load_dwordx4 s[40:43], s[0:1], {KA['wq']}")
    a.e(f"s_load_dwordx2 s[44:45], s[0:1], {KA['wuv']}")
    a.e(f"s_load_dwordx4 s[48:51], s[0:1], {KA['wg']}")
    a.e(f"s_load_dwordx2 s[52:53], s[0:1], {KA['ws']}")
    a.e("v_lshrrev_b32 v1, 6, v0")
    a.e("s_nop 0")
    a.e("v_readfirstlane_b32 s20, v1")
    a.e("v_and_b32 v1, 63, v0              ; lane")
    a.e("s_and_b32 s54, s2, 7              ; x")
    a.e("s_lshr_b32 s55, s2, 3             ; j")
    a.e("s_and_b32 s56, s55, 3             ; m")
    a.e("s_lshr_b32 s55, s55, 2            ; pi")
    a.e("s_waitcnt lgkmcnt(0)")
    a.e("s_cmp_ge_u32 s54, 4")
    a.e("s_cbranch_scc1 K1_XN")
    a.e("s_lshl_b32 s57, s54, 3")
    a.e("s_add_u32 s57, s57, s55           ; p 0..31")
    a.e("s_mov_b32 s60, s38")
    a.e("s_mov_b32 s61, s39")
    a.e("s_cmp_lt_u32 s57, 16")
    a.e("s_cselect_b32 s21, 0, 1           ; type K=0 / V=1")
    a.e("s_cselect_b32 s62, s42, s44")
    a.e("s_cselect_b32 s63, s43, s45       ; W")
    a.e(f"s_mov_b32 s59, {VF}")
    a.e(f"s_cselect_b32 s58, {KF}, s59")
    a.e("s_and_b32 s57, s57, 15            ; panel")
    a.e("s_branch K1_QKV")
    a.label("K1_XN")
    a.e("s_cmp_eq_u32 s55, 7")
    a.e("s_cbranch_scc1 K1_END")
    a.e("s_sub_u32 s57, s54, 4")
    a.e("s_mul_i32 s57, s57, 7")
    a.e("s_add_u32 s57, s57, s55           ; q")
    a.e("s_cmp_ge_u32 s57, 27")
    a.e("s_cbranch_scc1 K1_END")
    a.e(f"s_add_u32 s60, s52, {XN}")
    a.e("s_addc_u32 s61, s53, 0")
    a.e("s_cmp_ge_u32 s57, 16")
    a.e("s_cbranch_scc1 K1_GU")
    a.e("s_mov_b32 s21, 2")
    a.e("s_mov_b32 s62, s40")
    a.e("s_mov_b32 s63, s41")
    a.e(f"s_mov_b32 s58, {QF}")
    a.label("K1_QKV")
    a.e("s_mov_b32 s22, 8192")
    a.e("s_lshl_b32 s59, s57, 9")
    a.e("s_lshl_b32 s64, s20, 7")
    a.e("s_add_u32 s59, s59, s64")
    a.e("s_add_u32 s8, s62, s59")
    a.e("s_addc_u32 s9, s63, 0")
    a.e("s_and_b32 s9, s9, 0xffff")
    a.e("s_sub_u32 s10, 0x400000, s59")
    a.e("s_mov_b32 s11, 0x20000")
    a.e("s_add_u32 s12, s8, 64")
    a.e("s_addc_u32 s13, s9, 0")
    a.e("s_sub_u32 s14, s10, 64")
    a.e("s_mov_b32 s15, 0x20000")
    a.e("s_lshl_b32 s25, s57, 1")
    a.e("s_lshr_b32 s64, s20, 1")
    a.e("s_add_u32 s25, s25, s64           ; head")
    a.e("s_lshl_b32 s25, s25, 19")
    a.e("s_and_b32 s64, s20, 1")
    a.e("s_lshl_b32 s64, s64, 12")
    a.e("s_add_u32 s25, s25, s64")
    a.e("s_lshl_b32 s64, s56, 17           ; 16m*8192")
    a.e("s_add_u32 s25, s25, s64")
    a.e("s_mov_b32 s65, 0x1000000")
    a.e("s_branch K1_COMMON")
    a.label("K1_GU")
    a.e("s_mov_b32 s21, 3")
    a.e("s_sub_u32 s57, s57, 16")
    a.e("s_lshl_b32 s57, s57, 2")
    a.e("s_add_u32 s57, s57, s20           ; fs")
    a.e("s_min_u32 s57, s57, 42")
    a.e("s_mov_b32 s22, 2752")
    a.e("s_lshl_b32 s59, s57, 6")
    a.e("s_add_u32 s8, s48, s59")
    a.e("s_addc_u32 s9, s49, 0")
    a.e("s_and_b32 s9, s9, 0xffff")
    a.e(f"s_sub_u32 s10, {512*2752}, s59")
    a.e("s_mov_b32 s11, 0x20000")
    a.e("s_add_u32 s12, s50, s59")
    a.e("s_addc_u32 s13, s51, 0")
    a.e("s_and_b32 s13, s13, 0xffff")
    a.e("s_mov_b32 s14, s10")
    a.e("s_mov_b32 s15, 0x20000")
    a.e(f"s_mov_b32 s58, {HF}")
    a.e(f"s_mul_i32 s25, s56, {32*43*1024}")
    a.e("s_lshl_b32 s64, s57, 10")
    a.e("s_add_u32 s25, s25, s64")
    a.e(f"s_mov_b32 s65, {128*43*1024}")
    a.label("K1_COMMON")
    a.e("s_lshl_b32 s64, s56, 19")
    a.e("s_add_u32 s4, s60, s64")
    a.e("s_addc_u32 s5, s61, 0")
    a.e("s_and_b32 s5, s5, 0xffff")
    a.e("s_mov_b32 s6, 0x80000")
    a.e("s_mov_b32 s7, 0x20000")
    a.e("s_add_u32 s16, s52, s58")
    a.e("s_addc_u32 s17, s53, 0")
    a.e("s_and_b32 s17, s17, 0xffff")
    a.e("s_mov_b32 s18, s65")
    a.e("s_mov_b32 s19, 0x20000")
    a.e("s_mov_b32 s27, 0x80000000")
    a.e("s_mov_b32 s29, 0x80000000")
    a.e("s_mov_b32 s30, 0x3e0293ee         ; 128^-0.5*log2(e)")
    a.e("s_mov_b32 s31, 0xbfb8aa3b         ; -log2(e)")
    a.e("v_lshrrev_b32 v9, 3, v1")
    a.e("s_lshl_b32 s64, s20, 3")
    a.e("v_add_u32 v9, s64, v9")
    a.e("v_lshlrev_b32 v2, 10, v9")
    a.e("s_and_b32 s64, s20, 1")
    a.e("s_lshl_b32 s64, s64, 2")
    a.e("v_lshrrev_b32 v9, 4, v1")
    a.e("v_add_u32 v9, s64, v9")
    a.e("v_and_b32 v10, 7, v1")
    a.e("v_xor_b32 v9, v9, v10")
    a.e("v_and_b32 v9, 7, v9")
    a.e("v_lshl_add_u32 v2, v9, 4, v2")
    a.e("v_and_b32 v9, 15, v1              ; t")
    a.e("v_lshrrev_b32 v10, 4, v1          ; g")
    a.e("v_lshrrev_b32 v11, 1, v9")
    a.e("v_xor_b32 v11, v11, v10")
    a.e("v_lshlrev_b32 v11, 4, v11")
    a.e("v_lshl_add_u32 v3, v9, 7, v11")
    a.e("v_xor_b32 v4, 64, v3")
    a.e("v_lshrrev_b32 v11, 2, v9          ; i>>2")
    a.e("v_lshl_add_u32 v11, v10, 3, v11")
    a.e("v_lshlrev_b32 v11, 6, v11")
    a.e("v_and_b32 v12, 3, v9")
    a.e("v_lshl_add_u32 v11, v12, 3, v11")
    a.e("v_and_b32 v12, 1, v10")
    a.e("v_lshl_add_u32 v5, v12, 5, v11")
    a.e("s_lshl_b32 s64, s20, 15")
    a.e("s_add_u32 s64, s64, 0x8000")
    a.e("v_add_u32 v5, s64, v5")
    a.e("v_xor_b32 v6, 32, v5")
    a.e("v_lshrrev_b32 v11, 2, v1")
    a.e("v_mul_lo_u32 v7, v11, s22")
    a.e("v_lshrrev_b32 v11, 1, v1")
    a.e("v_lshrrev_b32 v12, 5, v1")
    a.e("v_xor_b32 v11, v11, v12")
    a.e("v_and_b32 v11, 1, v11")
    a.e("v_lshl_add_u32 v7, v11, 5, v7")
    a.e("v_and_b32 v11, 1, v1")
    a.e("v_lshl_add_u32 v7, v11, 4, v7")
    a.e("s_lshl_b32 s66, s22, 4            ; 16 rows")
    a.e("s_mov_b32 s67, 0")
    def wdma(ks):
        slot = ks % 8
        for half in range(2):
            for hf in range(2):
                srdn = "s[8:11]" if half == 0 else "s[12:15]"
                a.e(f"s_add_u32 m0, s64, {slot*4096 + half*2048 + hf*1024}")
                if hf == 0: a.e("s_mov_b32 s68, s67")
                else: a.e("s_add_u32 s68, s67, s66")
                a.e(f"buffer_load_dwordx4 v7, {srdn}, s68 offen lds")
        a.e("s_add_u32 s67, s67, s66")
        a.e("s_add_u32 s67, s67, s66")
    for ks in range(8): wdma(ks)
    a.e("s_lshl_b32 s26, s20, 10           ; m0 base = w*1024")
    a.e("s_mov_b32 s24, 0")
    def tdma():
        for slab in range(8):
            a.e("s_mov_b32 m0, s26" if slab == 0 else "s_add_u32 m0, m0, 3968")
            a.e("s_nop 0")
            a.e(f"buffer_load_dwordx4 v2, s[4:7], s24 offen offset:{slab*128} lds")
        a.e("s_add_u32 s24, s24, 0x8000")
        a.e("s_add_u32 s26, s26, 0x8000")
        a.e("s_and_b32 s26, s26, 0x1ffff")
    tdma()
    stamp(a, 8)
    a.e("v_lshrrev_b32 v11, 1, v10         ; g>>1")
    a.e("v_lshlrev_b32 v8, 10, v11")
    a.e("v_and_b32 v11, 1, v10")
    a.e("v_lshl_add_u32 v8, v11, 9, v8     ; + (g&1)*512")
    a.e("s_cmp_eq_u32 s21, 0")
    a.e("s_cbranch_scc0 K1_A1")
    a.e("v_lshrrev_b32 v11, 3, v9          ; K: r=16*(t>>3)+(t&7)")
    a.e("v_lshlrev_b32 v11, 4, v11")
    a.e("v_and_b32 v12, 7, v9")
    a.e("v_add_u32 v11, v11, v12")
    a.e("v_lshl_add_u32 v8, v11, 4, v8")
    a.e("s_branch K1_A3")
    a.label("K1_A1")
    a.e("s_cmp_eq_u32 s21, 3")
    a.e("s_cbranch_scc1 K1_A2")
    a.e("v_lshl_add_u32 v8, v9, 4, v8      ; Q,V: + t*16")
    a.e("s_branch K1_A3")
    a.label("K1_A2")
    a.e("v_lshlrev_b32 v8, 4, v1")
    a.label("K1_A3")
    out = 40
    for ks in range(16):
        if ks < 8: n = out - 4 * (ks + 1) + 4 * ks
        pass
    queue = [("W", k) for k in range(8) for _ in range(4)] + [("T", 0)] * 8
    for ks in range(16):
        last = max(i for i, q in enumerate(queue) if q == ("W", ks))
        n = len(queue) - 1 - last
        a.e(f"s_waitcnt vmcnt({n})")
        if ks == 0: stamp(a, 5)
        queue = queue[last + 1:]
        slot = ks % 8
        for c in range(4):
            for e4 in range(2):
                w = (c * 16 + ks) * 4 + 2 * e4
                a.e(f"ds_read_b64_tr_b16 a[{w}:{w+1}], v{5 + (c & 1)} offset:{slot*4096 + (c >> 1)*2048 + e4*256}")
        if ks + 8 < 16:
            a.e("s_waitcnt lgkmcnt(0)")
            wdma(ks + 8)
            queue += [("W", ks + 8)] * 4
    a.e("s_waitcnt lgkmcnt(0)")
    stamp(a, 1)
    a.e("s_barrier")
    tdma(); tdma()
    a.e("s_waitcnt vmcnt(8)")
    a.e("s_barrier")
    stamp(a, 2)
    stamp(a, 6, True)
    for f in range(3):
        xb = XB + 4 * f
        a.e(f"ds_read_b128 v[{xb}:{xb+3}], {'v3' if f % 2 == 0 else 'v4'} offset:{(f >> 1)*4096}")
    a.e("s_mov_b32 s23, 16")
    for typ, code in (("K", 0), ("V", 1), ("Q", 2)):
        a.e(f"s_cmp_eq_u32 s21, {code}")
        a.e(f"s_cbranch_scc1 K1_LOOP_{typ}")
    a.e("s_branch K1_LOOP_G")
    for typ in "KVQG":
        a.block(f"k1_loop_{typ}")
        a.raw(".p2align 6")
        a.label(f"K1_LOOP_{typ}")
        e1 = k1_period(a, typ, stflag)
        a.e("s_sub_u32 s23, s23, 1")
        a.e("s_cmp_lg_u32 s23, 0")
        a.e(f"s_cbranch_scc1 K1_LOOP_{typ}")
        a.block(f"k1_tail_{typ}")
        a.e("s_nop 7")
        stamp(a, 3)
        stamp(a, 7, True)
        for o in e1: a.e(o)
        if common.DIAG:
            a.e("s_waitcnt vmcnt(0)")
            stamp(a, 4)
            stamp_flush(a, 1, 9)
        a.e("s_endpgm")
    a.cur = None
    a.label("K1_END")
    a.e("s_endpgm")
    return kernel_desc(name, 512, 96, 256)

def check_k1(a):
    probs = []
    for typ in "KVQG":
        tr = a.blocks["k1_pro"] + a.blocks[f"k1_loop_{typ}"] * 3 + a.blocks[f"k1_tail_{typ}"]
        probs += check_trace(tr, "k1" + typ)
    return probs
```

```python
from common import *
import common
QL, QS, KX, KY, VX, VY = 0, 32, 64, 96, 128, 160
SA, SB, PA, PB, TRI, NEG = 32, 48, 64, 72, 80, 96
LL, LS = 112, 114
OL, OS = 128, 192
VK, VV, VLANE, VT = 2, 3, 4, 5
CSTFLAG = ""

def mf(d, a_, b_, c): return f"v_mfma_f32_32x32x16_bf16 v[{d}:{d+15}], {a_}, {b_}, {c}"
def A4(b): return f"a[{b}:{b+3}]"
def V4(b): return f"v[{b}:{b+3}]"

def qk(S, Q, K):
    return [mf(S, A4(K + 4*s), A4(Q + 4*s), "0" if s == 0 else f"v[{S}:{S+15}]") for s in range(8)]
def pv(P, V, O):
    return [mf(O + 16*T, A4(V + 4*(2*T + ks)), V4(P + 4*ks), f"v[{O+16*T}:{O+16*T+15}]") for ks in range(2) for T in range(4)]

def sm_ops(S, P, L):
    ops = []
    for r in range(16):
        ops.append(dict(t=f"v_exp_f32 v{S+r}, v{S+r}", c=8, k="e", r=r, deps=[]))
    for r in range(16):
        ops.append(dict(t=f"v_add_f32 v{L+(r&1)}, v{L+(r&1)}, v{S+r}", c=4, k="a", r=r, deps=[r] + ([16 + r - 2] if r >= 2 else [])))
    for k in range(8):
        ops.append(dict(t=f"v_cvt_pk_bf16_f32 v{P+k}, v{S+2*k}, v{S+2*k+1}", c=4, k="c0" if k < 4 else "c1", r=k, deps=[2*k, 2*k+1]))
    return ops

def try_place(ops, start, end, c0_min, c1_min, used, b):
    used = dict(used); out = {}; pos = {}
    seq = 0
    for g in range(start, end + 1):
        room = b - used.get(g % 32, 0)
        last_e = None
        while True:
            best = None
            for n, o in enumerate(ops):
                if n in pos: continue
                if o["k"] == "c0" and g < c0_min: continue
                if o["k"] == "c1" and g < c1_min: continue
                if any(d not in pos for d in o["deps"]): continue
                if last_e is not None and last_e in o["deps"]: continue
                if o["c"] > room: continue
                pr = {"c0": 0, "c1": 0, "a": 1, "e": 2}[o["k"]]
                key = (pr, o["r"])
                if best is None or key < best[0]: best = (key, n)
            if best is None: break
            n = best[1]; o = ops[n]
            pos[n] = g; out.setdefault(g, []).append(o["t"]); room -= o["c"]; used[g % 32] = used.get(g % 32, 0) + o["c"]
            last_e = n if o["k"] == "e" else None
    return (out, used) if len(pos) == len(ops) else None

HEAD = lambda o: (o["k"] == "e" and o["r"] < 10) or (o["k"] == "a" and o["r"] < 8) or o["k"] == "c0"
def subset(ops, keep):
    idx = [n for n, o in enumerate(ops) if keep(o)]
    m = {n: i for i, n in enumerate(idx)}
    return [dict(o, deps=[m[d] for d in o["deps"] if d in m]) for n, o in enumerate(ops) if n in m]
def place3(A, Bh, Bt, used):
    res = []
    u = dict(used)
    for b in range(8, 41):
        rt = try_place(subset(Bt, lambda o: not HEAD(o)), 0, 7, 0, 0, u, b)
        if rt is not None: break
    u = rt[1]; bt = b
    for b in range(8, 41):
        ra = try_place(A, 10, 31, 19, 23, u, b)
        if ra is None: continue
        rb = try_place(subset(Bh, HEAD), 18, 31, 27, 32, ra[1], b)
        if rb is None: continue
        return ra[0], rb[0], rt[0], (bt, b)
    raise AssertionError("no placement")

def kread(buf): return [f"ds_read_b128 {A4(buf+4*s)}, v{VK} offset:{s*1024}" for s in range(8)]
def vread(buf): return [f"ds_read_b128 {A4(buf+4*(2*T+ks))}, v{VV} offset:{(2*T+ks)*1024}" for ks in range(2) for T in range(4)]
KADV = [f"v_add_u32 v{VK}, 0x2000, v{VK}", f"v_and_b32 v{VK}, 0xffff, v{VK}"]
VADV = [f"v_add_u32 v{VT}, 0x2000, v{VV}", f"v_bfi_b32 v{VV}, s31, v{VT}, v{VV}"]
def dma(kind):
    if kind == "K":
        return ["s_mov_b32 m0, s27", "s_add_u32 s27, s27, 0x2000",
                f"buffer_load_dwordx4 v{VLANE}, s[4:7], s25 offen lds", f"buffer_load_dwordx4 v{VLANE}, s[4:7], s25 offen offset:1024 lds",
                "s_and_b32 s27, s27, 0xffff", "s_add_u32 s25, s25, 0x2000"]
    return ["s_mov_b32 m0, s28", "s_add_u32 s28, s28, 0x2000",
            f"buffer_load_dwordx4 v{VLANE}, s[8:11], s26 offen lds", f"buffer_load_dwordx4 v{VLANE}, s[8:11], s26 offen offset:1024 lds",
            "s_and_b32 s28, s28, 0xffff", "s_or_b32 s28, s28, 0x10000", "s_add_u32 s26, s26, 0x2000"]

def period(a, kind, masked):
    hasQK = kind != "FIN"; hasPV = kind != "PRO"
    if kind in ("PRO", "P1"):
        M = qk(SA, QL, KX) + qk(SB, QS, KX) + pv(PA, VX, OL) + pv(PB, VX, OS); lA, lBh, lBt = LL, LS, LS
    elif kind == "TR":
        M = qk(SA, QL, KX) + qk(SB, QL, KY) + pv(PA, VX, OL) + pv(PB, VX, OS); lA, lBh, lBt = LL, LL, LS
    else:
        M = qk(SA, QL, KX) + qk(SB, QL, KY) + pv(PA, VX, OL) + pv(PB, VY, OL); lA, lBh, lBt = LL, LL, LL
    fill, pre = {}, {}
    def add(d, g, ops):
        d.setdefault(g, []).extend(ops if isinstance(ops, list) else [ops])
    nread = {}
    def reads(lst, gaps, adv):
        for n, op in enumerate(lst):
            g = gaps[n * len(gaps) // len(lst)]
            add(fill, g, op); nread[g] = nread.get(g, 0) + 1
        add(fill, gaps[-1], adv[0]); add(fill, gaps[-1] + 1 if gaps[-1] < 31 else 31, adv[1])
    if kind == "PRO":
        vm = 22; add(pre, 0, f"s_waitcnt vmcnt({vm})"); add(pre, 0, "s_barrier")
        reads(kread(KX), list(range(16, 24)), KADV)
    elif kind == "P1":
        add(pre, 0, "s_waitcnt vmcnt(20) lgkmcnt(0)"); add(pre, 0, "s_barrier")
        reads(vread(VX), list(range(0, 12)), VADV); add(pre, 16, "s_waitcnt lgkmcnt(0)")
        reads(kread(KX), list(range(16, 28)), KADV)
    elif kind == "TR":
        add(pre, 0, "s_waitcnt vmcnt(18) lgkmcnt(0)"); add(pre, 0, "s_barrier")
        reads(kread(KY), [0, 1, 2, 3], KADV)
        reads(vread(VX), list(range(5, 13)), VADV)
        add(pre, 8, "s_waitcnt lgkmcnt(3)"); add(pre, 16, "s_waitcnt lgkmcnt(0)")
        reads(kread(KX), list(range(16, 23)), KADV)
        reads(kread(KY), list(range(24, 31)), KADV)
    elif kind == "P2":
        add(pre, 0, "s_waitcnt vmcnt(14) lgkmcnt(8)"); add(pre, 0, "s_barrier")
        reads(vread(VX), list(range(0, 7)), VADV); add(pre, 8, "s_waitcnt lgkmcnt(8)")
        reads(vread(VY), list(range(8, 15)), VADV); add(pre, 16, "s_waitcnt lgkmcnt(8)")
        reads(kread(KX), list(range(16, 23)), KADV); add(pre, 24, "s_waitcnt lgkmcnt(8)")
        reads(kread(KY), list(range(24, 31)), KADV)
    else:
        add(pre, 0, "s_waitcnt vmcnt(14) lgkmcnt(0)"); add(pre, 0, "s_barrier")
        add(pre, 0, vread(VX) + VADV); add(pre, 0, vread(VY))
        add(pre, 16, "s_waitcnt lgkmcnt(8)"); add(pre, 24, "s_waitcnt lgkmcnt(0)")
    if kind in ("PRO", "P1", "TR"):
        d = dma("K") + dma("V"); spread(fill, d, 6, 10)
    elif kind == "P2":
        spread(fill, dma("K") + dma("V"), 6, 10); spread(fill, dma("K") + dma("V"), 11, 17)
    used = {}
    for g in range(32): used[g] = 4 * nread.get(g, 0)
    A = sm_ops(SA, PA, lA); Bh = sm_ops(SB, PB, lBh); Bt = sm_ops(SB, PB, lBt)
    pa, pb, pt, bud = place3(A, Bh, Bt, used)
    if common.VERB: print("period", kind, masked, "budget", bud)
    if kind != "PRO":
        for g, ops in sorted(pt.items()):
            if kind != "FIN": add(fill, g, ops)
            else: add(pre, 0, ops)
    if hasQK:
        for g, ops in pa.items(): add(fill, g, ops)
        for g, ops in pb.items(): add(fill, g, ops)
    if masked:
        add(fill, 28, "s_add_u32 s29, s29, s33"); add(fill, 28, "s_add_u32 s30, s30, s33")
    state = {"prev": None}
    def E(p):
        ins = Ins(p)
        pv_ = state["prev"]
        if pv_ is not None and pv_.kind == "trans" and ins.kind == "valu" and set(pv_.wr) & set(ins.rd): a.e("s_nop 0")
        a.e(p); state["prev"] = ins
    for i, m in enumerate(M):
        for p in pre.get(i, []): E(p)
        present = (hasQK if i < 16 else hasPV)
        if present:
            if masked and i in (0, 8):
                S = SA if i == 0 else SB; rel = "s29" if i == 0 else "s30"
                base = m.rsplit(",", 1)[0]
                l1, l2, lj = a.newlabel("K2T"), a.newlabel("K2N"), a.newlabel("K2J")
                a.e(f"s_cmp_lt_i32 {rel}, s20")
                a.raw(f"    s_cbranch_scc0 {l1}\n    {m}\n    s_branch {lj}\n{l1}:")
                a.raw(f"    s_cmp_eq_i32 {rel}, s20\n    s_cbranch_scc1 {l2}\n    {base}, v[{NEG}:{NEG+15}]\n    s_branch {lj}\n{l2}:")
                a.e(f"{base}, v[{TRI}:{TRI+15}]")
                a.label(lj)
                state["prev"] = None
            else:
                E(m)
        for p in fill.get(i, []): E(p)

def gen_k2(a, name="attn_kernel"):
    kernel_header(a, name)
    a.block("k2_pre")
    a.e("s_cmp_ge_u32 s2, 256")
    a.e("s_cbranch_scc1 K2_END")
    stamp(a, 0)
    a.e(f"s_load_dwordx2 s[36:37], s[0:1], {KA['ws']}")
    a.e("v_lshrrev_b32 v1, 6, v0")
    a.e("s_nop 0")
    a.e("v_readfirstlane_b32 s20, v1       ; wave")
    a.e("v_and_b32 v1, 63, v0              ; lane")
    a.e("s_and_b32 s38, s2, 7")
    a.e("s_lshr_b32 s39, s2, 3")
    a.e("s_and_b32 s21, s39, 7             ; i")
    a.e("s_lshr_b32 s39, s39, 3")
    a.e("s_lshl_b32 s38, s38, 2")
    a.e("s_add_u32 s38, s38, s39           ; head")
    a.e("s_lshl_b32 s22, s21, 2")
    a.e("s_add_u32 s22, s22, 4             ; n1 = 4(i+1)")
    a.e("s_lshl_b32 s23, s21, 2")
    a.e("s_sub_u32 s23, 64, s23            ; nL = 4(16-i)")
    a.e("s_lshl_b32 s39, s38, 19           ; head*512K")
    a.e(f"v_lshlrev_b32 v{VLANE}, 4, v1")
    a.e("s_waitcnt lgkmcnt(0)")
    for srdn, reg in ((4, KF), (8, VF), (12, QF)):
        a.e(f"s_add_u32 s40, s39, {reg}")
        a.e(f"s_add_u32 s{srdn}, s36, s40")
        a.e(f"s_addc_u32 s{srdn+1}, s37, 0")
        a.e(f"s_and_b32 s{srdn+1}, s{srdn+1}, 0xffff")
        if srdn == 12: a.e(f"s_mov_b32 s{srdn+2}, 0x80000")
        else: a.e(f"s_lshl_b32 s{srdn+2}, s23, 13")
        a.e(f"s_mov_b32 s{srdn+3}, 0x20000")
    a.e(f"s_add_u32 s16, s36, {CF}")
    a.e("s_addc_u32 s17, s37, 0")
    a.e("s_and_b32 s17, s17, 0xffff")
    a.e("s_mov_b32 s18, 0x1000000")
    a.e("s_mov_b32 s19, 0x20000")
    a.e("s_sub_u32 s40, 15, s21")
    a.e("s_lshl_b32 s40, s40, 2")
    a.e("s_add_u32 s40, s40, s20           ; qtile L")
    a.e("s_lshl_b32 s41, s21, 2")
    a.e("s_add_u32 s41, s41, s20           ; qtile S")
    a.e("s_lshl_b32 s42, s40, 13")
    a.e("s_lshl_b32 s43, s41, 13")
    a.e("s_add_u32 s44, s42, 0x1000")
    a.e("s_add_u32 s45, s43, 0x1000")
    for s in range(8):
        a.e(f"buffer_load_dwordx4 {A4(QL+4*s)}, v{VLANE}, s[12:15], {'s42' if s < 4 else 's44'} offen offset:{(s & 3)*1024}")
    for s in range(8):
        a.e(f"buffer_load_dwordx4 {A4(QS+4*s)}, v{VLANE}, s[12:15], {'s43' if s < 4 else 's45'} offen offset:{(s & 3)*1024}")
    a.e("s_lshl_b32 s27, s20, 11           ; K m0 base = w*2048")
    a.e("s_or_b32 s28, s27, 0x10000        ; V m0 base")
    a.e("s_mov_b32 s25, s27")
    a.e("s_mov_b32 s26, s27")
    a.e("s_mov_b32 s31, 0xffff")
    for kind in "KKKKVKVKVKVKV":
        d = dma(kind)
        a.e(d[0]); a.e(d[1])
        for o in d[2:]: a.e(o)
    a.e(f"v_mov_b32 v{VK}, v{VLANE}")
    a.e(f"v_or_b32 v{VV}, 0x10000, v{VLANE}")
    for r in range(OL, OL + 128): a.e(f"v_mov_b32 v{r}, 0")
    for r in range(LL, LL + 4): a.e(f"v_mov_b32 v{r}, 0")
    a.e("v_and_b32 v6, 31, v1")
    a.e("v_lshrrev_b32 v7, 5, v1")
    a.e("v_lshlrev_b32 v7, 2, v7")
    a.e("v_sub_u32 v6, v6, v7              ; q - 4h")
    a.e("v_mov_b32 v7, 0xf149f2ca          ; -1e30")
    for r in range(16):
        i, j = r >> 2, r & 3
        key = 16 * (i & 1) + 8 * (i >> 1) + j
        a.e(f"v_cmp_le_i32 vcc, {key}, v6")
        a.e(f"v_mov_b32 v{NEG+r}, v7")
        a.e("s_nop 0")
        a.e(f"v_cndmask_b32 v{TRI+r}, v7, 0, vcc" .replace("v7, 0, vcc", "v7, v8, vcc") if False else f"v_cndmask_b32 v{TRI+r}, v7, v{LL}, vcc")
    a.e("s_sub_u32 s29, 4, s23")
    a.e("s_sub_u32 s30, 4, s22")
    a.e("s_mov_b32 s33, 1")
    a.e("s_waitcnt vmcnt(24)")
    a.e("s_barrier")
    for o in kread(KX): a.e(o)
    for o in KADV: a.e(o)
    a.e("s_waitcnt lgkmcnt(0)")
    stamp(a, 1)
    stamp(a, 4, True)
    a.block("k2_PRO"); period(a, "PRO", True)
    a.block("k2_c1")
    a.e("s_sub_u32 s24, s22, 5")
    a.e("s_cmp_gt_i32 s24, 0")
    a.e("s_cbranch_scc0 K2_P1M_PRE")
    a.e("s_add_u32 s29, s29, s24")
    a.e("s_add_u32 s30, s30, s24")
    a.raw(".p2align 6")
    a.label("K2_P1U")
    a.block("k2_P1U"); period(a, "P1", False)
    a.e("s_sub_u32 s24, s24, 1")
    a.e("s_cmp_lg_u32 s24, 0")
    a.e("s_cbranch_scc1 K2_P1U")
    a.block("k2_c2")
    a.label("K2_P1M_PRE")
    a.e("s_sub_u32 s24, s22, 1")
    a.e("s_min_u32 s24, s24, 4")
    a.raw(".p2align 6")
    a.label("K2_P1M")
    a.block("k2_P1M"); period(a, "P1", True)
    a.e("s_sub_u32 s24, s24, 1")
    a.e("s_cmp_lg_u32 s24, 0")
    a.e("s_cbranch_scc1 K2_P1M")
    a.block("k2_c3")
    a.e("s_add_u32 s30, s29, 1")
    a.e("s_mov_b32 s33, 1")
    a.block("k2_TR"); period(a, "TR", True)
    a.block("k2_c4")
    a.e("s_add_u32 s29, s29, 1")
    a.e("s_add_u32 s30, s30, 1")
    a.e("s_mov_b32 s33, 2")
    a.e("s_sub_u32 s24, s23, s22")
    a.e("s_lshr_b32 s24, s24, 1")
    a.e("s_sub_u32 s24, s24, 3")
    a.e("s_cmp_gt_i32 s24, 0")
    a.e("s_cbranch_scc0 K2_P2M_PRE")
    a.e("s_lshl_b32 s34, s24, 1")
    a.e("s_add_u32 s29, s29, s34")
    a.e("s_add_u32 s30, s30, s34")
    a.raw(".p2align 6")
    a.label("K2_P2U")
    a.block("k2_P2U"); period(a, "P2", False)
    a.e("s_sub_u32 s24, s24, 1")
    a.e("s_cmp_lg_u32 s24, 0")
    a.e("s_cbranch_scc1 K2_P2U")
    a.block("k2_c5")
    a.label("K2_P2M_PRE")
    a.e("s_sub_u32 s24, s23, s22")
    a.e("s_lshr_b32 s24, s24, 1")
    a.e("s_sub_u32 s24, s24, 1")
    a.e("s_min_u32 s24, s24, 2")
    a.raw(".p2align 6")
    a.label("K2_P2M")
    a.block("k2_P2M"); period(a, "P2", True)
    a.e("s_sub_u32 s24, s24, 1")
    a.e("s_cmp_lg_u32 s24, 0")
    a.e("s_cbranch_scc1 K2_P2M")
    a.block("k2_FIN"); period(a, "FIN", False)
    a.block("k2_epi")
    stamp(a, 2)
    stamp(a, 5, True)
    a.e("v_and_b32 v6, 31, v1              ; q")
    a.e("v_lshrrev_b32 v7, 5, v1           ; hh")
    a.e("v_lshrrev_b32 v8, 4, v6")
    a.e("v_lshlrev_b32 v8, 17, v8          ; (q>>4)*131072")
    a.e("v_lshl_add_u32 v8, v7, 8, v8")
    a.e("v_and_b32 v9, 15, v6")
    a.e("v_lshl_add_u32 v8, v9, 4, v8")
    a.e("s_lshl_b32 s44, s38, 12           ; head*4*1024")
    for (O, L, qt) in ((OS, LS, "s41"), (OL, LL, "s40")):
        a.e(f"s_lshl_b32 s45, {qt}, 18       ; qtile*2*128*1024")
        a.e("s_add_u32 s45, s45, s44")
        a.e(f"v_add_f32 v{L}, v{L}, v{L+1}")
        a.e(f"v_mov_b32 v10, v{L}")
        a.e("s_nop 1")
        a.e(f"v_permlane32_swap_b32 v{L}, v10")
        a.e("s_nop 1")
        a.e(f"v_add_f32 v{L}, v{L}, v10")
        a.e(f"v_rcp_f32 v11, v{L}")
        a.e("s_nop 0")
        for T in range(4):
            for c in range(2):
                q = 16 + 4 * ((2 * T + c) % 4)
                for h, i in enumerate((c, c + 2)):
                    b = O + 16 * T + 4 * i
                    for j in range(4): a.e(f"v_mul_f32 v{b+j}, v{b+j}, v11")
                    a.e(f"v_cvt_pk_bf16_f32 v{q+2*h}, v{b}, v{b+1}")
                    a.e(f"v_cvt_pk_bf16_f32 v{q+2*h+1}, v{b+2}, v{b+3}")
                a.e(f"buffer_store_dwordx4 v[{q}:{q+3}], v8, s[16:19], s45 offen offset:{T*1024 + c*512}{CSTFLAG}")
    if common.DIAG:
        a.e("s_waitcnt vmcnt(0)")
        stamp(a, 3)
        stamp_flush(a, 2, 6)
    a.e("s_endpgm")
    a.cur = None
    a.label("K2_END")
    a.e("s_endpgm")
    return kernel_desc(name, 512, 96, 256)

def check_k2(a):
    B = a.blocks
    tr = B["k2_pre"] + B["k2_PRO"] + B["k2_c1"] + B["k2_P1U"] * 2 + B["k2_c2"] + B["k2_P1M"] * 2 + B["k2_c3"] + B["k2_TR"] + B["k2_c4"] + B["k2_P2U"] * 2 + B["k2_c5"] + B["k2_P2M"] * 2 + B["k2_FIN"] + B["k2_epi"]
    p = check_trace(tr, "k2a")
    tr = B["k2_pre"] + B["k2_PRO"] + B["k2_c1"] + B["k2_c2"] + B["k2_P1M"] * 3 + B["k2_c3"] + B["k2_TR"] + B["k2_c4"] + B["k2_c5"] + B["k2_P2M"] + B["k2_FIN"] + B["k2_epi"]
    return p + check_trace(tr, "k2b")
```

```python
from common import *
import common
D = 6
NS = 43
XB = 64
WB = 32
ACC = 160
VOA, VOH = 8, 12
VW, VTR = 16, 17
XR = 24
REG = 24576
OSTFLAG = ""

def gen_k3(a, name="outp_kernel"):
    kernel_header(a, name)
    a.block("k3")
    a.e("s_cmp_ge_u32 s2, 256")
    a.e("s_cbranch_scc1 K3_END")
    stamp(a, 0)
    a.e(f"s_load_dwordx2 s[36:37], s[0:1], {KA['ws']}")
    a.e(f"s_load_dwordx2 s[38:39], s[0:1], {KA['wo']}")
    a.e(f"s_load_dwordx2 s[40:41], s[0:1], {KA['wd']}")
    a.e(f"s_load_dwordx2 s[42:43], s[0:1], {KA['x']}")
    a.e(f"s_load_dwordx2 s[44:45], s[0:1], {KA['out']}")
    a.e("v_lshrrev_b32 v1, 6, v0")
    a.e("s_nop 0")
    a.e("v_readfirstlane_b32 s20, v1       ; wave")
    a.e("v_and_b32 v1, 63, v0              ; lane")
    a.e("s_and_b32 s46, s2, 7")
    a.e("s_lshr_b32 s47, s2, 3")
    a.e("s_and_b32 s21, s47, 7             ; N tile")
    a.e("s_lshr_b32 s47, s47, 3")
    a.e("s_lshl_b32 s46, s46, 2")
    a.e("s_add_u32 s22, s46, s47")
    a.e("v_lshlrev_b32 v2, 4, v1           ; lane*16")
    for tt in range(4):
        a.e(f"v_add_u32 v{VOA+tt}, {tt*131072}, v2")
        a.e(f"v_add_u32 v{VOH+tt}, {tt*44032}, v2")
    a.e("v_lshrrev_b32 v3, 3, v1")
    a.e(f"v_lshlrev_b32 v{VW}, 10, v3")
    a.e("v_lshrrev_b32 v3, 1, v1")
    a.e("v_lshrrev_b32 v4, 4, v1")
    a.e("v_xor_b32 v3, v3, v4")
    a.e("v_and_b32 v3, 3, v3")
    a.e(f"v_lshl_add_u32 v{VW}, v3, 5, v{VW}")
    a.e("v_and_b32 v3, 1, v1")
    a.e(f"v_lshl_add_u32 v{VW}, v3, 4, v{VW}")
    a.e("v_and_b32 v3, 15, v1              ; i")
    a.e("v_lshrrev_b32 v4, 4, v1           ; g")
    a.e("v_lshrrev_b32 v5, 2, v3")
    a.e("v_lshl_add_u32 v5, v4, 2, v5      ; r0")
    a.e("v_lshlrev_b32 v5, 7, v5")
    a.e("v_and_b32 v6, 3, v3")
    a.e("v_lshl_add_u32 v5, v6, 3, v5")
    a.e("v_lshrrev_b32 v6, 3, v3")
    a.e("v_lshl_add_u32 v6, v4, 1, v6")
    a.e("v_and_b32 v6, 3, v6               ; f")
    a.e(f"s_mul_i32 s23, s20, {REG}")
    a.e("v_add_u32 v5, s23, v5")
    for mt in range(4):
        a.e(f"v_xor_b32 v7, {mt}, v6")
        a.e(f"v_lshl_add_u32 v{VTR+mt}, v7, 5, v5")
    a.e("s_waitcnt lgkmcnt(0)")
    a.e(f"s_add_u32 s4, s36, {CF}"); a.e("s_addc_u32 s5, s37, 0"); a.e("s_and_b32 s5, s5, 0xffff"); a.e("s_mov_b32 s6, 0x1000000"); a.e("s_mov_b32 s7, 0x20000")
    a.e(f"s_add_u32 s8, s36, {HF}"); a.e("s_addc_u32 s9, s37, 0"); a.e("s_and_b32 s9, s9, 0xffff"); a.e(f"s_mov_b32 s10, {128*43*1024}"); a.e("s_mov_b32 s11, 0x20000")
    srd(a, "s38", "s39", 0x400000, 12)
    srd(a, "s40", "s41", 1376 * 1024, 16)
    srd(a, "s42", "s43", 0x200000, 48)
    srd(a, "s44", "s45", 0x200000, 52)
    a.e("v_lshrrev_b32 v3, 2, v0")
    a.e("v_lshlrev_b32 v21, 10, v3")
    a.e("v_and_b32 v3, 3, v0")
    a.e("v_lshl_add_u32 v21, v3, 5, v21")
    a.e("s_lshl_b32 s56, s22, 16")
    a.e("s_lshl_b32 s57, s21, 7")
    a.e("s_add_u32 s56, s56, s57")
    a.e(f"buffer_load_dwordx4 v[{XR}:{XR+3}], v21, s[48:51], s56 offen")
    a.e(f"buffer_load_dwordx4 v[{XR+4}:{XR+7}], v21, s[48:51], s56 offen offset:16")
    a.e("s_lshl_b32 s24, s22, 19           ; 4M*128*1024")
    a.e("s_lshl_b32 s58, s20, 15")
    a.e("s_add_u32 s24, s24, s58")
    a.e(f"s_mul_i32 s25, s22, {4*43*1024}")
    a.e(f"s_mul_i32 s58, s20, {11*1024}")
    a.e("s_add_u32 s25, s25, s58")
    a.e("s_lshl_b32 s26, s20, 20")
    a.e("s_add_u32 s26, s26, s57")
    a.e(f"s_mul_i32 s27, s20, {352*1024}")
    a.e("s_add_u32 s27, s27, s57")
    queue = ["x", "x"]
    def issue_parts(u):
        isA = u < 32
        sX = "s24" if isA else "s25"; sW = "s26" if isA else "s27"
        srdX = "s[4:7]" if isA else "s[8:11]"; srdW = "s[12:15]" if isA else "s[16:19]"
        vo = VOA if isA else VOH
        slot = u % D
        wd, xl = [], []
        for q in range(4):
            wd.append([f"s_add_u32 m0, s23, {slot*4096 + q*1024}", f"s_add_u32 s28, {sW}, {q*8192}", f"buffer_load_dwordx4 v{VW}, {srdW}, s28 offen lds"])
        for tt in range(4):
            b = XB + 16 * slot + 4 * tt
            xl.append([f"buffer_load_dwordx4 v[{b}:{b+3}], v{vo+tt}, {srdX}, {sX} offen"])
        adv = [f"s_add_u32 {sX}, {sX}, 1024", f"s_add_u32 {sW}, {sW}, 0x8000"]
        return wd, xl, adv
    def trreads(u):
        out = []
        for mt in range(4):
            for e4 in range(2):
                b = WB + 16 * (u & 1) + 4 * mt + 2 * e4
                out.append(f"ds_read_b64_tr_b16 v[{b}:{b+1}], v{VTR+mt} offset:{(u % D)*4096 + e4*2048}")
        return out
    for u in range(D):
        wd, xl, adv = issue_parts(u)
        for g in wd:
            for o in g: a.e(o)
        for g in xl:
            for o in g: a.e(o)
        for o in adv: a.e(o)
        queue += [u] * 8
    def wait_for(u):
        nonlocal queue
        last = max(i for i, q in enumerate(queue) if q == u)
        n = len(queue) - 1 - last
        queue = queue[last + 1:]
        return f"s_waitcnt vmcnt({n})"
    a.e(wait_for(0))
    stamp(a, 1)
    for o in trreads(0): a.e(o)
    for u in range(NS):
        fill = {}
        pre = []
        if u + 1 < NS: pre.append(wait_for(u + 1))
        pre.append("s_waitcnt lgkmcnt(0)")
        if u + 1 < NS:
            for n, o in enumerate(trreads(u + 1)): fill.setdefault(n, []).append(o)
        if u + D < NS:
            wd, xl, adv = issue_parts(u + D)
            for q in range(4): fill.setdefault(1 + 3 * q, []).extend(wd[q])
            for tt in range(4): fill.setdefault(4 * tt + 3, []).extend(xl[tt])
            fill.setdefault(15, []).extend(adv)
            queue += [u + D] * 8
        for o in pre: a.e(o)
        n = 0
        for tt in range(4):
            for mt in range(4):
                d = ACC + 4 * (4 * mt + tt)
                w = WB + 16 * (u & 1) + 4 * mt
                x = XB + 16 * (u % D) + 4 * tt
                cin = "0" if u == 0 else f"v[{d}:{d+3}]"
                a.e(f"v_mfma_f32_16x16x32_bf16 v[{d}:{d+3}], v[{w}:{w+3}], v[{x}:{x+3}], {cin}")
                for o in fill.get(n, []): a.e(o)
                n += 1
    stamp(a, 2)
    a.e("v_and_b32 v3, 15, v1")
    a.e("v_mul_u32_u24 v3, 272, v3")
    a.e("v_lshrrev_b32 v4, 4, v1")
    a.e("v_lshl_add_u32 v3, v4, 4, v3")
    a.e("v_add_u32 v3, s23, v3")
    a.e("s_nop 7")
    for tt in range(4):
        for mt in range(4):
            d = ACC + 4 * (4 * mt + tt)
            a.e(f"ds_write_b128 v3, v[{d}:{d+3}] offset:{tt*16*272 + mt*64}")
    a.e("v_lshrrev_b32 v3, 2, v0")
    a.e("v_mul_u32_u24 v3, 272, v3")
    a.e("v_and_b32 v4, 3, v0")
    a.e("v_lshl_add_u32 v3, v4, 6, v3")
    for w in range(4):
        if w: a.e(f"v_add_u32 v{3+w}, {w*REG}, v3")
    a.e("s_waitcnt lgkmcnt(0)")
    a.e("s_barrier")
    R = 64
    for w in range(4):
        for k in range(4):
            b = R + 16 * w + 4 * k
            a.e(f"ds_read_b128 v[{b}:{b+3}], v{3+w} offset:{k*16}")
    for k in range(8):
        a.e(f"v_lshlrev_b32 v{128+2*k}, 16, v{XR+k}")
        a.e(f"v_and_b32 v{128+2*k+1}, 0xffff0000, v{XR+k}")
    a.e("s_waitcnt lgkmcnt(0)")
    for k in range(16):
        a.e(f"v_add_f32 v{R+k}, v{R+k}, v{R+16+k}")
        a.e(f"v_add_f32 v{R+32+k}, v{R+32+k}, v{R+48+k}")
    for k in range(16):
        a.e(f"v_add_f32 v{R+k}, v{R+k}, v{R+32+k}")
    for k in range(16):
        a.e(f"v_add_f32 v{R+k}, v{R+k}, v{128+k}")
    for k in range(8):
        a.e(f"v_cvt_pk_bf16_f32 v{144+k}, v{R+2*k}, v{R+2*k+1}")
    a.e(f"buffer_store_dwordx4 v[144:147], v21, s[52:55], s56 offen{OSTFLAG}")
    a.e(f"buffer_store_dwordx4 v[148:151], v21, s[52:55], s56 offen offset:16{OSTFLAG}")
    if common.DIAG:
        a.e("s_waitcnt vmcnt(0)")
        stamp(a, 3)
        stamp_flush(a, 3, 4)
    a.e("s_endpgm")
    a.cur = None
    a.label("K3_END")
    a.e("s_endpgm")
    return kernel_desc(name, 256, 96, 256)

def check_k3(a):
    return check_trace(a.blocks["k3"], "k3")
```

```python
import sys
sys.path.insert(0, "gen")
from common import *
import common, k0, k1, os
common.DIAG = bool(os.environ.get('DIAG'))
def build(parts, out, stflag=""):
    a = Asm()
    hdr = open("parallel_sum__compressed_kv_cla__swiglu_ffn__prompt.s.ref").read().split("; Override")[0]
    launches = []
    descs = []
    body = Asm()
    probs = []
    for p in parts:
        if p == "k0":
            descs.append(k0.gen_k0(body)); launches.append("; @launch kernel=ln_kernel grid=(256,1,1) block=(256,1,1) lds=0")
            probs += check_trace(body.blocks["k0"], "k0")
        elif p == "k1":
            descs.append(k1.gen_k1(body, stflag=stflag)); launches.append("; @launch kernel=proj_kernel grid=(256,1,1) block=(256,1,1) lds=163840")
            probs += k1.check_k1(body)
        elif p == "k2":
            import k2
            k2.CSTFLAG = stflag
            descs.append(k2.gen_k2(body)); launches.append("; @launch kernel=attn_kernel grid=(256,1,1) block=(256,1,1) lds=163840")
            probs += k2.check_k2(body)
        elif p == "k3":
            if os.environ.get("K3S", "1") == "1": import k3s as k3
            else: import k3
            descs.append(k3.gen_k3(body)); launches.append("; @launch kernel=outp_kernel grid=(256,1,1) block=(256,1,1) lds=" + ("131072" if os.environ.get("K3S", "1") == "1" else "69632"))
            probs += k3.check_k3(body)
    for p in probs[:40]: print("HAZARD:", p)
    if probs: print(len(probs), "hazard problems")
    txt = hdr + "\n".join(launches) + "\n" + '.amdgcn_target "amdgcn-amd-amdhsa--gfx950"\n.text\n' + body.text() + 'TEXT_END:\n    s_endpgm\n' + '.section .rodata,"a"\n' + "".join(".p2align 6\n" + d for d in descs)
    open(out, "w").write(txt)
    return probs
if __name__ == "__main__":
    parts = sys.argv[2].split(",")
    build(parts, sys.argv[1], sys.argv[3] if len(sys.argv) > 3 else "")
```

```python
from common import *
import common
import os
PREFETCH = os.environ.get('K0PF', '1') == '1'
def ln_rows(a, rows, vx, vt, sbase):
    n = rows
    F = lambda r, i: vt + 20 * r + i
    T = lambda r, i: vt + 20 * r + 8 + i
    for r in range(n):
        for i in range(4):
            a.e(f"v_lshlrev_b32 v{F(r,2*i)}, 16, v{vx+4*r+i}")
            a.e(f"v_and_b32 v{F(r,2*i+1)}, 0xffff0000, v{vx+4*r+i}")
    def reduce(src_is, dst):
        for sh in (8, 4, 2, 1):
            for r in range(n):
                a.e(f"s_nop 1")
                a.e(f"v_add_f32_dpp v{T(r,dst)}, v{T(r,dst)}, v{T(r,dst)} row_ror:{sh} row_mask:0xf bank_mask:0xf")
        a.e("s_nop 1")
        for r in range(n):
            for k in range(4):
                a.e(f"v_readlane_b32 s{sbase+4*r+k}, v{T(r,dst)}, {16*k}")
        a.e("s_nop 1")
        for r in range(n):
            a.e(f"v_mov_b32 v{T(r,dst)}, s{sbase+4*r}")
            a.e(f"v_add_f32 v{T(r,dst)}, s{sbase+4*r+1}, v{T(r,dst)}")
            a.e(f"v_add_f32 v{T(r,dst)}, s{sbase+4*r+2}, v{T(r,dst)}")
            a.e(f"v_add_f32 v{T(r,dst)}, s{sbase+4*r+3}, v{T(r,dst)}")
    for r in range(n):
        a.e(f"v_add_f32 v{T(r,0)}, v{F(r,0)}, v{F(r,1)}")
        for i in range(2, 8): a.e(f"v_add_f32 v{T(r,0)}, v{T(r,0)}, v{F(r,i)}")
    reduce(None, 0)
    for r in range(n):
        a.e(f"v_mul_f32 v{T(r,0)}, 0x3b000000, v{T(r,0)}")
    for r in range(n):
        a.e(f"v_sub_f32 v{T(r,2)}, v{F(r,0)}, v{T(r,0)}")
        a.e(f"v_mul_f32 v{T(r,1)}, v{T(r,2)}, v{T(r,2)}")
        for i in range(1, 8):
            a.e(f"v_sub_f32 v{T(r,2)}, v{F(r,i)}, v{T(r,0)}")
            a.e(f"v_fmac_f32 v{T(r,1)}, v{T(r,2)}, v{T(r,2)}")
    reduce(None, 1)
    for r in range(n):
        a.e(f"v_mul_f32 v{T(r,1)}, 0x3b000000, v{T(r,1)}")
        a.e(f"v_cvt_pk_bf16_f32 v{T(r,2)}, v{T(r,0)}, v{T(r,1)}")
        a.e(f"v_and_b32 v{T(r,1)}, 0xffff0000, v{T(r,2)}")
        a.e(f"v_lshlrev_b32 v{T(r,0)}, 16, v{T(r,2)}")
        a.e(f"v_add_f32 v{T(r,1)}, 0x3727c5ac, v{T(r,1)}")
        a.e(f"v_cvt_pk_bf16_f32 v{T(r,1)}, v{T(r,1)}, v{T(r,1)}")
        a.e(f"v_and_b32 v{T(r,1)}, 0xffff0000, v{T(r,1)}")
        a.e(f"v_sqrt_f32 v{T(r,1)}, v{T(r,1)}")
        a.e("s_nop 0")
        a.e(f"v_cvt_pk_bf16_f32 v{T(r,1)}, v{T(r,1)}, v{T(r,1)}")
        a.e(f"v_and_b32 v{T(r,1)}, 0xffff0000, v{T(r,1)}")
        a.e(f"v_rcp_f32 v{T(r,1)}, v{T(r,1)}")
        a.e("s_nop 0")
        for i in range(4):
            a.e(f"v_sub_f32 v{F(r,2*i)}, v{F(r,2*i)}, v{T(r,0)}")
            a.e(f"v_sub_f32 v{F(r,2*i+1)}, v{F(r,2*i+1)}, v{T(r,0)}")
            a.e(f"v_cvt_pk_bf16_f32 v{T(r,2)}, v{F(r,2*i)}, v{F(r,2*i+1)}")
            a.e(f"v_lshlrev_b32 v{F(r,2*i)}, 16, v{T(r,2)}")
            a.e(f"v_and_b32 v{F(r,2*i+1)}, 0xffff0000, v{T(r,2)}")
            a.e(f"v_mul_f32 v{F(r,2*i)}, v{F(r,2*i)}, v{T(r,1)}")
            a.e(f"v_mul_f32 v{F(r,2*i+1)}, v{F(r,2*i+1)}, v{T(r,1)}")
            a.e(f"v_cvt_pk_bf16_f32 v{vx+4*r+i}, v{F(r,2*i)}, v{F(r,2*i+1)}")

def gen_k0(a, name="ln_kernel"):
    kernel_header(a, name)
    a.block("k0")
    a.e("s_cmp_ge_u32 s2, 256")
    a.e("s_cbranch_scc1 K0_END")
    stamp(a, 0)
    a.e(f"s_load_dwordx2 s[4:5], s[0:1], {KA['x']}")
    a.e(f"s_load_dwordx2 s[6:7], s[0:1], {KA['ws']}")
    if PREFETCH:
        a.e(f"s_load_dwordx2 s[24:25], s[0:1], {KA['ckv']}")
        a.e(f"s_load_dwordx2 s[26:27], s[0:1], {KA['wuk']}")
        a.e(f"s_load_dwordx2 s[28:29], s[0:1], {KA['wuv']}")
        a.e(f"s_load_dwordx2 s[30:31], s[0:1], {KA['wq']}")
        a.e(f"s_load_dwordx4 s[32:35], s[0:1], {KA['wg']}")
    a.e("v_lshrrev_b32 v3, 6, v0")
    a.e("v_lshrrev_b32 v1, 6, v0")
    a.e("v_and_b32 v2, 63, v0")
    a.e("v_lshlrev_b32 v1, 11, v1")
    a.e("v_lshl_add_u32 v1, v2, 4, v1")
    a.e("s_lshl_b32 s3, s2, 13")
    a.e("s_waitcnt lgkmcnt(0)")
    srd(a, "s4", "s5", 0x200000, 8)
    srd(a, "s6", "s7", 0x200000, 12)
    a.e("buffer_load_dwordx4 v[4:7], v1, s[8:11], s3 offen")
    a.e("buffer_load_dwordx4 v[8:11], v1, s[8:11], s3 offen offset:1024")
    npf = 0
    if PREFETCH:
        a.e("s_lshl_b32 s40, s2, 2")
        a.e("v_readfirstlane_b32 s41, v3")
        a.e("s_add_u32 s40, s40, s41")
        a.e("v_lshlrev_b32 v60, 6, v2          ; lane*64")
        for (lo, size) in ((24, 0x200000), (26, 0x400000), (28, 0x400000), (30, 0x400000), (32, 512*2752), (34, 512*2752)):
            a.e(f"s_mov_b32 s44, s{lo}"); a.e(f"s_and_b32 s45, s{lo+1}, 0xffff"); a.e(f"s_mov_b32 s46, {size}"); a.e("s_mov_b32 s47, 0x20000")
            if size >= 0x400000:
                a.e("s_lshl_b32 s42, s40, 12")
                a.e(f"buffer_load_dword v{54+npf}, v60, s[44:47], s42 offen"); npf += 1
            else:
                a.e("s_lshl_b32 s42, s40, 11")
                a.e("v_and_b32 v62, 0x7ff, v60")
                a.e(f"buffer_load_dword v{54+npf}, v62, s[44:47], s42 offen"); npf += 1
    a.e(f"s_waitcnt vmcnt({npf})")
    ln_rows(a, 2, 4, 16, 48)
    a.e("buffer_store_dwordx4 v[4:7], v1, s[12:15], s3 offen")
    a.e("buffer_store_dwordx4 v[8:11], v1, s[12:15], s3 offen offset:1024")
    if common.DIAG:
        stamp(a, 1)
        stamp_flush(a, 0, 2)
        a.e("s_endpgm")
    a.label("K0_END")
    a.e("s_endpgm")
    return kernel_desc(name, 256 if common.DIAG else 64, 96 if common.DIAG else 64, 256 if common.DIAG else 64)
```

```python
from common import *
import common
from k0 import ln_rows
ST_FLAG = ""
FUSE_LN = False
XB = 16
ACC = [48, 64]
TMP = 80

def k1_period(a, typ, stflag):
    fill = {}
    def acc(tt, c): return ACC[tt] + 4 * c
    mf = []
    for tt in range(2):
        for ks in range(16):
            f = tt * 16 + ks
            xb = XB + 4 * (f % 4)
            for c in range(4):
                w = (c * 16 + ks) * 4
                d = acc(tt, c)
                cin = "0" if ks == 0 else f"v[{d}:{d+3}]"
                if typ == "V":
                    mf.append(f"v_mfma_f32_16x16x32_bf16 v[{d}:{d+3}], v[{xb}:{xb+3}], a[{w}:{w+3}], {cin}")
                else:
                    mf.append(f"v_mfma_f32_16x16x32_bf16 v[{d}:{d+3}], a[{w}:{w+3}], v[{xb}:{xb+3}], {cin}")
    pre = {}
    for f in range(3, 35):
        ff = f % 32
        tt, ks = ff // 16, ff % 16
        xb = XB + 4 * (f % 4)
        base = "v3" if ks % 2 == 0 else "v4"
        off = (ks >> 1) * 4096 + tt * 2048
        idx = 4 * (f - 3)
        rd = f"ds_read_b128 v[{xb}:{xb+3}], {base} offset:{off}"
        if f == 32:
            fill.setdefault(idx - 3, []).append("v_add_u32 v3, 0x8000, v3")
            fill.setdefault(idx - 2, []).append("v_and_b32 v3, 0x1ffff, v3")
            fill.setdefault(idx - 1, []).append("v_xor_b32 v4, 64, v3")
        fill.setdefault(idx, []).append(rd)
    for f in range(32):
        pre.setdefault(4 * f, []).append("s_waitcnt lgkmcnt(2)")
    def cvt(dst, s0, s1): return f"v_cvt_pk_bf16_f32 v{dst}, v{s0}, v{s1}"
    def st(q, soff, off): return f"buffer_store_dwordx4 v[{q}:{q+3}], v8, s[16:19], {soff} offen offset:{off}{stflag}"
    def epi(tt, soff):
        ops = []
        if typ in "KQ":
            for pr in range(2):
                q = TMP + 8 * tt + 4 * pr
                if typ == "Q":
                    for c in (2 * pr, 2 * pr + 1):
                        for j in range(4): ops.append(f"v_mul_f32 v{acc(tt,c)+j}, s30, v{acc(tt,c)+j}")
                for h, c in enumerate((2 * pr, 2 * pr + 1)):
                    ops.append(cvt(q + 2 * h, acc(tt, c), acc(tt, c) + 1))
                    ops.append(cvt(q + 2 * h + 1, acc(tt, c) + 2, acc(tt, c) + 3))
                off = pr * 2048 + tt * (128 if typ == "K" else 256)
                ops.append(st(q, soff, off))
        elif typ == "V":
            for c in range(4):
                q = TMP + 4 * c
                ops.append(cvt(q + 2 * tt, acc(tt, c), acc(tt, c) + 1))
                ops.append(cvt(q + 2 * tt + 1, acc(tt, c) + 2, acc(tt, c) + 3))
                if tt == 1:
                    ops.append(st(q, soff, (c & 1) * 256 + (c >> 1) * 2048))
        else:
            T = TMP + 16
            groups = [[(c, j) for j in range(4)] for c in range(2)]
            for grp in groups:
                for n, (c, j) in enumerate(grp): ops.append(f"v_mul_f32 v{T+n}, s31, v{acc(tt,c)+j}")
                for n, (c, j) in enumerate(grp): ops.append(f"v_exp_f32 v{T+n}, v{T+n}")
                for n, (c, j) in enumerate(grp): ops.append(f"v_add_f32 v{T+n}, 1.0, v{T+n}")
                for n, (c, j) in enumerate(grp): ops.append(f"v_rcp_f32 v{T+n}, v{T+n}")
                for n, (c, j) in enumerate(grp): ops.append(f"v_mul_f32 v{acc(tt,c)+j}, v{acc(tt,c)+j}, v{acc(tt,c+2)+j}")
                for n, (c, j) in enumerate(grp): ops.append(f"v_mul_f32 v{acc(tt,c)+j}, v{acc(tt,c)+j}, v{T+n}")
                c = grp[0][0]
                q = TMP + 4 * tt
                ops.append(cvt(q + 2 * c, acc(tt, c), acc(tt, c) + 1))
                ops.append(cvt(q + 2 * c + 1, acc(tt, c) + 2, acc(tt, c) + 3))
            ops.append(st(TMP + 4 * tt, soff, 0))
        return ops
    e1 = epi(1, "s27" if typ != "G" else "s29")
    e0 = epi(0, "s25")
    spread(fill, e1, 3, 58)
    dma = []
    for slab in range(8):
        m0 = "s_mov_b32 m0, s26" if slab == 0 else "s_add_u32 m0, m0, 3968"
        dma.append((m0, f"buffer_load_dwordx4 v2, s[4:7], s24 offen offset:{slab*128} lds"))
    spread(fill, e0, 67, 104)
    for n, (m0, ld) in enumerate(dma):
        g = 106 + 2 * n
        fill.setdefault(g, []).append(m0)
        fill.setdefault(g + 1, []).append(ld)
    book = ["s_add_u32 s24, s24, 0x8000", "s_add_u32 s26, s26, 0x8000", "s_and_b32 s26, s26, 0x1ffff"]
    if typ == "G":
        book += ["s_add_u32 s29, s25, 44032", "s_add_u32 s25, s25, 88064"]
    else:
        book += ["s_mov_b32 s27, s25", "s_add_u32 s25, s25, 8192"]
    fill.setdefault(124, []).extend(book[:3]); fill.setdefault(125, []).extend(book[3:])
    nst1 = sum(1 for o in e1 if o.startswith("buffer_store")); nst0 = sum(1 for o in e0 if o.startswith("buffer_store"))
    N = nst1 + nst0 + 8 + nst1
    pre.setdefault(64, []).insert(0, f"s_waitcnt vmcnt({N})")
    pre[64].insert(1, "s_barrier")
    for i, m in enumerate(mf):
        for p in pre.get(i, []): a.e(p)
        a.e(m)
        for p in fill.get(i, []): a.e(p)
    return e1

def ln_finish(a):
    ln_rows(a, 2, 100, 108, 44)
    a.e(f"s_add_u32 s68, s52, {XN}")
    a.e("s_addc_u32 s69, s53, 0")
    a.e("s_and_b32 s69, s69, 0xffff")
    a.e("buffer_store_dwordx4 v[100:103], v99, s[68:71], s33 offen sc1")
    a.e("buffer_store_dwordx4 v[104:107], v99, s[68:71], s33 offen offset:1024 sc1")
    a.e("s_waitcnt vmcnt(0)")
    a.e("s_barrier")
    l = a.newlabel("K1_SIG")
    a.e("s_cmp_lg_u32 s20, 0")
    a.e(f"s_cbranch_scc1 {l}")
    a.e("s_lshr_b32 s32, s2, 4")
    a.e("s_lshl_b32 s32, s32, 4")
    a.e("v_mov_b32 v98, s32")
    a.e("v_mov_b32 v97, 1")
    a.e("s_mov_b64 exec, 1")
    a.e("global_atomic_add v98, v97, s[34:35] sc1")
    a.e("s_mov_b64 exec, -1")
    a.label(l)

def poll_xn(a):
    a.e("v_and_b32 v98, 3, v1")
    a.e("s_lshl_b32 s32, s56, 2")
    a.e("v_add_u32 v98, s32, v98")
    a.e("v_lshlrev_b32 v98, 4, v98")
    l = a.newlabel("K1_POLL")
    a.label(l)
    a.e("global_load_dword v97, v98, s[34:35] sc1")
    a.e("s_waitcnt vmcnt(0)")
    a.e("v_cmp_ne_u32 vcc, 16, v97")
    a.e("s_nop 4")
    a.e(f"s_cbranch_vccnz {l}")

def gen_aux(a):
    a.block("k1_aux")
    a.label("K1_AUX")
    if FUSE_LN:
        a.e("s_waitcnt vmcnt(0)")
        ln_finish(a)
    a.e(f"s_load_dwordx2 s[40:41], s[0:1], {KA['wo']}")
    a.e(f"s_load_dwordx2 s[42:43], s[0:1], {KA['wd']}")
    a.e("s_sub_u32 s57, s54, 4")
    a.e("s_lshl_b32 s57, s57, 2")
    a.e("s_cmp_eq_u32 s55, 7")
    a.e("s_cselect_b32 s57, s57, 16")
    a.e("s_add_u32 s57, s57, s56")
    a.e("s_lshl_b32 s57, s57, 2")
    a.e("s_add_u32 s57, s57, s20")
    a.e(f"s_mul_i32 s58, s20, 40960")
    a.e("s_waitcnt lgkmcnt(0)")
    srd(a, "s40", "s41", 0x400000, 4)
    srd(a, "s42", "s43", 1376 * 1024, 8)
    a.e(f"s_add_u32 s16, s52, {WF}"); a.e("s_addc_u32 s17, s53, 0"); a.e("s_and_b32 s17, s17, 0xffff")
    a.e(f"s_mov_b32 s18, {8*172*4096}"); a.e("s_mov_b32 s19, 0x20000")
    a.e("v_lshrrev_b32 v9, 1, v1")
    a.e("v_and_b32 v18, 1, v1")
    a.e("v_lshlrev_b32 v18, 4, v18")
    for r7 in range(8):
        a.e(f"v_xor_b32 v{10+r7}, {r7}, v9")
        a.e(f"v_lshl_add_u32 v{10+r7}, v{10+r7}, 5, v18")
    a.e("v_and_b32 v2, 15, v1              ; i")
    a.e("v_lshrrev_b32 v3, 4, v1           ; g")
    a.e("v_lshrrev_b32 v4, 2, v2")
    a.e("v_lshl_add_u32 v5, v3, 2, v4      ; r0")
    a.e("v_and_b32 v6, 7, v5               ; f")
    a.e("v_lshlrev_b32 v5, 10, v5")
    a.e("v_and_b32 v7, 3, v2")
    a.e("v_lshl_add_u32 v5, v7, 3, v5")
    a.e("v_add_u32 v5, s58, v5")
    for b in range(8):
        a.e(f"v_xor_b32 v7, {b}, v6")
        a.e(f"v_lshl_add_u32 v{20+b}, v7, 5, v5")
    a.e("v_lshlrev_b32 v8, 4, v1           ; lane*16")
    a.label("K1_AUXL")
    a.e("s_cmp_ge_u32 s57, 171")
    a.e("s_cbranch_scc1 K1_AUXE")
    a.e("s_cmp_lt_u32 s57, 128")
    for k in range(4): a.e(f"s_cselect_b32 s{12+k}, s{4+k}, s{8+k}")
    a.e("s_mov_b32 s15, 0x20000")
    a.e("s_and_b32 s59, s57, 127")
    a.e("s_lshl_b32 s59, s59, 15")
    a.e("s_mov_b32 m0, s58")
    a.e("s_nop 0")
    for r in range(32):
        a.e(f"buffer_load_dwordx4 v{10+(r&7)}, s[12:15], s59 offen lds")
        a.e("s_add_u32 m0, m0, 1024")
        a.e("s_add_u32 s59, s59, 1024")
    a.e("s_lshl_b32 s60, s57, 12           ; u*4096")
    a.e("s_waitcnt vmcnt(0)")
    for N in range(8):
        q = 64 + 16 * (N & 3)
        for mt in range(4):
            cidx = 4 * N + mt
            for e4 in range(2):
                a.e(f"ds_read_b64_tr_b16 v[{q+4*mt+2*e4}:{q+4*mt+2*e4+1}], v{20+(cidx&7)} offset:{(cidx>>3)*256 + e4*16384}")
        a.e("s_waitcnt lgkmcnt(0)")
        for mt in range(4):
            a.e(f"buffer_store_dwordx4 v[{q+4*mt}:{q+4*mt+3}], v8, s[16:19], s60 offen offset:{mt*1024} sc1")
        a.e(f"s_add_u32 s60, s60, {172*4096}")
    a.e("s_waitcnt vmcnt(0)")
    a.e("s_add_u32 s57, s57, 80")
    a.e("s_branch K1_AUXL")
    a.label("K1_AUXE")
    if common.DIAG:
        stamp(a, 4)
        stamp_flush(a, 1, 9)
    a.e("s_endpgm")

def gen_k1(a, name="proj_kernel", stflag=""):
    kernel_header(a, name)
    a.block("k1_pro")
    a.e("s_cmp_ge_u32 s2, 256")
    a.e("s_cbranch_scc1 K1_END")
    stamp(a, 0)
    a.e(f"s_load_dwordx4 s[36:39], s[0:1], {KA['x']}")
    a.e(f"s_load_dwordx4 s[40:43], s[0:1], {KA['wq']}")
    a.e(f"s_load_dwordx2 s[44:45], s[0:1], {KA['wuv']}")
    a.e(f"s_load_dwordx4 s[48:51], s[0:1], {KA['wg']}")
    a.e(f"s_load_dwordx2 s[52:53], s[0:1], {KA['ws']}")
    a.e(f"s_load_dwordx2 s[34:35], s[0:1], {KA['dbg']}")
    a.e("v_lshrrev_b32 v1, 6, v0")
    a.e("s_nop 0")
    a.e("v_readfirstlane_b32 s20, v1")
    a.e("v_and_b32 v1, 63, v0              ; lane")
    a.e("s_and_b32 s54, s2, 7              ; x")
    a.e("s_lshr_b32 s55, s2, 3             ; j")
    a.e("s_and_b32 s56, s55, 3             ; m")
    a.e("s_lshr_b32 s55, s55, 2            ; pi")
    a.e("s_waitcnt lgkmcnt(0)")
    if FUSE_LN:
        srd(a, "s36", "s37", 0x200000, 68)
        a.e("v_lshlrev_b32 v99, 4, v1")
        a.e("s_lshl_b32 s64, s20, 11")
        a.e("v_add_u32 v99, s64, v99")
        a.e("s_lshl_b32 s33, s2, 13")
        a.e("buffer_load_dwordx4 v[100:103], v99, s[68:71], s33 offen")
        a.e("buffer_load_dwordx4 v[104:107], v99, s[68:71], s33 offen offset:1024")
    a.e("s_cmp_ge_u32 s54, 4")
    a.e("s_cbranch_scc1 K1_XN")
    a.e("s_lshl_b32 s57, s54, 3")
    a.e("s_add_u32 s57, s57, s55           ; p 0..31")
    a.e("s_mov_b32 s60, s38")
    a.e("s_mov_b32 s61, s39")
    a.e("s_cmp_lt_u32 s57, 16")
    a.e("s_cselect_b32 s21, 0, 1           ; type K=0 / V=1")
    a.e("s_cselect_b32 s62, s42, s44")
    a.e("s_cselect_b32 s63, s43, s45       ; W")
    a.e(f"s_mov_b32 s59, {VF}")
    a.e(f"s_cselect_b32 s58, {KF}, s59")
    a.e("s_and_b32 s57, s57, 15            ; panel")
    a.e("s_branch K1_QKV")
    a.label("K1_XN")
    a.e("s_cmp_eq_u32 s55, 7")
    a.e("s_cbranch_scc1 K1_AUX")
    a.e("s_sub_u32 s57, s54, 4")
    a.e("s_mul_i32 s57, s57, 7")
    a.e("s_add_u32 s57, s57, s55           ; q")
    a.e("s_cmp_ge_u32 s57, 27")
    a.e("s_cbranch_scc1 K1_AUX")
    a.e(f"s_add_u32 s60, s52, {XN}")
    a.e("s_addc_u32 s61, s53, 0")
    a.e("s_cmp_ge_u32 s57, 16")
    a.e("s_cbranch_scc1 K1_GU")
    a.e("s_mov_b32 s21, 2")
    a.e("s_mov_b32 s62, s40")
    a.e("s_mov_b32 s63, s41")
    a.e(f"s_mov_b32 s58, {QF}")
    a.label("K1_QKV")
    a.e("s_mov_b32 s22, 8192")
    a.e("s_lshl_b32 s59, s57, 9")
    a.e("s_lshl_b32 s64, s20, 7")
    a.e("s_add_u32 s59, s59, s64")
    a.e("s_add_u32 s8, s62, s59")
    a.e("s_addc_u32 s9, s63, 0")
    a.e("s_and_b32 s9, s9, 0xffff")
    a.e("s_sub_u32 s10, 0x400000, s59")
    a.e("s_mov_b32 s11, 0x20000")
    a.e("s_add_u32 s12, s8, 64")
    a.e("s_addc_u32 s13, s9, 0")
    a.e("s_sub_u32 s14, s10, 64")
    a.e("s_mov_b32 s15, 0x20000")
    a.e("s_lshl_b32 s25, s57, 1")
    a.e("s_lshr_b32 s64, s20, 1")
    a.e("s_add_u32 s25, s25, s64           ; head")
    a.e("s_lshl_b32 s25, s25, 19")
    a.e("s_and_b32 s64, s20, 1")
    a.e("s_lshl_b32 s64, s64, 12")
    a.e("s_add_u32 s25, s25, s64")
    a.e("s_lshl_b32 s64, s56, 17           ; 16m*8192")
    a.e("s_add_u32 s25, s25, s64")
    a.e("s_mov_b32 s65, 0x1000000")
    a.e("s_branch K1_COMMON")
    a.label("K1_GU")
    a.e("s_mov_b32 s21, 3")
    a.e("s_sub_u32 s57, s57, 16")
    a.e("s_lshl_b32 s57, s57, 2")
    a.e("s_add_u32 s57, s57, s20           ; fs")
    a.e("s_min_u32 s57, s57, 42")
    a.e("s_mov_b32 s22, 2752")
    a.e("s_lshl_b32 s59, s57, 6")
    a.e("s_add_u32 s8, s48, s59")
    a.e("s_addc_u32 s9, s49, 0")
    a.e("s_and_b32 s9, s9, 0xffff")
    a.e(f"s_sub_u32 s10, {512*2752}, s59")
    a.e("s_mov_b32 s11, 0x20000")
    a.e("s_add_u32 s12, s50, s59")
    a.e("s_addc_u32 s13, s51, 0")
    a.e("s_and_b32 s13, s13, 0xffff")
    a.e("s_mov_b32 s14, s10")
    a.e("s_mov_b32 s15, 0x20000")
    a.e(f"s_mov_b32 s58, {HF}")
    a.e(f"s_mul_i32 s25, s56, {32*43*1024}")
    a.e("s_lshl_b32 s64, s57, 10")
    a.e("s_add_u32 s25, s25, s64")
    a.e(f"s_mov_b32 s65, {128*43*1024}")
    a.label("K1_COMMON")
    a.e("s_lshl_b32 s64, s56, 19")
    a.e("s_add_u32 s4, s60, s64")
    a.e("s_addc_u32 s5, s61, 0")
    a.e("s_and_b32 s5, s5, 0xffff")
    a.e("s_mov_b32 s6, 0x80000")
    a.e("s_mov_b32 s7, 0x20000")
    a.e("s_add_u32 s16, s52, s58")
    a.e("s_addc_u32 s17, s53, 0")
    a.e("s_and_b32 s17, s17, 0xffff")
    a.e("s_mov_b32 s18, s65")
    a.e("s_mov_b32 s19, 0x20000")
    a.e("s_mov_b32 s27, 0x80000000")
    a.e("s_mov_b32 s29, 0x80000000")
    a.e("s_mov_b32 s30, 0x3e0293ee         ; 128^-0.5*log2(e)")
    a.e("s_mov_b32 s31, 0xbfb8aa3b         ; -log2(e)")
    a.e("v_lshrrev_b32 v9, 3, v1")
    a.e("s_lshl_b32 s64, s20, 3")
    a.e("v_add_u32 v9, s64, v9")
    a.e("v_lshlrev_b32 v2, 10, v9")
    a.e("s_and_b32 s64, s20, 1")
    a.e("s_lshl_b32 s64, s64, 2")
    a.e("v_lshrrev_b32 v9, 4, v1")
    a.e("v_add_u32 v9, s64, v9")
    a.e("v_and_b32 v10, 7, v1")
    a.e("v_xor_b32 v9, v9, v10")
    a.e("v_and_b32 v9, 7, v9")
    a.e("v_lshl_add_u32 v2, v9, 4, v2")
    a.e("v_and_b32 v9, 15, v1              ; t")
    a.e("v_lshrrev_b32 v10, 4, v1          ; g")
    a.e("v_lshrrev_b32 v11, 1, v9")
    a.e("v_xor_b32 v11, v11, v10")
    a.e("v_lshlrev_b32 v11, 4, v11")
    a.e("v_lshl_add_u32 v3, v9, 7, v11")
    a.e("v_xor_b32 v4, 64, v3")
    a.e("v_lshrrev_b32 v11, 2, v9          ; i>>2")
    a.e("v_lshl_add_u32 v11, v10, 3, v11")
    a.e("v_lshlrev_b32 v11, 6, v11")
    a.e("v_and_b32 v12, 3, v9")
    a.e("v_lshl_add_u32 v11, v12, 3, v11")
    a.e("v_and_b32 v12, 1, v10")
    a.e("v_lshl_add_u32 v5, v12, 5, v11")
    a.e("s_lshl_b32 s64, s20, 15")
    a.e("s_add_u32 s64, s64, 0x8000")
    a.e("v_add_u32 v5, s64, v5")
    a.e("v_xor_b32 v6, 32, v5")
    a.e("v_lshrrev_b32 v11, 2, v1")
    a.e("v_mul_lo_u32 v7, v11, s22")
    a.e("v_lshrrev_b32 v11, 1, v1")
    a.e("v_lshrrev_b32 v12, 5, v1")
    a.e("v_xor_b32 v11, v11, v12")
    a.e("v_and_b32 v11, 1, v11")
    a.e("v_lshl_add_u32 v7, v11, 5, v7")
    a.e("v_and_b32 v11, 1, v1")
    a.e("v_lshl_add_u32 v7, v11, 4, v7")
    a.e("s_lshl_b32 s66, s22, 4            ; 16 rows")
    a.e("s_mov_b32 s67, 0")
    def wdma(ks):
        slot = ks % 8
        for half in range(2):
            for hf in range(2):
                srdn = "s[8:11]" if half == 0 else "s[12:15]"
                a.e(f"s_add_u32 m0, s64, {slot*4096 + half*2048 + hf*1024}")
                if hf == 0: a.e("s_mov_b32 s73, s67")
                else: a.e("s_add_u32 s73, s67, s66")
                a.e(f"buffer_load_dwordx4 v7, {srdn}, s73 offen lds")
        a.e("s_add_u32 s67, s67, s66")
        a.e("s_add_u32 s67, s67, s66")
    for ks in range(4): wdma(ks)
    if FUSE_LN:
        a.e("s_waitcnt vmcnt(16)")
        ln_finish(a)
    a.e("s_lshl_b32 s26, s20, 10           ; m0 base = w*1024")
    a.e("s_mov_b32 s24, 0")
    def tdma():
        for slab in range(8):
            a.e("s_mov_b32 m0, s26" if slab == 0 else "s_add_u32 m0, m0, 3968")
            a.e("s_nop 0")
            a.e(f"buffer_load_dwordx4 v2, s[4:7], s24 offen offset:{slab*128} lds")
        a.e("s_add_u32 s24, s24, 0x8000")
        a.e("s_add_u32 s26, s26, 0x8000")
        a.e("s_and_b32 s26, s26, 0x1ffff")
    for ks in range(4, 8): wdma(ks)
    if FUSE_LN:
        a.e("s_cmp_lt_u32 s21, 2")
        a.e("s_cbranch_scc0 K1_NOT0")
    tdma()
    a.label("K1_NOT0")
    stamp(a, 8)
    a.e("v_lshrrev_b32 v11, 1, v10         ; g>>1")
    a.e("v_lshlrev_b32 v8, 10, v11")
    a.e("v_and_b32 v11, 1, v10")
    a.e("v_lshl_add_u32 v8, v11, 9, v8     ; + (g&1)*512")
    a.e("s_cmp_eq_u32 s21, 0")
    a.e("s_cbranch_scc0 K1_A1")
    a.e("v_lshrrev_b32 v11, 3, v9          ; K: r=16*(t>>3)+(t&7)")
    a.e("v_lshlrev_b32 v11, 4, v11")
    a.e("v_and_b32 v12, 7, v9")
    a.e("v_add_u32 v11, v11, v12")
    a.e("v_lshl_add_u32 v8, v11, 4, v8")
    a.e("s_branch K1_A3")
    a.label("K1_A1")
    a.e("s_cmp_eq_u32 s21, 3")
    a.e("s_cbranch_scc1 K1_A2")
    a.e("v_lshl_add_u32 v8, v9, 4, v8      ; Q,V: + t*16")
    a.e("s_branch K1_A3")
    a.label("K1_A2")
    a.e("v_lshlrev_b32 v8, 4, v1")
    a.label("K1_A3")
    out = 40
    for ks in range(16):
        if ks < 8: n = out - 4 * (ks + 1) + 4 * ks
        pass
    queue = [("W", k) for k in range(4 if FUSE_LN else 0, 8) for _ in range(4)] + ([] if FUSE_LN else [("T", 0)] * 8)
    for ks in range(16):
        if ks >= 4 or not FUSE_LN:
            last = max(i for i, q in enumerate(queue) if q == ("W", ks))
            n = len(queue) - 1 - last
            a.e(f"s_waitcnt vmcnt({n})")
            queue = queue[last + 1:]
        if ks == 0: stamp(a, 5)
        slot = ks % 8
        for c in range(4):
            for e4 in range(2):
                w = (c * 16 + ks) * 4 + 2 * e4
                a.e(f"ds_read_b64_tr_b16 a[{w}:{w+1}], v{5 + (c & 1)} offset:{slot*4096 + (c >> 1)*2048 + e4*256}")
        if ks + 8 < 16:
            a.e("s_waitcnt lgkmcnt(0)")
            wdma(ks + 8)
            queue += [("W", ks + 8)] * 4
    a.e("s_waitcnt lgkmcnt(0)")
    stamp(a, 1)
    if FUSE_LN:
        a.e("s_cmp_lt_u32 s21, 2")
        a.e("s_cbranch_scc1 K1_T12")
        a.e("s_cmp_lg_u32 s20, 0")
        a.e("s_cbranch_scc1 K1_NOPOLL")
        poll_xn(a)
        a.label("K1_NOPOLL")
        a.e("s_barrier")
        a.e("buffer_inv sc1")
        a.e("s_waitcnt vmcnt(0)")
        tdma()
        a.label("K1_T12")
    a.e("s_barrier")
    tdma(); tdma()
    a.e("s_waitcnt vmcnt(8)")
    a.e("s_barrier")
    stamp(a, 2)
    stamp(a, 6, True)
    for f in range(3):
        xb = XB + 4 * f
        a.e(f"ds_read_b128 v[{xb}:{xb+3}], {'v3' if f % 2 == 0 else 'v4'} offset:{(f >> 1)*4096}")
    a.e("s_mov_b32 s23, 16")
    for typ, code in (("K", 0), ("V", 1), ("Q", 2)):
        a.e(f"s_cmp_eq_u32 s21, {code}")
        a.e(f"s_cbranch_scc1 K1_LOOP_{typ}")
    a.e("s_branch K1_LOOP_G")
    for typ in "KVQG":
        a.block(f"k1_loop_{typ}")
        a.raw(".p2align 6")
        a.label(f"K1_LOOP_{typ}")
        e1 = k1_period(a, typ, stflag)
        a.e("s_sub_u32 s23, s23, 1")
        a.e("s_cmp_lg_u32 s23, 0")
        a.e(f"s_cbranch_scc1 K1_LOOP_{typ}")
        a.block(f"k1_tail_{typ}")
        a.e("s_nop 7")
        stamp(a, 3)
        stamp(a, 7, True)
        for o in e1: a.e(o)
        if common.DIAG:
            a.e("s_waitcnt vmcnt(0)")
            stamp(a, 4)
            stamp_flush(a, 1, 9)
        a.e("s_endpgm")
    gen_aux(a)
    a.cur = None
    a.label("K1_END")
    a.e("s_endpgm")
    return kernel_desc(name, 512, 96, 256)

def check_k1(a):
    probs = []
    for typ in "KVQG":
        tr = a.blocks["k1_pro"] + a.blocks[f"k1_loop_{typ}"] * 3 + a.blocks[f"k1_tail_{typ}"]
        probs += check_trace(tr, "k1" + typ)
    probs += check_trace(a.blocks["k1_pro"][:40] + a.blocks["k1_aux"], "k1aux")
    return probs
```

```python
from common import *
import common, os
EXP = os.environ.get('K2EXP', '')
QL, QS, KX, KY, VX, VY = 0, 32, 64, 96, 128, 160
SA, SB, PA, PB, TRI, NEG = 32, 48, 64, 72, 80, 96
LL, LS = 112, 114
OL, OS = 128, 192
VK, VV, VLANE, VT = 2, 3, 4, 5
CSTFLAG = ""
PREFETCH = False

def mf(d, a_, b_, c): return f"v_mfma_f32_32x32x16_bf16 v[{d}:{d+15}], {a_}, {b_}, {c}"
def A4(b): return f"a[{b}:{b+3}]"
def V4(b): return f"v[{b}:{b+3}]"

def qk(S, Q, K):
    return [mf(S, A4(K + 4*s), A4(Q + 4*s), "0" if s == 0 else f"v[{S}:{S+15}]") for s in range(8)]
def pv(P, V, O):
    return [mf(O + 16*T, A4(V + 4*(2*T + ks)), V4(P + 4*ks), f"v[{O+16*T}:{O+16*T+15}]") for ks in range(2) for T in range(4)]

def sm_ops(S, P, L):
    ops = []
    for r in range(16):
        ops.append(dict(t=f"v_exp_f32 v{S+r}, v{S+r}", c=8, k="e", r=r, deps=[]))
    for r in range(16):
        ops.append(dict(t=f"v_add_f32 v{L+(r&1)}, v{L+(r&1)}, v{S+r}", c=4, k="a", r=r, deps=[r] + ([16 + r - 2] if r >= 2 else [])))
    for k in range(8):
        ops.append(dict(t=f"v_cvt_pk_bf16_f32 v{P+k}, v{S+2*k}, v{S+2*k+1}", c=4, k="c0" if k < 4 else "c1", r=k, deps=[2*k, 2*k+1]))
    return ops

def try_place(ops, start, end, c0_min, c1_min, used, b):
    used = dict(used); out = {}; pos = {}
    seq = 0
    for g in range(start, end + 1):
        room = b - used.get(g % 32, 0)
        last_e = None
        while True:
            best = None
            for n, o in enumerate(ops):
                if n in pos: continue
                if o["k"] == "c0" and g < c0_min: continue
                if o["k"] == "c1" and g < c1_min: continue
                if any(d not in pos for d in o["deps"]): continue
                if last_e is not None and last_e in o["deps"]: continue
                if o["c"] > room: continue
                pr = {"c0": 0, "c1": 0, "a": 1, "e": 2}[o["k"]]
                key = (pr, o["r"])
                if best is None or key < best[0]: best = (key, n)
            if best is None: break
            n = best[1]; o = ops[n]
            pos[n] = g; out.setdefault(g, []).append(o["t"]); room -= o["c"]; used[g % 32] = used.get(g % 32, 0) + o["c"]
            last_e = n if o["k"] == "e" else None
    return (out, used) if len(pos) == len(ops) else None

HEAD = lambda o: (o["k"] == "e" and o["r"] < 10) or (o["k"] == "a" and o["r"] < 8) or o["k"] == "c0"
def subset(ops, keep):
    idx = [n for n, o in enumerate(ops) if keep(o)]
    m = {n: i for i, n in enumerate(idx)}
    return [dict(o, deps=[m[d] for d in o["deps"] if d in m]) for n, o in enumerate(ops) if n in m]
def place3(A, Bh, Bt, used):
    res = []
    u = dict(used)
    for b in range(8, 41):
        rt = try_place(subset(Bt, lambda o: not HEAD(o)), 0, 7, 0, 0, u, b)
        if rt is not None: break
    u = rt[1]; bt = b
    for b in range(8, 41):
        ra = try_place(A, 10, 31, 19, 23, u, b)
        if ra is None: continue
        rb = try_place(subset(Bh, HEAD), 18, 31, 27, 32, ra[1], b)
        if rb is None: continue
        return ra[0], rb[0], rt[0], (bt, b)
    raise AssertionError("no placement")

def kread(buf): return [f"ds_read_b128 {A4(buf+4*s)}, v{VK} offset:{s*1024}" for s in range(8)]
def vread(buf): return [f"ds_read_b128 {A4(buf+4*(2*T+ks))}, v{VV} offset:{(2*T+ks)*1024}" for ks in range(2) for T in range(4)]
KADV = [f"v_add_u32 v{VK}, 0x2000, v{VK}", f"v_and_b32 v{VK}, 0xffff, v{VK}"]
VADV = [f"v_add_u32 v{VT}, 0x2000, v{VV}", f"v_bfi_b32 v{VV}, s31, v{VT}, v{VV}"]
def dma(kind):
    if kind == "K":
        return ["s_mov_b32 m0, s27", "s_add_u32 s27, s27, 0x2000",
                f"buffer_load_dwordx4 v{VLANE}, s[4:7], s25 offen lds", f"buffer_load_dwordx4 v{VLANE}, s[4:7], s25 offen offset:1024 lds",
                "s_and_b32 s27, s27, 0xffff", "s_add_u32 s25, s25, 0x2000"]
    return ["s_mov_b32 m0, s28", "s_add_u32 s28, s28, 0x2000",
            f"buffer_load_dwordx4 v{VLANE}, s[8:11], s26 offen lds", f"buffer_load_dwordx4 v{VLANE}, s[8:11], s26 offen offset:1024 lds",
            "s_and_b32 s28, s28, 0xffff", "s_or_b32 s28, s28, 0x10000", "s_add_u32 s26, s26, 0x2000"]

def period(a, kind, masked):
    hasQK = kind != "FIN"; hasPV = kind != "PRO"
    if kind in ("PRO", "P1"):
        M = qk(SA, QL, KX) + qk(SB, QS, KX) + pv(PA, VX, OL) + pv(PB, VX, OS); lA, lBh, lBt = LL, LS, LS
    elif kind == "TR":
        M = qk(SA, QL, KX) + qk(SB, QL, KY) + pv(PA, VX, OL) + pv(PB, VX, OS); lA, lBh, lBt = LL, LL, LS
    else:
        M = qk(SA, QL, KX) + qk(SB, QL, KY) + pv(PA, VX, OL) + pv(PB, VY, OL); lA, lBh, lBt = LL, LL, LL
    fill, pre = {}, {}
    def add(d, g, ops):
        d.setdefault(g, []).extend(ops if isinstance(ops, list) else [ops])
    nread = {}
    def reads(lst, gaps, adv):
        for n, op in enumerate(lst):
            g = gaps[n * len(gaps) // len(lst)]
            add(fill, g, op); nread[g] = nread.get(g, 0) + 1
        add(fill, gaps[-1], adv[0]); add(fill, gaps[-1] + 1 if gaps[-1] < 31 else 31, adv[1])
    if kind == "PRO":
        vm = 22; add(pre, 0, f"s_waitcnt vmcnt({vm})"); add(pre, 0, "s_barrier")
        reads(kread(KX), list(range(16, 24)), KADV)
    elif kind == "P1":
        add(pre, 0, "s_waitcnt vmcnt(20) lgkmcnt(0)"); add(pre, 0, "s_barrier")
        reads(vread(VX), list(range(0, 12)), VADV); add(pre, 16, "s_waitcnt lgkmcnt(0)")
        reads(kread(KX), list(range(16, 28)), KADV)
    elif kind == "TR":
        add(pre, 0, "s_waitcnt vmcnt(18) lgkmcnt(0)"); add(pre, 0, "s_barrier")
        reads(kread(KY), [0, 1, 2, 3], KADV)
        reads(vread(VX), list(range(5, 13)), VADV)
        add(pre, 8, "s_waitcnt lgkmcnt(3)"); add(pre, 16, "s_waitcnt lgkmcnt(0)")
        reads(kread(KX), list(range(16, 23)), KADV)
        reads(kread(KY), list(range(24, 31)), KADV)
    elif kind == "P2":
        add(pre, 0, "s_waitcnt vmcnt(14) lgkmcnt(8)"); add(pre, 0, "s_barrier")
        reads(vread(VX), list(range(0, 7)), VADV); add(pre, 8, "s_waitcnt lgkmcnt(8)")
        reads(vread(VY), list(range(8, 15)), VADV); add(pre, 16, "s_waitcnt lgkmcnt(8)")
        reads(kread(KX), list(range(16, 23)), KADV); add(pre, 24, "s_waitcnt lgkmcnt(8)")
        reads(kread(KY), list(range(24, 31)), KADV)
    else:
        add(pre, 0, "s_waitcnt vmcnt(14) lgkmcnt(0)"); add(pre, 0, "s_barrier")
        add(pre, 0, vread(VX) + VADV); add(pre, 0, vread(VY))
        add(pre, 16, "s_waitcnt lgkmcnt(8)"); add(pre, 24, "s_waitcnt lgkmcnt(0)")
    if kind in ("PRO", "P1", "TR"):
        d = dma("K") + dma("V"); spread(fill, d, 6, 10)
    elif kind == "P2":
        spread(fill, dma("K") + dma("V"), 6, 10); spread(fill, dma("K") + dma("V"), 11, 17)
    if kind == "TR" and PREFETCH:
        add(fill, 12, ["buffer_load_dword v12, v10, s[48:51], 0 offen", "buffer_load_dword v13, v11, s[52:55], 0 offen"])
    used = {}
    for g in range(32): used[g] = 4 * nread.get(g, 0)
    A = sm_ops(SA, PA, lA); Bh = sm_ops(SB, PB, lBh); Bt = sm_ops(SB, PB, lBt)
    pa, pb, pt, bud = place3(A, Bh, Bt, used)
    if common.VERB: print("period", kind, masked, "budget", bud)
    if kind != "PRO":
        for g, ops in sorted(pt.items()):
            if kind != "FIN": add(fill, g, ops)
            else: add(pre, 0, ops)
    if hasQK:
        for g, ops in pa.items(): add(fill, g, ops)
        for g, ops in pb.items(): add(fill, g, ops)
    if masked:
        add(fill, 28, "s_add_u32 s29, s29, s33"); add(fill, 28, "s_add_u32 s30, s30, s33")
    state = {"prev": None}
    def E(p):
        if kind in ("P1", "P2", "TR"):
            if "noexp" in EXP and p.startswith("v_exp"): return
            if "noadd" in EXP and p.startswith("v_add_f32"): return
            if "nocvt" in EXP and p.startswith("v_cvt"): return
            if "nods" in EXP and p.startswith("ds_read"): return
            if "nodma" in EXP and p.startswith("buffer_load_dwordx4"): return
            if "nobar" in EXP and p.startswith("s_barrier"): return
            if "nomfma" in EXP and p.startswith("v_mfma"): return
        ins = Ins(p)
        pv_ = state["prev"]
        if pv_ is not None and pv_.kind == "trans" and ins.kind == "valu" and set(pv_.wr) & set(ins.rd): a.e("s_nop 0")
        a.e(p); state["prev"] = ins
    for i, m in enumerate(M):
        for p in pre.get(i, []): E(p)
        present = (hasQK if i < 16 else hasPV)
        if present:
            if masked and i in (0, 8):
                S = SA if i == 0 else SB; rel = "s29" if i == 0 else "s30"
                base = m.rsplit(",", 1)[0]
                l1, l2, lj = a.newlabel("K2T"), a.newlabel("K2N"), a.newlabel("K2J")
                a.e(f"s_cmp_lt_i32 {rel}, s20")
                a.raw(f"    s_cbranch_scc0 {l1}\n    {m}\n    s_branch {lj}\n{l1}:")
                a.raw(f"    s_cmp_eq_i32 {rel}, s20\n    s_cbranch_scc1 {l2}\n    {base}, v[{NEG}:{NEG+15}]\n    s_branch {lj}\n{l2}:")
                a.e(f"{base}, v[{TRI}:{TRI+15}]")
                a.label(lj)
                state["prev"] = None
            else:
                E(m)
        for p in fill.get(i, []): E(p)

def gen_k2(a, name="attn_kernel"):
    kernel_header(a, name)
    a.block("k2_pre")
    a.e("s_cmp_ge_u32 s2, 256")
    a.e("s_cbranch_scc1 K2_END")
    stamp(a, 0)
    a.e(f"s_load_dwordx2 s[36:37], s[0:1], {KA['ws']}")
    a.e(f"s_load_dwordx2 s[56:57], s[0:1], {KA['wo']}")
    a.e(f"s_load_dwordx2 s[58:59], s[0:1], {KA['wd']}")
    a.e("v_lshrrev_b32 v1, 6, v0")
    a.e("s_nop 0")
    a.e("v_readfirstlane_b32 s20, v1       ; wave")
    a.e("v_and_b32 v1, 63, v0              ; lane")
    a.e("s_and_b32 s38, s2, 7")
    a.e("s_lshr_b32 s39, s2, 3")
    a.e("s_and_b32 s21, s39, 7             ; i")
    a.e("s_lshr_b32 s39, s39, 3")
    a.e("s_lshl_b32 s38, s38, 2")
    a.e("s_add_u32 s38, s38, s39           ; head")
    a.e("s_lshl_b32 s22, s21, 2")
    a.e("s_add_u32 s22, s22, 4             ; n1 = 4(i+1)")
    a.e("s_lshl_b32 s23, s21, 2")
    a.e("s_sub_u32 s23, 64, s23            ; nL = 4(16-i)")
    a.e("s_lshl_b32 s39, s38, 19           ; head*512K")
    a.e(f"v_lshlrev_b32 v{VLANE}, 4, v1")
    a.e("s_waitcnt lgkmcnt(0)")
    for srdn, reg in ((4, KF), (8, VF), (12, QF)):
        a.e(f"s_add_u32 s40, s39, {reg}")
        a.e(f"s_add_u32 s{srdn}, s36, s40")
        a.e(f"s_addc_u32 s{srdn+1}, s37, 0")
        a.e(f"s_and_b32 s{srdn+1}, s{srdn+1}, 0xffff")
        if srdn == 12: a.e(f"s_mov_b32 s{srdn+2}, 0x80000")
        else: a.e(f"s_lshl_b32 s{srdn+2}, s23, 13")
        a.e(f"s_mov_b32 s{srdn+3}, 0x20000")
    a.e(f"s_add_u32 s16, s36, {CF}")
    a.e("s_addc_u32 s17, s37, 0")
    a.e("s_and_b32 s17, s17, 0xffff")
    a.e("s_mov_b32 s18, 0x1000000")
    a.e("s_mov_b32 s19, 0x20000")
    srd(a, "s56", "s57", 0x400000, 48)
    srd(a, "s58", "s59", 1376 * 1024, 52)
    a.e("s_lshl_b32 s46, s2, 2")
    a.e("s_add_u32 s46, s46, s20")
    a.e("s_lshl_b32 s47, s46, 12")
    a.e("v_lshl_add_u32 v10, v1, 6, s47")
    a.e("v_and_b32 v11, 31, v1")
    a.e("s_lshl_b32 s47, s46, 11")
    a.e("v_lshl_add_u32 v11, v11, 6, s47")
    a.e("s_sub_u32 s40, 15, s21")
    a.e("s_lshl_b32 s40, s40, 2")
    a.e("s_add_u32 s40, s40, s20           ; qtile L")
    a.e("s_lshl_b32 s41, s21, 2")
    a.e("s_add_u32 s41, s41, s20           ; qtile S")
    a.e("s_lshl_b32 s42, s40, 13")
    a.e("s_lshl_b32 s43, s41, 13")
    a.e("s_add_u32 s44, s42, 0x1000")
    a.e("s_add_u32 s45, s43, 0x1000")
    for s in range(8):
        a.e(f"buffer_load_dwordx4 {A4(QL+4*s)}, v{VLANE}, s[12:15], {'s42' if s < 4 else 's44'} offen offset:{(s & 3)*1024}")
    for s in range(8):
        a.e(f"buffer_load_dwordx4 {A4(QS+4*s)}, v{VLANE}, s[12:15], {'s43' if s < 4 else 's45'} offen offset:{(s & 3)*1024}")
    a.e("s_lshl_b32 s27, s20, 11           ; K m0 base = w*2048")
    a.e("s_or_b32 s28, s27, 0x10000        ; V m0 base")
    a.e("s_mov_b32 s25, s27")
    a.e("s_mov_b32 s26, s27")
    a.e("s_mov_b32 s31, 0xffff")
    for kind in "KKKKVKVKVKVKV":
        d = dma(kind)
        a.e(d[0]); a.e(d[1])
        for o in d[2:]: a.e(o)
    a.e(f"v_mov_b32 v{VK}, v{VLANE}")
    a.e(f"v_or_b32 v{VV}, 0x10000, v{VLANE}")
    for r in range(OL, OL + 128): a.e(f"v_mov_b32 v{r}, 0")
    for r in range(LL, LL + 4): a.e(f"v_mov_b32 v{r}, 0")
    a.e("v_and_b32 v6, 31, v1")
    a.e("v_lshrrev_b32 v7, 5, v1")
    a.e("v_lshlrev_b32 v7, 2, v7")
    a.e("v_sub_u32 v6, v6, v7              ; q - 4h")
    a.e("v_mov_b32 v7, 0xf149f2ca          ; -1e30")
    for r in range(16):
        i, j = r >> 2, r & 3
        key = 16 * (i & 1) + 8 * (i >> 1) + j
        a.e(f"v_cmp_le_i32 vcc, {key}, v6")
        a.e(f"v_mov_b32 v{NEG+r}, v7")
        a.e("s_nop 0")
        a.e(f"v_cndmask_b32 v{TRI+r}, v7, 0, vcc" .replace("v7, 0, vcc", "v7, v8, vcc") if False else f"v_cndmask_b32 v{TRI+r}, v7, v{LL}, vcc")
    a.e("s_sub_u32 s29, 4, s23")
    a.e("s_sub_u32 s30, 4, s22")
    a.e("s_mov_b32 s33, 1")
    a.e("s_waitcnt vmcnt(24)")
    a.e("s_barrier")
    for o in kread(KX): a.e(o)
    for o in KADV: a.e(o)
    a.e("s_waitcnt lgkmcnt(0)")
    stamp(a, 1)
    stamp(a, 4, True)
    a.block("k2_PRO"); period(a, "PRO", True)
    a.block("k2_c1")
    a.e("s_sub_u32 s24, s22, 5")
    a.e("s_cmp_gt_i32 s24, 0")
    a.e("s_cbranch_scc0 K2_P1M_PRE")
    a.e("s_add_u32 s29, s29, s24")
    a.e("s_add_u32 s30, s30, s24")
    a.raw(".p2align 6")
    a.label("K2_P1U")
    a.block("k2_P1U"); period(a, "P1", False)
    a.e("s_sub_u32 s24, s24, 1")
    a.e("s_cmp_lg_u32 s24, 0")
    a.e("s_cbranch_scc1 K2_P1U")
    a.block("k2_c2")
    a.label("K2_P1M_PRE")
    a.e("s_sub_u32 s24, s22, 1")
    a.e("s_min_u32 s24, s24, 4")
    a.raw(".p2align 6")
    a.label("K2_P1M")
    a.block("k2_P1M"); period(a, "P1", True)
    a.e("s_sub_u32 s24, s24, 1")
    a.e("s_cmp_lg_u32 s24, 0")
    a.e("s_cbranch_scc1 K2_P1M")
    a.block("k2_c3")
    a.e("s_add_u32 s30, s29, 1")
    a.e("s_mov_b32 s33, 1")
    a.block("k2_TR"); period(a, "TR", True)
    a.block("k2_c4")
    a.e("s_add_u32 s29, s29, 1")
    a.e("s_add_u32 s30, s30, 1")
    a.e("s_mov_b32 s33, 2")
    a.e("s_sub_u32 s24, s23, s22")
    a.e("s_lshr_b32 s24, s24, 1")
    a.e("s_sub_u32 s24, s24, 3")
    a.e("s_cmp_gt_i32 s24, 0")
    a.e("s_cbranch_scc0 K2_P2M_PRE")
    a.e("s_lshl_b32 s34, s24, 1")
    a.e("s_add_u32 s29, s29, s34")
    a.e("s_add_u32 s30, s30, s34")
    a.raw(".p2align 6")
    a.label("K2_P2U")
    a.block("k2_P2U"); period(a, "P2", False)
    a.e("s_sub_u32 s24, s24, 1")
    a.e("s_cmp_lg_u32 s24, 0")
    a.e("s_cbranch_scc1 K2_P2U")
    a.block("k2_c5")
    a.label("K2_P2M_PRE")
    a.e("s_sub_u32 s24, s23, s22")
    a.e("s_lshr_b32 s24, s24, 1")
    a.e("s_sub_u32 s24, s24, 1")
    a.e("s_min_u32 s24, s24, 2")
    a.raw(".p2align 6")
    a.label("K2_P2M")
    a.block("k2_P2M"); period(a, "P2", True)
    a.e("s_sub_u32 s24, s24, 1")
    a.e("s_cmp_lg_u32 s24, 0")
    a.e("s_cbranch_scc1 K2_P2M")
    a.block("k2_FIN"); period(a, "FIN", False)
    a.block("k2_epi")
    stamp(a, 2)
    stamp(a, 5, True)
    a.e("v_and_b32 v6, 31, v1              ; q")
    a.e("v_lshrrev_b32 v7, 5, v1           ; hh")
    a.e("v_lshrrev_b32 v8, 4, v6")
    a.e("v_lshlrev_b32 v8, 17, v8          ; (q>>4)*131072")
    a.e("v_lshl_add_u32 v8, v7, 8, v8")
    a.e("v_and_b32 v9, 15, v6")
    a.e("v_lshl_add_u32 v8, v9, 4, v8")
    a.e("s_lshl_b32 s44, s38, 12           ; head*4*1024")
    for (O, L, qt) in ((OS, LS, "s41"), (OL, LL, "s40")):
        a.e(f"s_lshl_b32 s45, {qt}, 18       ; qtile*2*128*1024")
        a.e("s_add_u32 s45, s45, s44")
        a.e(f"v_add_f32 v{L}, v{L}, v{L+1}")
        a.e(f"v_mov_b32 v10, v{L}")
        a.e("s_nop 1")
        a.e(f"v_permlane32_swap_b32 v{L}, v10")
        a.e("s_nop 1")
        a.e(f"v_add_f32 v{L}, v{L}, v10")
        a.e(f"v_rcp_f32 v11, v{L}")
        a.e("s_nop 0")
        for T in range(4):
            for c in range(2):
                q = 16 + 4 * ((2 * T + c) % 4)
                for h, i in enumerate((c, c + 2)):
                    b = O + 16 * T + 4 * i
                    for j in range(4): a.e(f"v_mul_f32 v{b+j}, v{b+j}, v11")
                    a.e(f"v_cvt_pk_bf16_f32 v{q+2*h}, v{b}, v{b+1}")
                    a.e(f"v_cvt_pk_bf16_f32 v{q+2*h+1}, v{b+2}, v{b+3}")
                a.e(f"buffer_store_dwordx4 v[{q}:{q+3}], v8, s[16:19], s45 offen offset:{T*1024 + c*512}{CSTFLAG}")
    if common.DIAG:
        a.e("s_waitcnt vmcnt(0)")
        stamp(a, 3)
        stamp_flush(a, 2, 6)
    a.e("s_endpgm")
    a.cur = None
    a.label("K2_END")
    a.e("s_endpgm")
    return kernel_desc(name, 512, 96, 256)

def check_k2(a):
    B = a.blocks
    tr = B["k2_pre"] + B["k2_PRO"] + B["k2_c1"] + B["k2_P1U"] * 2 + B["k2_c2"] + B["k2_P1M"] * 2 + B["k2_c3"] + B["k2_TR"] + B["k2_c4"] + B["k2_P2U"] * 2 + B["k2_c5"] + B["k2_P2M"] * 2 + B["k2_FIN"] + B["k2_epi"]
    p = check_trace(tr, "k2a")
    tr = B["k2_pre"] + B["k2_PRO"] + B["k2_c1"] + B["k2_c2"] + B["k2_P1M"] * 3 + B["k2_c3"] + B["k2_TR"] + B["k2_c4"] + B["k2_c5"] + B["k2_P2M"] + B["k2_FIN"] + B["k2_epi"]
    return p + check_trace(tr, "k2b")
```

```python
from common import *
import common, os
EXP = os.environ.get('K3EXP', '')
D = 7
NS = 43
ACC = 160
VOA, VOH = 8, 12
XR = 24
REG = 17408
OSTFLAG = ""

def gen_k3(a, name="outp_kernel"):
    kernel_header(a, name)
    a.block("k3")
    a.e("s_cmp_ge_u32 s2, 256")
    a.e("s_cbranch_scc1 K3_END")
    stamp(a, 0)
    a.e(f"s_load_dwordx2 s[36:37], s[0:1], {KA['ws']}")
    a.e(f"s_load_dwordx2 s[42:43], s[0:1], {KA['x']}")
    a.e(f"s_load_dwordx2 s[44:45], s[0:1], {KA['out']}")
    a.e("v_lshrrev_b32 v1, 6, v0")
    a.e("s_nop 0")
    a.e("v_readfirstlane_b32 s20, v1       ; wave")
    a.e("v_and_b32 v1, 63, v0              ; lane")
    a.e("s_and_b32 s46, s2, 7")
    a.e("s_lshr_b32 s47, s2, 3")
    a.e("s_and_b32 s21, s47, 7             ; N tile")
    if "perm" in EXP: a.e("s_xor_b32 s21, s21, 1")
    a.e("s_lshr_b32 s47, s47, 3")
    a.e("s_lshl_b32 s46, s46, 2")
    a.e("s_add_u32 s22, s46, s47")
    a.e("v_lshlrev_b32 v2, 4, v1           ; lane*16")
    for tt in range(4):
        a.e(f"v_add_u32 v{VOA+tt}, {tt*131072}, v2")
        a.e(f"v_add_u32 v{VOH+tt}, {tt*44032}, v2")
    a.e(f"s_mul_i32 s23, s20, {REG}")
    a.e("s_waitcnt lgkmcnt(0)")
    a.e(f"s_add_u32 s4, s36, {CF}"); a.e("s_addc_u32 s5, s37, 0"); a.e("s_and_b32 s5, s5, 0xffff"); a.e("s_mov_b32 s6, 0x1000000"); a.e("s_mov_b32 s7, 0x20000")
    a.e(f"s_add_u32 s8, s36, {HF}"); a.e("s_addc_u32 s9, s37, 0"); a.e("s_and_b32 s9, s9, 0xffff"); a.e(f"s_mov_b32 s10, {128*43*1024}"); a.e("s_mov_b32 s11, 0x20000")
    a.e(f"s_mul_i32 s58, s21, {172*4096}")
    a.e(f"s_add_u32 s58, s58, {WF}")
    a.e("s_add_u32 s12, s36, s58"); a.e("s_addc_u32 s13, s37, 0"); a.e("s_and_b32 s13, s13, 0xffff"); a.e(f"s_mov_b32 s14, {171*4096}"); a.e("s_mov_b32 s15, 0x20000")
    srd(a, "s42", "s43", 0x200000, 48)
    srd(a, "s44", "s45", 0x200000, 52)
    a.e("v_lshrrev_b32 v3, 2, v0")
    a.e("v_lshlrev_b32 v21, 10, v3")
    a.e("v_and_b32 v3, 3, v0")
    a.e("v_lshl_add_u32 v21, v3, 5, v21")
    a.e("s_lshl_b32 s56, s22, 16")
    a.e("s_lshl_b32 s57, s21, 7")
    a.e("s_add_u32 s56, s56, s57")
    a.e(f"buffer_load_dwordx4 v[{XR}:{XR+3}], v21, s[48:51], s56 offen")
    a.e(f"buffer_load_dwordx4 v[{XR+4}:{XR+7}], v21, s[48:51], s56 offen offset:16")
    a.e("s_lshl_b32 s24, s22, 19           ; 4M*128*1024")
    a.e("s_lshl_b32 s58, s20, 15")
    a.e("s_add_u32 s24, s24, s58")
    a.e(f"s_mul_i32 s25, s22, {4*43*1024}")
    a.e(f"s_mul_i32 s58, s20, {11*1024}")
    a.e("s_add_u32 s25, s25, s58")
    a.e("s_lshl_b32 s26, s20, 17")
    a.e(f"s_mul_i32 s27, s20, {11*4096}")
    a.e(f"s_add_u32 s27, s27, {128*4096}")
    queue = ["x", "x"]
    def issue_parts(u):
        isA = u < 32
        sX = "s24" if isA else "s25"; sW = "s26" if isA else "s27"
        srdX = "s[4:7]" if isA else "s[8:11]"
        vo = VOA if isA else VOH
        b0 = 32 * (u % D)
        wl = [f"buffer_load_dwordx4 a[{b0+4*mt}:{b0+4*mt+3}], v2, s[12:15], {sW} offen offset:{mt*1024}" for mt in range(4)]
        xl = [f"buffer_load_dwordx4 a[{b0+16+4*tt}:{b0+16+4*tt+3}], v{vo+tt}, {srdX}, {sX} offen" for tt in range(4)]
        adv = [f"s_add_u32 {sX}, {sX}, 1024", f"s_add_u32 {sW}, {sW}, 4096"]
        return wl, xl, adv
    for u in range(D):
        wl, xl, adv = issue_parts(u)
        for o in wl + xl + adv: a.e(o)
        queue += [u] * 8
    def wait_for(u):
        nonlocal queue
        last = max(i for i, q in enumerate(queue) if q == u)
        n = len(queue) - 1 - last
        queue = queue[last + 1:]
        return f"s_waitcnt vmcnt({n})"
    for u in range(NS):
        fill = {}
        a.e(wait_for(u))
        if u == 0: stamp(a, 1)
        if u + D < NS:
            wl, xl, adv = issue_parts(u + D)
            for tt in range(4): fill.setdefault(4 * tt + 3, []).append(xl[tt])
            for mt in range(4): fill.setdefault(12 + mt, []).append(wl[mt])
            fill.setdefault(15, []).extend(adv)
            queue += [u + D] * 8
        n = 0
        b0 = 32 * (u % D)
        for tt in range(4):
            for mt in range(4):
                d = ACC + 4 * (4 * mt + tt)
                cin = "0" if u == 0 else f"v[{d}:{d+3}]"
                a.e(f"v_mfma_f32_16x16x32_bf16 v[{d}:{d+3}], a[{b0+4*mt}:{b0+4*mt+3}], a[{b0+16+4*tt}:{b0+16+4*tt+3}], {cin}")
                for o in fill.get(n, []): a.e(o)
                n += 1
    stamp(a, 2)
    a.e("v_and_b32 v3, 15, v1")
    a.e("v_mul_u32_u24 v3, 272, v3")
    a.e("v_lshrrev_b32 v4, 4, v1")
    a.e("v_lshl_add_u32 v3, v4, 4, v3")
    a.e("v_add_u32 v3, s23, v3")
    a.e("s_nop 7")
    for tt in range(4):
        for mt in range(4):
            d = ACC + 4 * (4 * mt + tt)
            a.e(f"ds_write_b128 v3, v[{d}:{d+3}] offset:{tt*16*272 + mt*64}")
    a.e("v_lshrrev_b32 v3, 2, v0")
    a.e("v_mul_u32_u24 v3, 272, v3")
    a.e("v_and_b32 v4, 3, v0")
    a.e("v_lshl_add_u32 v3, v4, 6, v3")
    for w in range(4):
        if w: a.e(f"v_add_u32 v{3+w}, {w*REG}, v3")
    a.e("s_waitcnt lgkmcnt(0)")
    a.e("s_barrier")
    R = 64
    for w in range(4):
        for k in range(4):
            b = R + 16 * w + 4 * k
            a.e(f"ds_read_b128 v[{b}:{b+3}], v{3+w} offset:{k*16}")
    for k in range(8):
        a.e(f"v_lshlrev_b32 v{128+2*k}, 16, v{XR+k}")
        a.e(f"v_and_b32 v{128+2*k+1}, 0xffff0000, v{XR+k}")
    a.e("s_waitcnt lgkmcnt(0)")
    for k in range(16):
        a.e(f"v_add_f32 v{R+k}, v{R+k}, v{R+16+k}")
        a.e(f"v_add_f32 v{R+32+k}, v{R+32+k}, v{R+48+k}")
    for k in range(16):
        a.e(f"v_add_f32 v{R+k}, v{R+k}, v{R+32+k}")
    for k in range(16):
        a.e(f"v_add_f32 v{R+k}, v{R+k}, v{128+k}")
    for k in range(8):
        a.e(f"v_cvt_pk_bf16_f32 v{144+k}, v{R+2*k}, v{R+2*k+1}")
    a.e(f"buffer_store_dwordx4 v[144:147], v21, s[52:55], s56 offen{OSTFLAG}")
    a.e(f"buffer_store_dwordx4 v[148:151], v21, s[52:55], s56 offen offset:16{OSTFLAG}")
    if common.DIAG:
        a.e("s_waitcnt vmcnt(0)")
        stamp(a, 3)
        stamp_flush(a, 3, 4)
    a.e("s_endpgm")
    a.cur = None
    a.label("K3_END")
    a.e("s_endpgm")
    return kernel_desc(name, 512, 96, 256)

def check_k3(a):
    return check_trace(a.blocks["k3"], "k3")
```

```python
from common import *
import common
import os
K0PF = os.environ.get('K0PF', '1')
PREFETCH = K0PF != '0'
def ln_rows(a, rows, vx, vt, sbase):
    n = rows
    F = lambda r, i: vt + 20 * r + i
    T = lambda r, i: vt + 20 * r + 8 + i
    for r in range(n):
        for i in range(4):
            a.e(f"v_lshlrev_b32 v{F(r,2*i)}, 16, v{vx+4*r+i}")
            a.e(f"v_and_b32 v{F(r,2*i+1)}, 0xffff0000, v{vx+4*r+i}")
    def reduce(src_is, dst):
        for sh in (8, 4, 2, 1):
            for r in range(n):
                a.e(f"s_nop 1")
                a.e(f"v_add_f32_dpp v{T(r,dst)}, v{T(r,dst)}, v{T(r,dst)} row_ror:{sh} row_mask:0xf bank_mask:0xf")
        a.e("s_nop 1")
        for r in range(n):
            for k in range(4):
                a.e(f"v_readlane_b32 s{sbase+4*r+k}, v{T(r,dst)}, {16*k}")
        a.e("s_nop 1")
        for r in range(n):
            a.e(f"v_mov_b32 v{T(r,dst)}, s{sbase+4*r}")
            a.e(f"v_add_f32 v{T(r,dst)}, s{sbase+4*r+1}, v{T(r,dst)}")
            a.e(f"v_add_f32 v{T(r,dst)}, s{sbase+4*r+2}, v{T(r,dst)}")
            a.e(f"v_add_f32 v{T(r,dst)}, s{sbase+4*r+3}, v{T(r,dst)}")
    for r in range(n):
        a.e(f"v_add_f32 v{T(r,0)}, v{F(r,0)}, v{F(r,1)}")
        for i in range(2, 8): a.e(f"v_add_f32 v{T(r,0)}, v{T(r,0)}, v{F(r,i)}")
    reduce(None, 0)
    for r in range(n):
        a.e(f"v_mul_f32 v{T(r,0)}, 0x3b000000, v{T(r,0)}")
    for r in range(n):
        a.e(f"v_sub_f32 v{T(r,2)}, v{F(r,0)}, v{T(r,0)}")
        a.e(f"v_mul_f32 v{T(r,1)}, v{T(r,2)}, v{T(r,2)}")
        for i in range(1, 8):
            a.e(f"v_sub_f32 v{T(r,2)}, v{F(r,i)}, v{T(r,0)}")
            a.e(f"v_fmac_f32 v{T(r,1)}, v{T(r,2)}, v{T(r,2)}")
    reduce(None, 1)
    for r in range(n):
        a.e(f"v_mul_f32 v{T(r,1)}, 0x3b000000, v{T(r,1)}")
        a.e(f"v_cvt_pk_bf16_f32 v{T(r,2)}, v{T(r,0)}, v{T(r,1)}")
        a.e(f"v_and_b32 v{T(r,1)}, 0xffff0000, v{T(r,2)}")
        a.e(f"v_lshlrev_b32 v{T(r,0)}, 16, v{T(r,2)}")
        a.e(f"v_add_f32 v{T(r,1)}, 0x3727c5ac, v{T(r,1)}")
        a.e(f"v_cvt_pk_bf16_f32 v{T(r,1)}, v{T(r,1)}, v{T(r,1)}")
        a.e(f"v_and_b32 v{T(r,1)}, 0xffff0000, v{T(r,1)}")
        a.e(f"v_sqrt_f32 v{T(r,1)}, v{T(r,1)}")
        a.e("s_nop 0")
        a.e(f"v_cvt_pk_bf16_f32 v{T(r,1)}, v{T(r,1)}, v{T(r,1)}")
        a.e(f"v_and_b32 v{T(r,1)}, 0xffff0000, v{T(r,1)}")
        a.e(f"v_rcp_f32 v{T(r,1)}, v{T(r,1)}")
        a.e("s_nop 0")
        for i in range(4):
            a.e(f"v_sub_f32 v{F(r,2*i)}, v{F(r,2*i)}, v{T(r,0)}")
            a.e(f"v_sub_f32 v{F(r,2*i+1)}, v{F(r,2*i+1)}, v{T(r,0)}")
            a.e(f"v_cvt_pk_bf16_f32 v{T(r,2)}, v{F(r,2*i)}, v{F(r,2*i+1)}")
            a.e(f"v_lshlrev_b32 v{F(r,2*i)}, 16, v{T(r,2)}")
            a.e(f"v_and_b32 v{F(r,2*i+1)}, 0xffff0000, v{T(r,2)}")
            a.e(f"v_mul_f32 v{F(r,2*i)}, v{F(r,2*i)}, v{T(r,1)}")
            a.e(f"v_mul_f32 v{F(r,2*i+1)}, v{F(r,2*i+1)}, v{T(r,1)}")
            a.e(f"v_cvt_pk_bf16_f32 v{vx+4*r+i}, v{F(r,2*i)}, v{F(r,2*i+1)}")

def gen_k0(a, name="ln_kernel"):
    kernel_header(a, name)
    a.block("k0")
    a.e("s_cmp_ge_u32 s2, 256")
    a.e("s_cbranch_scc1 K0_END")
    stamp(a, 0)
    a.e(f"s_load_dwordx2 s[4:5], s[0:1], {KA['x']}")
    a.e(f"s_load_dwordx2 s[6:7], s[0:1], {KA['ws']}")
    if PREFETCH:
        a.e(f"s_load_dwordx2 s[24:25], s[0:1], {KA['ckv']}")
        a.e(f"s_load_dwordx2 s[26:27], s[0:1], {KA['wuk']}")
        a.e(f"s_load_dwordx2 s[28:29], s[0:1], {KA['wuv']}")
        a.e(f"s_load_dwordx2 s[30:31], s[0:1], {KA['wq']}")
        a.e(f"s_load_dwordx4 s[32:35], s[0:1], {KA['wg']}")
    a.e("v_lshrrev_b32 v3, 6, v0")
    a.e("v_lshrrev_b32 v1, 6, v0")
    a.e("v_and_b32 v2, 63, v0")
    a.e("v_lshlrev_b32 v1, 11, v1")
    a.e("v_lshl_add_u32 v1, v2, 4, v1")
    a.e("s_lshl_b32 s3, s2, 13")
    a.e("s_waitcnt lgkmcnt(0)")
    srd(a, "s4", "s5", 0x200000, 8)
    srd(a, "s6", "s7", 0x200000, 12)
    a.e("buffer_load_dwordx4 v[4:7], v1, s[8:11], s3 offen")
    a.e("buffer_load_dwordx4 v[8:11], v1, s[8:11], s3 offen offset:1024")
    npf = 0
    if PREFETCH:
        a.e("s_lshl_b32 s40, s2, 2")
        a.e("v_readfirstlane_b32 s41, v3")
        a.e("s_add_u32 s40, s40, s41")
        a.e("v_lshlrev_b32 v60, 6, v2          ; lane*64")
        lst = ((24, 0x200000), (26, 0x400000), (28, 0x400000), (30, 0x400000), (32, 512*2752), (34, 512*2752))
        if K0PF == "c": lst = lst[:1]
        if K0PF == "h": lst = ((24, 0x200000), (26, 0x200000), (28, 0x200000), (30, 0x200000), (32, 256*2752), (34, 256*2752))
        if K0PF == "t": lst = ((24, 0x200000), (26, 0x300000), (28, 0x300000), (30, 0x300000), (32, 384*2752), (34, 384*2752))
        for (lo, size) in lst:
            a.e(f"s_mov_b32 s44, s{lo}"); a.e(f"s_and_b32 s45, s{lo+1}, 0xffff"); a.e(f"s_mov_b32 s46, {size}"); a.e("s_mov_b32 s47, 0x20000")
            if size > 0x200000:
                a.e("s_lshl_b32 s42, s40, 12")
                a.e(f"buffer_load_dword v{54+npf}, v60, s[44:47], s42 offen"); npf += 1
            else:
                a.e("s_lshl_b32 s42, s40, 11")
                a.e("v_and_b32 v62, 0x7ff, v60")
                a.e(f"buffer_load_dword v{54+npf}, v62, s[44:47], s42 offen"); npf += 1
    a.e(f"s_waitcnt vmcnt({npf})")
    ln_rows(a, 2, 4, 16, 48)
    a.e("buffer_store_dwordx4 v[4:7], v1, s[12:15], s3 offen")
    a.e("buffer_store_dwordx4 v[8:11], v1, s[12:15], s3 offen offset:1024")
    if common.DIAG:
        stamp(a, 1)
        stamp_flush(a, 0, 2)
        a.e("s_endpgm")
    a.label("K0_END")
    a.e("s_endpgm")
    return kernel_desc(name, 256 if common.DIAG else 64, 96 if common.DIAG else 64, 256 if common.DIAG else 64)
```

```python
from common import *
import common, os
from k0 import ln_rows
ST_FLAG = ""
FUSE_LN = False
XB = 16
ACC = [48, 64]
TMP = 80

def cvt(dst, s0, s1): return f"v_cvt_pk_bf16_f32 v{dst}, v{s0}, v{s1}"
def make_epi(typ, stflag, acc, tt, soff):
    def st(q, soff, off): return f"buffer_store_dwordx4 v[{q}:{q+3}], v8, s[16:19], {soff} offen offset:{off}{stflag}"
    ops = []
    if typ in "KQ":
        for pr in range(2):
            q = TMP + 8 * tt + 4 * pr
            if typ == "Q":
                for c in (2 * pr, 2 * pr + 1):
                    for j in range(4): ops.append(f"v_mul_f32 v{acc(tt,c)+j}, s30, v{acc(tt,c)+j}")
            for h, c in enumerate((2 * pr, 2 * pr + 1)):
                ops.append(cvt(q + 2 * h, acc(tt, c), acc(tt, c) + 1))
                ops.append(cvt(q + 2 * h + 1, acc(tt, c) + 2, acc(tt, c) + 3))
            off = pr * 2048 + tt * (128 if typ == "K" else 256)
            ops.append(st(q, soff, off))
    elif typ == "V":
        for c in range(4):
            q = TMP + 4 * c
            ops.append(cvt(q + 2 * tt, acc(tt, c), acc(tt, c) + 1))
            ops.append(cvt(q + 2 * tt + 1, acc(tt, c) + 2, acc(tt, c) + 3))
            if tt == 1:
                ops.append(st(q, soff, (c & 1) * 256 + (c >> 1) * 2048))
    else:
        T = TMP + 16
        groups = [[(c, j) for j in range(4)] for c in range(2)]
        for grp in groups:
            for n, (c, j) in enumerate(grp): ops.append(f"v_mul_f32 v{T+n}, s31, v{acc(tt,c)+j}")
            for n, (c, j) in enumerate(grp): ops.append(f"v_exp_f32 v{T+n}, v{T+n}")
            for n, (c, j) in enumerate(grp): ops.append(f"v_add_f32 v{T+n}, 1.0, v{T+n}")
            for n, (c, j) in enumerate(grp): ops.append(f"v_rcp_f32 v{T+n}, v{T+n}")
            for n, (c, j) in enumerate(grp): ops.append(f"v_mul_f32 v{acc(tt,c)+j}, v{acc(tt,c)+j}, v{acc(tt,c+2)+j}")
            for n, (c, j) in enumerate(grp): ops.append(f"v_mul_f32 v{acc(tt,c)+j}, v{acc(tt,c)+j}, v{T+n}")
            c = grp[0][0]
            q = TMP + 4 * tt
            ops.append(cvt(q + 2 * c, acc(tt, c), acc(tt, c) + 1))
            ops.append(cvt(q + 2 * c + 1, acc(tt, c) + 2, acc(tt, c) + 3))
        ops.append(st(TMP + 4 * tt, soff, 0))
    return ops

def k1_period(a, typ, stflag):
    fill = {}
    def acc(tt, c): return ACC[tt] + 4 * c
    mf = []
    for tt in range(2):
        for ks in range(16):
            f = tt * 16 + ks
            xb = XB + 4 * (f % 4)
            for c in range(4):
                w = 16 * ks + 4 * c
                d = acc(tt, c)
                cin = "0" if ks == 0 else f"v[{d}:{d+3}]"
                if typ == "V":
                    mf.append(f"v_mfma_f32_16x16x32_bf16 v[{d}:{d+3}], v[{xb}:{xb+3}], a[{w}:{w+3}], {cin}")
                else:
                    mf.append(f"v_mfma_f32_16x16x32_bf16 v[{d}:{d+3}], a[{w}:{w+3}], v[{xb}:{xb+3}], {cin}")
    pre = {}
    for f in range(3, 35):
        ff = f % 32
        tt, ks = ff // 16, ff % 16
        xb = XB + 4 * (f % 4)
        base = "v3" if ks % 2 == 0 else "v4"
        off = (ks >> 1) * 4096 + tt * 2048
        idx = 4 * (f - 3)
        rd = f"ds_read_b128 v[{xb}:{xb+3}], {base} offset:{off}"
        if f == 32:
            fill.setdefault(idx - 3, []).append("v_add_u32 v3, 0x8000, v3")
            fill.setdefault(idx - 2, []).append("v_and_b32 v3, 0x1ffff, v3")
            fill.setdefault(idx - 1, []).append("v_xor_b32 v4, 64, v3")
        fill.setdefault(idx, []).append(rd)
    for f in range(32):
        pre.setdefault(4 * f, []).append("s_waitcnt lgkmcnt(2)")
    epi = lambda tt, soff: make_epi(typ, stflag, acc, tt, soff)
    e1 = epi(1, "s27" if typ != "G" else "s29")
    e0 = epi(0, "s25")
    spread(fill, e1, 3, 58)
    dma = []
    for slab in range(8):
        m0 = "s_mov_b32 m0, s26" if slab == 0 else "s_add_u32 m0, m0, 3968"
        dma.append((m0, f"buffer_load_dwordx4 v2, s[4:7], s24 offen offset:{slab*128} lds"))
    spread(fill, e0, 67, 104)
    for n, (m0, ld) in enumerate(dma):
        g = 106 + 2 * n
        fill.setdefault(g, []).append(m0)
        fill.setdefault(g + 1, []).append(ld)
    book = ["s_add_u32 s24, s24, 0x8000", "s_add_u32 s26, s26, 0x8000", "s_and_b32 s26, s26, 0x1ffff"]
    if typ == "G":
        book += ["s_add_u32 s29, s25, 44032", "s_add_u32 s25, s25, 88064"]
    else:
        book += ["s_mov_b32 s27, s25", "s_add_u32 s25, s25, 8192"]
    fill.setdefault(124, []).extend(book[:3]); fill.setdefault(125, []).extend(book[3:])
    nst1 = sum(1 for o in e1 if o.startswith("buffer_store")); nst0 = sum(1 for o in e0 if o.startswith("buffer_store"))
    N = nst1 + nst0 + 8 + nst1
    pre.setdefault(64, []).insert(0, f"s_waitcnt vmcnt({N})")
    pre[64].insert(1, "s_barrier")
    for i, m in enumerate(mf):
        for p in pre.get(i, []): a.e(p)
        a.e(m)
        for p in fill.get(i, []): a.e(p)
    return e1

def ln_finish(a):
    ln_rows(a, 2, 100, 108, 44)
    a.e(f"s_add_u32 s68, s52, {XN}")
    a.e("s_addc_u32 s69, s53, 0")
    a.e("s_and_b32 s69, s69, 0xffff")
    a.e("buffer_store_dwordx4 v[100:103], v99, s[68:71], s33 offen sc1")
    a.e("buffer_store_dwordx4 v[104:107], v99, s[68:71], s33 offen offset:1024 sc1")
    a.e("s_waitcnt vmcnt(0)")
    a.e("s_barrier")
    l = a.newlabel("K1_SIG")
    a.e("s_cmp_lg_u32 s20, 0")
    a.e(f"s_cbranch_scc1 {l}")
    a.e("s_lshr_b32 s32, s2, 4")
    a.e("s_lshl_b32 s32, s32, 4")
    a.e("v_mov_b32 v98, s32")
    a.e("v_mov_b32 v97, 1")
    a.e("s_mov_b64 exec, 1")
    a.e("global_atomic_add v98, v97, s[34:35] sc1")
    a.e("s_mov_b64 exec, -1")
    a.label(l)

def poll_xn(a):
    a.e("v_and_b32 v98, 3, v1")
    a.e("s_lshl_b32 s32, s56, 2")
    a.e("v_add_u32 v98, s32, v98")
    a.e("v_lshlrev_b32 v98, 4, v98")
    l = a.newlabel("K1_POLL")
    a.label(l)
    a.e("global_load_dword v97, v98, s[34:35] sc1")
    a.e("s_waitcnt vmcnt(0)")
    a.e("v_cmp_ne_u32 vcc, 16, v97")
    a.e("s_nop 4")
    a.e(f"s_cbranch_vccnz {l}")

def gen_aux(a):
    a.block("k1_aux")
    a.label("K1_AUX")
    if FUSE_LN:
        a.e("s_waitcnt vmcnt(0)")
        ln_finish(a)
    a.e(f"s_load_dwordx2 s[40:41], s[0:1], {KA['wo']}")
    a.e(f"s_load_dwordx2 s[42:43], s[0:1], {KA['wd']}")
    a.e("s_sub_u32 s57, s54, 4")
    a.e("s_lshl_b32 s57, s57, 2")
    a.e("s_cmp_eq_u32 s55, 7")
    a.e("s_cselect_b32 s57, s57, 16")
    a.e("s_add_u32 s57, s57, s56")
    a.e("s_lshl_b32 s57, s57, 2")
    a.e("s_add_u32 s57, s57, s20")
    a.e(f"s_mul_i32 s58, s20, 40960")
    a.e("s_waitcnt lgkmcnt(0)")
    srd(a, "s40", "s41", 0x400000, 4)
    srd(a, "s42", "s43", 1376 * 1024, 8)
    a.e(f"s_add_u32 s16, s52, {WF}"); a.e("s_addc_u32 s17, s53, 0"); a.e("s_and_b32 s17, s17, 0xffff")
    a.e(f"s_mov_b32 s18, {8*172*4096}"); a.e("s_mov_b32 s19, 0x20000")
    a.e("v_lshrrev_b32 v9, 1, v1")
    a.e("v_and_b32 v18, 1, v1")
    a.e("v_lshlrev_b32 v18, 4, v18")
    for r7 in range(8):
        a.e(f"v_xor_b32 v{10+r7}, {r7}, v9")
        a.e(f"v_lshl_add_u32 v{10+r7}, v{10+r7}, 5, v18")
    a.e("v_and_b32 v2, 15, v1              ; i")
    a.e("v_lshrrev_b32 v3, 4, v1           ; g")
    a.e("v_lshrrev_b32 v4, 2, v2")
    a.e("v_lshl_add_u32 v5, v3, 2, v4      ; r0")
    a.e("v_and_b32 v6, 7, v5               ; f")
    a.e("v_lshlrev_b32 v5, 10, v5")
    a.e("v_and_b32 v7, 3, v2")
    a.e("v_lshl_add_u32 v5, v7, 3, v5")
    a.e("v_add_u32 v5, s58, v5")
    for b in range(8):
        a.e(f"v_xor_b32 v7, {b}, v6")
        a.e(f"v_lshl_add_u32 v{20+b}, v7, 5, v5")
    a.e("v_lshlrev_b32 v8, 4, v1           ; lane*16")
    if os.environ.get("NOAUX"): a.e("s_mov_b32 s57, 200")
    a.label("K1_AUXL")
    a.e("s_cmp_ge_u32 s57, 171")
    a.e("s_cbranch_scc1 K1_AUXE")
    a.e("s_cmp_lt_u32 s57, 128")
    for k in range(4): a.e(f"s_cselect_b32 s{12+k}, s{4+k}, s{8+k}")
    a.e("s_mov_b32 s15, 0x20000")
    a.e("s_and_b32 s59, s57, 127")
    a.e("s_lshl_b32 s59, s59, 15")
    a.e("s_mov_b32 m0, s58")
    a.e("s_nop 0")
    for r in range(32):
        a.e(f"buffer_load_dwordx4 v{10+(r&7)}, s[12:15], s59 offen lds")
        a.e("s_add_u32 m0, m0, 1024")
        a.e("s_add_u32 s59, s59, 1024")
    a.e("s_lshl_b32 s60, s57, 12           ; u*4096")
    a.e("s_waitcnt vmcnt(0)")
    for N in range(8):
        q = 64 + 16 * (N & 3)
        for mt in range(4):
            cidx = 4 * N + mt
            for e4 in range(2):
                a.e(f"ds_read_b64_tr_b16 v[{q+4*mt+2*e4}:{q+4*mt+2*e4+1}], v{20+(cidx&7)} offset:{(cidx>>3)*256 + e4*16384}")
        a.e("s_waitcnt lgkmcnt(0)")
        for mt in range(4):
            a.e(f"buffer_store_dwordx4 v[{q+4*mt}:{q+4*mt+3}], v8, s[16:19], s60 offen offset:{mt*1024} sc1")
        a.e(f"s_add_u32 s60, s60, {172*4096}")
    a.e("s_waitcnt vmcnt(0)")
    a.e("s_add_u32 s57, s57, 80")
    a.e("s_branch K1_AUXL")
    a.label("K1_AUXE")
    if common.DIAG:
        stamp(a, 4)
        stamp_flush(a, 1, 9)
    a.e("s_endpgm")

def gen_k1(a, name="proj_kernel", stflag=""):
    kernel_header(a, name)
    a.block("k1_pro")
    a.e("s_cmp_ge_u32 s2, 256")
    a.e("s_cbranch_scc1 K1_END")
    stamp(a, 0)
    a.e(f"s_load_dwordx4 s[36:39], s[0:1], {KA['x']}")
    a.e(f"s_load_dwordx4 s[40:43], s[0:1], {KA['wq']}")
    a.e(f"s_load_dwordx2 s[44:45], s[0:1], {KA['wuv']}")
    a.e(f"s_load_dwordx4 s[48:51], s[0:1], {KA['wg']}")
    a.e(f"s_load_dwordx2 s[52:53], s[0:1], {KA['ws']}")
    a.e(f"s_load_dwordx2 s[34:35], s[0:1], {KA['dbg']}")
    a.e("v_lshrrev_b32 v1, 6, v0")
    a.e("s_nop 0")
    a.e("v_readfirstlane_b32 s20, v1")
    a.e("v_and_b32 v1, 63, v0              ; lane")
    a.e("s_and_b32 s54, s2, 7              ; x")
    a.e("s_lshr_b32 s55, s2, 3             ; j")
    a.e("s_and_b32 s56, s55, 3             ; m")
    a.e("s_lshr_b32 s55, s55, 2            ; pi")
    a.e("s_waitcnt lgkmcnt(0)")
    if FUSE_LN:
        srd(a, "s36", "s37", 0x200000, 68)
        a.e("v_lshlrev_b32 v99, 4, v1")
        a.e("s_lshl_b32 s64, s20, 11")
        a.e("v_add_u32 v99, s64, v99")
        a.e("s_lshl_b32 s33, s2, 13")
        a.e("buffer_load_dwordx4 v[100:103], v99, s[68:71], s33 offen")
        a.e("buffer_load_dwordx4 v[104:107], v99, s[68:71], s33 offen offset:1024")
    a.e("s_cmp_ge_u32 s54, 4")
    a.e("s_cbranch_scc1 K1_XN")
    a.e("s_lshl_b32 s57, s54, 3")
    a.e("s_add_u32 s57, s57, s55           ; p 0..31")
    a.e("s_mov_b32 s60, s38")
    a.e("s_mov_b32 s61, s39")
    a.e("s_cmp_lt_u32 s57, 16")
    a.e("s_cselect_b32 s21, 0, 1           ; type K=0 / V=1")
    a.e("s_cselect_b32 s62, s42, s44")
    a.e("s_cselect_b32 s63, s43, s45       ; W")
    a.e(f"s_mov_b32 s59, {VF}")
    a.e(f"s_cselect_b32 s58, {KF}, s59")
    a.e("s_and_b32 s57, s57, 15            ; panel")
    a.e("s_branch K1_QKV")
    a.label("K1_XN")
    a.e("s_cmp_eq_u32 s55, 7")
    a.e("s_cbranch_scc1 K1_AUX")
    a.e("s_sub_u32 s57, s54, 4")
    a.e("s_mul_i32 s57, s57, 7")
    a.e("s_add_u32 s57, s57, s55           ; q")
    a.e("s_cmp_ge_u32 s57, 27")
    a.e("s_cbranch_scc1 K1_AUX")
    a.e(f"s_add_u32 s60, s52, {XN}")
    a.e("s_addc_u32 s61, s53, 0")
    a.e("s_cmp_ge_u32 s57, 16")
    a.e("s_cbranch_scc1 K1_GU")
    a.e("s_mov_b32 s21, 2")
    a.e("s_mov_b32 s62, s40")
    a.e("s_mov_b32 s63, s41")
    a.e(f"s_mov_b32 s58, {QF}")
    a.label("K1_QKV")
    a.e("s_mov_b32 s22, 8192")
    a.e("s_lshl_b32 s59, s57, 9")
    a.e("s_lshl_b32 s64, s20, 7")
    a.e("s_add_u32 s59, s59, s64")
    a.e("s_add_u32 s8, s62, s59")
    a.e("s_addc_u32 s9, s63, 0")
    a.e("s_and_b32 s9, s9, 0xffff")
    a.e("s_sub_u32 s10, 0x400000, s59")
    a.e("s_mov_b32 s11, 0x20000")
    a.e("s_add_u32 s12, s8, 64")
    a.e("s_addc_u32 s13, s9, 0")
    a.e("s_sub_u32 s14, s10, 64")
    a.e("s_mov_b32 s15, 0x20000")
    a.e("s_lshl_b32 s25, s57, 1")
    a.e("s_lshr_b32 s64, s20, 1")
    a.e("s_add_u32 s25, s25, s64           ; head")
    a.e("s_lshl_b32 s25, s25, 19")
    a.e("s_and_b32 s64, s20, 1")
    a.e("s_lshl_b32 s64, s64, 12")
    a.e("s_add_u32 s25, s25, s64")
    a.e("s_lshl_b32 s64, s56, 17           ; 16m*8192")
    a.e("s_add_u32 s25, s25, s64")
    a.e("s_mov_b32 s65, 0x1000000")
    a.e("s_branch K1_COMMON")
    a.label("K1_GU")
    a.e("s_mov_b32 s21, 3")
    a.e("s_sub_u32 s57, s57, 16")
    a.e("s_lshl_b32 s57, s57, 2")
    a.e("s_add_u32 s57, s57, s20           ; fs")
    a.e("s_min_u32 s57, s57, 42")
    a.e("s_mov_b32 s22, 2752")
    a.e("s_lshl_b32 s59, s57, 6")
    a.e("s_add_u32 s8, s48, s59")
    a.e("s_addc_u32 s9, s49, 0")
    a.e("s_and_b32 s9, s9, 0xffff")
    a.e(f"s_sub_u32 s10, {512*2752}, s59")
    a.e("s_mov_b32 s11, 0x20000")
    a.e("s_add_u32 s12, s50, s59")
    a.e("s_addc_u32 s13, s51, 0")
    a.e("s_and_b32 s13, s13, 0xffff")
    a.e("s_mov_b32 s14, s10")
    a.e("s_mov_b32 s15, 0x20000")
    a.e(f"s_mov_b32 s58, {HF}")
    a.e(f"s_mul_i32 s25, s56, {32*43*1024}")
    a.e("s_lshl_b32 s64, s57, 10")
    a.e("s_add_u32 s25, s25, s64")
    a.e(f"s_mov_b32 s65, {128*43*1024}")
    a.label("K1_COMMON")
    a.e("s_lshl_b32 s64, s56, 19")
    a.e("s_add_u32 s4, s60, s64")
    a.e("s_addc_u32 s5, s61, 0")
    a.e("s_and_b32 s5, s5, 0xffff")
    a.e("s_mov_b32 s6, 0x80000")
    a.e("s_mov_b32 s7, 0x20000")
    a.e("s_add_u32 s16, s52, s58")
    a.e("s_addc_u32 s17, s53, 0")
    a.e("s_and_b32 s17, s17, 0xffff")
    a.e("s_mov_b32 s18, s65")
    a.e("s_mov_b32 s19, 0x20000")
    a.e("s_mov_b32 s27, 0x80000000")
    a.e("s_mov_b32 s29, 0x80000000")
    a.e("s_mov_b32 s30, 0x3e0293ee         ; 128^-0.5*log2(e)")
    a.e("s_mov_b32 s31, 0xbfb8aa3b         ; -log2(e)")
    a.e("v_lshrrev_b32 v9, 3, v1")
    a.e("s_lshl_b32 s64, s20, 3")
    a.e("v_add_u32 v9, s64, v9")
    a.e("v_lshlrev_b32 v2, 10, v9")
    a.e("s_and_b32 s64, s20, 1")
    a.e("s_lshl_b32 s64, s64, 2")
    a.e("v_lshrrev_b32 v9, 4, v1")
    a.e("v_add_u32 v9, s64, v9")
    a.e("v_and_b32 v10, 7, v1")
    a.e("v_xor_b32 v9, v9, v10")
    a.e("v_and_b32 v9, 7, v9")
    a.e("v_lshl_add_u32 v2, v9, 4, v2")
    a.e("v_and_b32 v9, 15, v1              ; t")
    a.e("v_lshrrev_b32 v10, 4, v1          ; g")
    a.e("v_lshrrev_b32 v11, 1, v9")
    a.e("v_xor_b32 v11, v11, v10")
    a.e("v_lshlrev_b32 v11, 4, v11")
    a.e("v_lshl_add_u32 v3, v9, 7, v11")
    a.e("v_xor_b32 v4, 64, v3")
    a.e("v_lshrrev_b32 v11, 2, v9          ; i>>2")
    a.e("v_lshl_add_u32 v11, v10, 3, v11")
    a.e("v_lshlrev_b32 v11, 6, v11")
    a.e("v_and_b32 v12, 3, v9")
    a.e("v_lshl_add_u32 v11, v12, 3, v11")
    a.e("v_and_b32 v12, 1, v10")
    a.e("v_lshl_add_u32 v5, v12, 5, v11")
    a.e("s_lshl_b32 s64, s20, 13")
    a.e("s_add_u32 s64, s64, 0x20000")
    a.e("v_add_u32 v5, s64, v5")
    a.e("v_xor_b32 v6, 32, v5")
    a.e("v_lshlrev_b32 v14, 4, v1")
    a.e("v_add_u32 v14, s64, v14")
    a.e("v_add_u32 v12, 0x10000, v3")
    a.e("v_add_u32 v13, 0x10000, v4")
    a.e("v_lshrrev_b32 v11, 2, v1")
    a.e("v_mul_lo_u32 v7, v11, s22")
    a.e("v_lshrrev_b32 v11, 1, v1")
    a.e("v_lshrrev_b32 v15, 5, v1")
    a.e("v_xor_b32 v11, v11, v15")
    a.e("v_and_b32 v11, 1, v11")
    a.e("v_lshl_add_u32 v7, v11, 5, v7")
    a.e("v_and_b32 v11, 1, v1")
    a.e("v_lshl_add_u32 v7, v11, 4, v7")
    a.e("s_lshl_b32 s66, s22, 4            ; 16 rows")
    a.e("s_mov_b32 s67, 0")
    a.e("s_lshl_b32 s26, s20, 10           ; m0 base = w*1024")
    def group_ops(g):
        out = []
        for t in range(4):
            out.append([f"s_add_u32 m0, s26, {t*32768 + g*4096 - g*128}", f"s_mov_b32 s73, {t*32768}",
                        f"buffer_load_dwordx4 v2, s[4:7], s73 offen offset:{g*128} lds"])
        for ks in (2 * g, 2 * g + 1):
            for half in range(2):
                srdn = "s[8:11]" if half == 0 else "s[12:15]"
                for hf in range(2):
                    b = 16 * ks + 4 * (2 * half + hf)
                    bundle = []
                    if half == 0 and hf == 0: bundle.append("s_add_u32 s72, s67, s66")
                    bundle.append(f"buffer_load_dwordx4 a[{b}:{b+3}], v7, {srdn}, {'s67' if hf == 0 else 's72'} offen")
                    if half == 1 and hf == 1: bundle.append("s_add_u32 s67, s72, s66")
                    out.append(bundle)
        return out
    def group(g):
        for bnd in group_ops(g):
            for o in bnd: a.e(o)
    KL = 2
    for g in range(KL): group(g)
    stamp(a, 8)
    def tdma():
        for slab in range(8):
            a.e("s_mov_b32 m0, s26" if slab == 0 else "s_add_u32 m0, m0, 3968")
            a.e("s_nop 0")
            a.e(f"buffer_load_dwordx4 v2, s[4:7], s24 offen offset:{slab*128} lds")
        a.e("s_add_u32 s24, s24, 0x8000")
        a.e("s_add_u32 s26, s26, 0x8000")
        a.e("s_and_b32 s26, s26, 0x1ffff")
    a.e("v_lshrrev_b32 v11, 1, v10         ; g>>1")
    a.e("v_lshlrev_b32 v8, 10, v11")
    a.e("v_and_b32 v11, 1, v10")
    a.e("v_lshl_add_u32 v8, v11, 9, v8     ; + (g&1)*512")
    a.e("s_cmp_eq_u32 s21, 0")
    a.e("s_cbranch_scc0 K1_A1")
    a.e("v_lshrrev_b32 v11, 3, v9          ; K: r=16*(t>>3)+(t&7)")
    a.e("v_lshlrev_b32 v11, 4, v11")
    a.e("v_and_b32 v15, 7, v9")
    a.e("v_add_u32 v11, v11, v15")
    a.e("v_lshl_add_u32 v8, v11, 4, v8")
    a.e("s_branch K1_A3")
    a.label("K1_A1")
    a.e("s_cmp_eq_u32 s21, 3")
    a.e("s_cbranch_scc1 K1_A2")
    a.e("v_lshl_add_u32 v8, v9, 4, v8      ; Q,V: + t*16")
    a.e("s_branch K1_A3")
    a.label("K1_A2")
    a.e("v_lshlrev_b32 v8, 4, v1")
    a.label("K1_A3")
    a.e("s_cmp_eq_u32 s21, 1")
    a.e("s_cbranch_scc1 K1_KO_V")
    acc2 = lambda j, c: 128 + 16 * j + 4 * c
    for var in ("N", "V"):
        a.block(f"k1_ko_{var}")
        if var == "V": a.label("K1_KO_V")
        for sl in range(8):
            n = 12 * (min(sl + KL - 1, 7) - sl)
            a.e(f"s_waitcnt vmcnt({n})")
            if sl == 0 and var == "N": stamp(a, 5)
            if sl == 4 and var == "N": stamp(a, 7)
            a.e("s_barrier")
            for ks in (2 * sl, 2 * sl + 1):
                for q in range(4):
                    a.e(f"ds_write_b128 v14, a[{16*ks+4*q}:{16*ks+4*q+3}] offset:{(ks&1)*4096 + q*1024}")
            def xreads(ks):
                out = []
                X = 16 if ks % 2 == 0 else 48
                for j in range(8):
                    t, tt = j >> 1, j & 1
                    base = {(0, 0): "v3", (0, 1): "v4", (1, 0): "v12", (1, 1): "v13"}[(t >> 1, ks & 1)]
                    out.append(f"ds_read_b128 v[{X+4*j}:{X+4*j+3}], {base} offset:{(t&1)*32768 + sl*4096 + tt*2048}")
                return out
            for o in xreads(2 * sl): a.e(o)
            a.e("s_waitcnt lgkmcnt(8)")
            for ks in (2 * sl, 2 * sl + 1):
                for c in range(4):
                    for e4 in range(2):
                        w = 16 * ks + 4 * c + 2 * e4
                        a.e(f"ds_read_b64_tr_b16 a[{w}:{w+1}], v{5 + (c & 1)} offset:{(ks&1)*4096 + (c >> 1)*2048 + e4*256}")
            for ks in (2 * sl, 2 * sl + 1):
                a.e("s_waitcnt lgkmcnt(8)" if ks % 2 == 0 else "s_waitcnt lgkmcnt(0)")
                nx = xreads(ks + 1) if ks % 2 == 0 else []
                X = 16 if ks % 2 == 0 else 48
                m = 0
                gb = group_ops(sl + KL) if sl + KL <= 7 else []
                gb = gb[:6] if ks % 2 == 0 else gb[6:]
                for j in range(8):
                    for c in range(4):
                        d = acc2(j, c); w = 16 * ks + 4 * c
                        cin = "0" if ks == 0 else f"v[{d}:{d+3}]"
                        if var == "V": a.e(f"v_mfma_f32_16x16x32_bf16 v[{d}:{d+3}], v[{X+4*j}:{X+4*j+3}], a[{w}:{w+3}], {cin}")
                        else: a.e(f"v_mfma_f32_16x16x32_bf16 v[{d}:{d+3}], a[{w}:{w+3}], v[{X+4*j}:{X+4*j+3}], {cin}")
                        if nx and m % 4 == 0: a.e(nx[m // 4])
                        if gb and m % 5 == 2 and m // 5 < len(gb):
                            for o in gb[m // 5]: a.e(o)
                        m += 1
        a.e("s_barrier")
        stamp(a, 1)
        a.e("s_mov_b32 s24, 0x20000            ; tiles 4,5,6")
        tdma(); tdma(); tdma()
        if var == "N":
            a.e("s_cmp_eq_u32 s21, 2")
            a.e("s_cbranch_scc1 K1_EB_Q")
            a.e("s_cmp_eq_u32 s21, 3")
            a.e("s_cbranch_scc1 K1_EB_G")
            a.e("s_branch K1_EB_K")
        else:
            a.e("s_branch K1_EB_V")
    for typ in "KVQG":
        a.block(f"k1_eb_{typ}")
        a.label(f"K1_EB_{typ}")
        nst = 0
        for t in range(4):
            for tt in range(2):
                accf = lambda tt_, c, j=2 * t + tt: acc2(j, c)
                ops = make_epi(typ, stflag, accf, tt, "s25")
                prev = None
                for o in ops:
                    ins = Ins(o)
                    if prev is not None and prev.kind == "trans" and ins.kind == "valu" and set(prev.wr) & set(ins.rd): a.e("s_nop 0")
                    a.e(o); prev = ins
                    if o.startswith("buffer_store"): nst += 1
                if typ == "G": a.e("s_add_u32 s25, s25, 44032")
            if typ != "G": a.e("s_add_u32 s25, s25, 8192")
        a.e(f"s_waitcnt vmcnt({8 + nst})")
        a.e("s_barrier")
        stamp(a, 2)
        for f in range(3):
            xb = XB + 4 * f
            a.e(f"ds_read_b128 v[{xb}:{xb+3}], {'v3' if f % 2 == 0 else 'v4'} offset:{(f >> 1)*4096}")
        a.e("s_mov_b32 s23, 12")
        a.e(f"s_branch K1_LOOP_{typ}")
    for typ in "KVQG":
        a.block(f"k1_loop_{typ}")
        a.raw(".p2align 6")
        a.label(f"K1_LOOP_{typ}")
        e1 = k1_period(a, typ, stflag)
        a.e("s_sub_u32 s23, s23, 1")
        a.e("s_cmp_lg_u32 s23, 0")
        a.e(f"s_cbranch_scc1 K1_LOOP_{typ}")
        a.block(f"k1_tail_{typ}")
        a.e("s_nop 7")
        stamp(a, 3)
        for o in e1: a.e(o)
        if common.DIAG:
            a.e("s_waitcnt vmcnt(0)")
            stamp(a, 4)
            stamp_flush(a, 1, 9)
        a.e("s_endpgm")
    gen_aux(a)
    a.cur = None
    a.label("K1_END")
    a.e("s_endpgm")
    return kernel_desc(name, 512, 96, 256)

def check_k1(a):
    probs = []
    for typ in "KVQG":
        tr = a.blocks["k1_pro"] + a.blocks["k1_ko_V" if typ == "V" else "k1_ko_N"] + a.blocks[f"k1_eb_{typ}"] + a.blocks[f"k1_loop_{typ}"] * 3 + a.blocks[f"k1_tail_{typ}"]
        probs += check_trace(tr, "k1" + typ)
    probs += check_trace(a.blocks["k1_pro"][:40] + a.blocks["k1_aux"], "k1aux")
    return probs
```

```python
from common import *
import common, os
EXP = os.environ.get('K3EXP', '')
D = int(os.environ.get("K3D", "3"))
NS = 43
ACC = 160
VOA, VOH = 8, 12
XR = 24
REG = 17408
OSTFLAG = ""

def gen_k3(a, name="outp_kernel"):
    kernel_header(a, name)
    a.block("k3")
    a.e("s_cmp_ge_u32 s2, 256")
    a.e("s_cbranch_scc1 K3_END")
    stamp(a, 0)
    a.e(f"s_load_dwordx2 s[36:37], s[0:1], {KA['ws']}")
    a.e(f"s_load_dwordx2 s[42:43], s[0:1], {KA['x']}")
    a.e(f"s_load_dwordx2 s[44:45], s[0:1], {KA['out']}")
    a.e("v_lshrrev_b32 v1, 6, v0")
    a.e("s_nop 0")
    a.e("v_readfirstlane_b32 s20, v1       ; wave")
    a.e("v_and_b32 v1, 63, v0              ; lane")
    code_touch(a, name, "K3_END", 1, 23, 22, "s20")
    a.e("s_and_b32 s46, s2, 7")
    a.e("s_lshr_b32 s47, s2, 3")
    a.e("s_and_b32 s21, s47, 7             ; N tile")
    if "perm" in EXP: a.e("s_xor_b32 s21, s21, 1")
    a.e("s_lshr_b32 s47, s47, 3")
    a.e("s_lshl_b32 s46, s46, 2")
    a.e("s_add_u32 s22, s46, s47")
    if "sameW" in EXP: a.e("s_mov_b32 s21, 0")
    if "sameX" in EXP: a.e("s_mov_b32 s22, 0")
    a.e("v_lshlrev_b32 v2, 4, v1           ; lane*16")
    for tt in range(4):
        a.e(f"v_add_u32 v{VOA+tt}, {tt*131072}, v2")
        a.e(f"v_add_u32 v{VOH+tt}, {tt*44032}, v2")
    a.e(f"s_mul_i32 s23, s20, {REG}")
    a.e("s_waitcnt lgkmcnt(0)")
    a.e(f"s_add_u32 s4, s36, {CF}"); a.e("s_addc_u32 s5, s37, 0"); a.e("s_and_b32 s5, s5, 0xffff"); a.e("s_mov_b32 s6, 0x1000000"); a.e("s_mov_b32 s7, 0x20000")
    a.e(f"s_add_u32 s8, s36, {HF}"); a.e("s_addc_u32 s9, s37, 0"); a.e("s_and_b32 s9, s9, 0xffff"); a.e(f"s_mov_b32 s10, {128*43*1024}"); a.e("s_mov_b32 s11, 0x20000")
    a.e(f"s_mul_i32 s58, s21, {172*4096}")
    a.e(f"s_add_u32 s58, s58, {WF}")
    a.e("s_add_u32 s12, s36, s58"); a.e("s_addc_u32 s13, s37, 0"); a.e("s_and_b32 s13, s13, 0xffff"); a.e(f"s_mov_b32 s14, {171*4096}"); a.e("s_mov_b32 s15, 0x20000")
    srd(a, "s42", "s43", 0x200000, 48)
    srd(a, "s44", "s45", 0x200000, 52)
    a.e("v_lshrrev_b32 v3, 2, v0")
    a.e("v_lshlrev_b32 v21, 10, v3")
    a.e("v_and_b32 v3, 3, v0")
    a.e("v_lshl_add_u32 v21, v3, 5, v21")
    a.e("s_lshl_b32 s56, s22, 16")
    a.e("s_lshl_b32 s57, s21, 7")
    a.e("s_add_u32 s56, s56, s57")
    a.e(f"buffer_load_dwordx4 v[{XR}:{XR+3}], v21, s[48:51], s56 offen")
    a.e(f"buffer_load_dwordx4 v[{XR+4}:{XR+7}], v21, s[48:51], s56 offen offset:16")
    a.e("s_lshl_b32 s24, s22, 19           ; 4M*128*1024")
    a.e("s_lshl_b32 s58, s20, 15")
    a.e("s_add_u32 s24, s24, s58")
    a.e(f"s_mul_i32 s25, s22, {4*43*1024}")
    a.e(f"s_mul_i32 s58, s20, {11*1024}")
    a.e("s_add_u32 s25, s25, s58")
    a.e("s_lshl_b32 s26, s20, 17")
    a.e(f"s_mul_i32 s27, s20, {11*4096}")
    a.e(f"s_add_u32 s27, s27, {128*4096}")
    queue = ["x", "x"]
    def issue_parts(u):
        isA = u < 32
        sX = "s24" if isA else "s25"; sW = "s26" if isA else "s27"
        srdX = "s[4:7]" if isA else "s[8:11]"
        vo = VOA if isA else VOH
        b0 = 32 * (u % D)
        wl = [f"buffer_load_dwordx4 a[{b0+4*mt}:{b0+4*mt+3}], v2, s[12:15], {sW} offen offset:{mt*1024}" for mt in range(4)]
        xl = [f"buffer_load_dwordx4 a[{b0+16+4*tt}:{b0+16+4*tt+3}], v{vo+tt}, {srdX}, {sX} offen" for tt in range(4)]
        adv = [f"s_add_u32 {sX}, {sX}, 1024", f"s_add_u32 {sW}, {sW}, 4096"]
        return wl, xl, adv
    for u in range(D):
        wl, xl, adv = issue_parts(u)
        for o in wl + xl + adv: a.e(o)
        queue += [u] * 8
    def wait_for(u):
        nonlocal queue
        last = max(i for i, q in enumerate(queue) if q == u)
        n = len(queue) - 1 - last
        queue = queue[last + 1:]
        return f"s_waitcnt vmcnt({n})"
    for u in range(NS):
        fill = {}
        a.e(wait_for(u))
        if u == 0:
            stamp(a, 1); stamp(a, 4, True)
        if u + D < NS:
            wl, xl, adv = issue_parts(u + D)
            for tt in range(4): fill.setdefault(4 * tt + 3, []).append(xl[tt])
            for mt in range(4): fill.setdefault(12 + mt, []).append(wl[mt])
            fill.setdefault(15, []).extend(adv)
            queue += [u + D] * 8
        n = 0
        b0 = 32 * (u % D)
        for tt in range(4):
            for mt in range(4):
                d = ACC + 4 * (4 * mt + tt)
                cin = "0" if u == 0 else f"v[{d}:{d+3}]"
                a.e(f"v_mfma_f32_16x16x32_bf16 v[{d}:{d+3}], a[{b0+4*mt}:{b0+4*mt+3}], a[{b0+16+4*tt}:{b0+16+4*tt+3}], {cin}")
                for o in fill.get(n, []): a.e(o)
                n += 1
    stamp(a, 2)
    stamp(a, 5, True)
    a.e("v_and_b32 v3, 15, v1")
    a.e("v_mul_u32_u24 v3, 272, v3")
    a.e("v_lshrrev_b32 v4, 4, v1")
    a.e("v_lshl_add_u32 v3, v4, 4, v3")
    a.e("v_add_u32 v3, s23, v3")
    a.e("s_nop 7")
    for tt in range(4):
        for mt in range(4):
            d = ACC + 4 * (4 * mt + tt)
            a.e(f"ds_write_b128 v3, v[{d}:{d+3}] offset:{tt*16*272 + mt*64}")
    a.e("v_lshrrev_b32 v3, 2, v0")
    a.e("v_mul_u32_u24 v3, 272, v3")
    a.e("v_and_b32 v4, 3, v0")
    a.e("v_lshl_add_u32 v3, v4, 6, v3")
    for w in range(4):
        if w: a.e(f"v_add_u32 v{3+w}, {w*REG}, v3")
    a.e("s_waitcnt lgkmcnt(0)")
    a.e("s_barrier")
    R = 64
    for w in range(4):
        for k in range(4):
            b = R + 16 * w + 4 * k
            a.e(f"ds_read_b128 v[{b}:{b+3}], v{3+w} offset:{k*16}")
    for k in range(8):
        a.e(f"v_lshlrev_b32 v{128+2*k}, 16, v{XR+k}")
        a.e(f"v_and_b32 v{128+2*k+1}, 0xffff0000, v{XR+k}")
    a.e("s_waitcnt lgkmcnt(0)")
    for k in range(16):
        a.e(f"v_add_f32 v{R+k}, v{R+k}, v{R+16+k}")
        a.e(f"v_add_f32 v{R+32+k}, v{R+32+k}, v{R+48+k}")
    for k in range(16):
        a.e(f"v_add_f32 v{R+k}, v{R+k}, v{R+32+k}")
    for k in range(16):
        a.e(f"v_add_f32 v{R+k}, v{R+k}, v{128+k}")
    for k in range(8):
        a.e(f"v_cvt_pk_bf16_f32 v{144+k}, v{R+2*k}, v{R+2*k+1}")
    a.e(f"buffer_store_dwordx4 v[144:147], v21, s[52:55], s56 offen{OSTFLAG}")
    a.e(f"buffer_store_dwordx4 v[148:151], v21, s[52:55], s56 offen offset:16{OSTFLAG}")
    if common.DIAG:
        a.e("s_waitcnt vmcnt(0)")
        stamp(a, 3)
        stamp_flush(a, 3, 6)
    a.e("s_endpgm")
    a.cur = None
    a.label("K3_END")
    a.e("s_endpgm")
    return kernel_desc(name, 512, 102, 256)

def check_k3(a):
    return check_trace(a.blocks["k3"], "k3")
```

```python
from common import *
import common, os
from k0 import ln_rows
ST_FLAG = ""
FUSE_LN = False
XB = 16
ACC = [48, 64]
TMP = 80

def cvt(dst, s0, s1): return f"v_cvt_pk_bf16_f32 v{dst}, v{s0}, v{s1}"
def make_epi(typ, stflag, acc, tt, soff):
    def st(q, soff, off): return f"buffer_store_dwordx4 v[{q}:{q+3}], v8, s[16:19], {soff} offen offset:{off}{stflag}"
    ops = []
    if typ in "KQ":
        for pr in range(2):
            q = TMP + 8 * tt + 4 * pr
            if typ == "Q":
                for c in (2 * pr, 2 * pr + 1):
                    for j in range(4): ops.append(f"v_mul_f32 v{acc(tt,c)+j}, s30, v{acc(tt,c)+j}")
            for h, c in enumerate((2 * pr, 2 * pr + 1)):
                ops.append(cvt(q + 2 * h, acc(tt, c), acc(tt, c) + 1))
                ops.append(cvt(q + 2 * h + 1, acc(tt, c) + 2, acc(tt, c) + 3))
            off = pr * 2048 + tt * (128 if typ == "K" else 256)
            ops.append(st(q, soff, off))
    elif typ == "V":
        for c in range(4):
            q = TMP + 4 * c
            ops.append(cvt(q + 2 * tt, acc(tt, c), acc(tt, c) + 1))
            ops.append(cvt(q + 2 * tt + 1, acc(tt, c) + 2, acc(tt, c) + 3))
            if tt == 1:
                ops.append(st(q, soff, (c & 1) * 256 + (c >> 1) * 2048))
    else:
        T = TMP + 16
        groups = [[(c, j) for j in range(4)] for c in range(2)]
        for grp in groups:
            for n, (c, j) in enumerate(grp): ops.append(f"v_mul_f32 v{T+n}, s31, v{acc(tt,c)+j}")
            for n, (c, j) in enumerate(grp): ops.append(f"v_exp_f32 v{T+n}, v{T+n}")
            for n, (c, j) in enumerate(grp): ops.append(f"v_add_f32 v{T+n}, 1.0, v{T+n}")
            for n, (c, j) in enumerate(grp): ops.append(f"v_rcp_f32 v{T+n}, v{T+n}")
            for n, (c, j) in enumerate(grp): ops.append(f"v_mul_f32 v{acc(tt,c)+j}, v{acc(tt,c)+j}, v{acc(tt,c+2)+j}")
            for n, (c, j) in enumerate(grp): ops.append(f"v_mul_f32 v{acc(tt,c)+j}, v{acc(tt,c)+j}, v{T+n}")
            c = grp[0][0]
            q = TMP + 4 * tt
            ops.append(cvt(q + 2 * c, acc(tt, c), acc(tt, c) + 1))
            ops.append(cvt(q + 2 * c + 1, acc(tt, c) + 2, acc(tt, c) + 3))
        ops.append(st(TMP + 4 * tt, soff, 0))
    return ops

def k1_period(a, typ, stflag):
    fill = {}
    def acc(tt, c): return ACC[tt] + 4 * c
    mf = []
    for tt in range(2):
        for ks in range(16):
            f = tt * 16 + ks
            xb = XB + 4 * (f % 4)
            for c in range(4):
                w = 16 * ks + 4 * c
                d = acc(tt, c)
                cin = "0" if ks == 0 else f"v[{d}:{d+3}]"
                if typ == "V":
                    mf.append(f"v_mfma_f32_16x16x32_bf16 v[{d}:{d+3}], v[{xb}:{xb+3}], a[{w}:{w+3}], {cin}")
                else:
                    mf.append(f"v_mfma_f32_16x16x32_bf16 v[{d}:{d+3}], a[{w}:{w+3}], v[{xb}:{xb+3}], {cin}")
    pre = {}
    for f in range(3, 35):
        ff = f % 32
        tt, ks = ff // 16, ff % 16
        xb = XB + 4 * (f % 4)
        base = "v3" if ks % 2 == 0 else "v4"
        off = (ks >> 1) * 4096 + tt * 2048
        idx = 4 * (f - 3)
        rd = f"ds_read_b128 v[{xb}:{xb+3}], {base} offset:{off}"
        if f == 32:
            fill.setdefault(idx - 3, []).append("v_add_u32 v3, 0x8000, v3")
            fill.setdefault(idx - 2, []).append("v_and_b32 v3, 0x1ffff, v3")
            fill.setdefault(idx - 1, []).append("v_xor_b32 v4, 64, v3")
        fill.setdefault(idx, []).append(rd)
    for f in range(32):
        pre.setdefault(4 * f, []).append("s_waitcnt lgkmcnt(2)")
    epi = lambda tt, soff: make_epi(typ, stflag, acc, tt, soff)
    e1 = epi(1, "s27" if typ != "G" else "s29")
    e0 = epi(0, "s25")
    spread(fill, e1, 3, 58)
    dma = []
    for slab in range(8):
        m0 = "s_mov_b32 m0, s26" if slab == 0 else "s_add_u32 m0, m0, 3968"
        dma.append((m0, f"buffer_load_dwordx4 v2, s[4:7], s24 offen offset:{slab*128} lds"))
    spread(fill, e0, 67, 104)
    for n, (m0, ld) in enumerate(dma):
        g = 106 + 2 * n
        fill.setdefault(g, []).append(m0)
        fill.setdefault(g + 1, []).append(ld)
    book = ["s_add_u32 s24, s24, 0x8000", "s_add_u32 s26, s26, 0x8000", "s_and_b32 s26, s26, 0x1ffff"]
    if typ == "G":
        book += ["s_add_u32 s29, s25, 44032", "s_add_u32 s25, s25, 88064"]
    else:
        book += ["s_mov_b32 s27, s25", "s_add_u32 s25, s25, 8192"]
    fill.setdefault(124, []).extend(book[:3]); fill.setdefault(125, []).extend(book[3:])
    nst1 = sum(1 for o in e1 if o.startswith("buffer_store")); nst0 = sum(1 for o in e0 if o.startswith("buffer_store"))
    N = nst1 + nst0 + 8 + nst1
    pre.setdefault(64, []).insert(0, f"s_waitcnt vmcnt({N})")
    pre[64].insert(1, "s_barrier")
    for i, m in enumerate(mf):
        for p in pre.get(i, []): a.e(p)
        a.e(m)
        for p in fill.get(i, []): a.e(p)
    return e1

def ln_finish(a):
    ln_rows(a, 2, 100, 108, 44)
    a.e(f"s_add_u32 s68, s52, {XN}")
    a.e("s_addc_u32 s69, s53, 0")
    a.e("s_and_b32 s69, s69, 0xffff")
    a.e("buffer_store_dwordx4 v[100:103], v99, s[68:71], s33 offen sc1")
    a.e("buffer_store_dwordx4 v[104:107], v99, s[68:71], s33 offen offset:1024 sc1")
    a.e("s_waitcnt vmcnt(0)")
    a.e("s_barrier")
    l = a.newlabel("K1_SIG")
    a.e("s_cmp_lg_u32 s20, 0")
    a.e(f"s_cbranch_scc1 {l}")
    a.e("s_lshr_b32 s32, s2, 4")
    a.e("s_lshl_b32 s32, s32, 4")
    a.e("v_mov_b32 v98, s32")
    a.e("v_mov_b32 v97, 1")
    a.e("s_mov_b64 exec, 1")
    a.e("global_atomic_add v98, v97, s[34:35] sc1")
    a.e("s_mov_b64 exec, -1")
    a.label(l)

def poll_xn(a):
    a.e("v_and_b32 v98, 3, v1")
    a.e("s_lshl_b32 s32, s56, 2")
    a.e("v_add_u32 v98, s32, v98")
    a.e("v_lshlrev_b32 v98, 4, v98")
    l = a.newlabel("K1_POLL")
    a.label(l)
    a.e("global_load_dword v97, v98, s[34:35] sc1")
    a.e("s_waitcnt vmcnt(0)")
    a.e("v_cmp_ne_u32 vcc, 16, v97")
    a.e("s_nop 4")
    a.e(f"s_cbranch_vccnz {l}")

def gen_aux(a):
    a.block("k1_aux")
    a.label("K1_AUX")
    if FUSE_LN:
        a.e("s_waitcnt vmcnt(0)")
        ln_finish(a)
    a.e(f"s_load_dwordx2 s[40:41], s[0:1], {KA['wo']}")
    a.e(f"s_load_dwordx2 s[42:43], s[0:1], {KA['wd']}")
    a.e("s_sub_u32 s57, s54, 4")
    a.e("s_lshl_b32 s57, s57, 2")
    a.e("s_cmp_eq_u32 s55, 7")
    a.e("s_cselect_b32 s57, s57, 16")
    a.e("s_add_u32 s57, s57, s56")
    a.e("s_lshl_b32 s57, s57, 2")
    a.e("s_add_u32 s57, s57, s20")
    a.e(f"s_mul_i32 s58, s20, 40960")
    a.e("s_waitcnt lgkmcnt(0)")
    srd(a, "s40", "s41", 0x400000, 4)
    srd(a, "s42", "s43", 1376 * 1024, 8)
    a.e(f"s_add_u32 s16, s52, {WF}"); a.e("s_addc_u32 s17, s53, 0"); a.e("s_and_b32 s17, s17, 0xffff")
    a.e(f"s_mov_b32 s18, {8*172*4096}"); a.e("s_mov_b32 s19, 0x20000")
    a.e("v_lshrrev_b32 v9, 1, v1")
    a.e("v_and_b32 v18, 1, v1")
    a.e("v_lshlrev_b32 v18, 4, v18")
    for r7 in range(8):
        a.e(f"v_xor_b32 v{10+r7}, {r7}, v9")
        a.e(f"v_lshl_add_u32 v{10+r7}, v{10+r7}, 5, v18")
    a.e("v_and_b32 v2, 15, v1              ; i")
    a.e("v_lshrrev_b32 v3, 4, v1           ; g")
    a.e("v_lshrrev_b32 v4, 2, v2")
    a.e("v_lshl_add_u32 v5, v3, 2, v4      ; r0")
    a.e("v_and_b32 v6, 7, v5               ; f")
    a.e("v_lshlrev_b32 v5, 10, v5")
    a.e("v_and_b32 v7, 3, v2")
    a.e("v_lshl_add_u32 v5, v7, 3, v5")
    a.e("v_add_u32 v5, s58, v5")
    for b in range(8):
        a.e(f"v_xor_b32 v7, {b}, v6")
        a.e(f"v_lshl_add_u32 v{20+b}, v7, 5, v5")
    a.e("v_lshlrev_b32 v8, 4, v1           ; lane*16")
    if os.environ.get("NOAUX"): a.e("s_mov_b32 s57, 200")
    a.label("K1_AUXL")
    a.e("s_cmp_ge_u32 s57, 171")
    a.e("s_cbranch_scc1 K1_AUXE")
    a.e("s_cmp_lt_u32 s57, 128")
    for k in range(4): a.e(f"s_cselect_b32 s{12+k}, s{4+k}, s{8+k}")
    a.e("s_mov_b32 s15, 0x20000")
    a.e("s_and_b32 s59, s57, 127")
    a.e("s_lshl_b32 s59, s59, 15")
    a.e("s_mov_b32 m0, s58")
    a.e("s_nop 0")
    for r in range(32):
        a.e(f"buffer_load_dwordx4 v{10+(r&7)}, s[12:15], s59 offen lds")
        a.e("s_add_u32 m0, m0, 1024")
        a.e("s_add_u32 s59, s59, 1024")
    a.e("s_lshl_b32 s60, s57, 12           ; u*4096")
    a.e("s_waitcnt vmcnt(0)")
    for N in range(8):
        q = 64 + 16 * (N & 3)
        for mt in range(4):
            cidx = 4 * N + mt
            for e4 in range(2):
                a.e(f"ds_read_b64_tr_b16 v[{q+4*mt+2*e4}:{q+4*mt+2*e4+1}], v{20+(cidx&7)} offset:{(cidx>>3)*256 + e4*16384}")
        a.e("s_waitcnt lgkmcnt(0)")
        for mt in range(4):
            a.e(f"buffer_store_dwordx4 v[{q+4*mt}:{q+4*mt+3}], v8, s[16:19], s60 offen offset:{mt*1024} sc1")
        a.e(f"s_add_u32 s60, s60, {172*4096}")
    a.e("s_waitcnt vmcnt(0)")
    a.e("s_add_u32 s57, s57, 80")
    a.e("s_branch K1_AUXL")
    a.label("K1_AUXE")
    if common.DIAG:
        stamp(a, 4)
        stamp_flush(a, 1, 9)
    a.e("s_endpgm")

def gen_k1(a, name="proj_kernel", stflag=""):
    kernel_header(a, name)
    a.block("k1_pro")
    a.e("s_cmp_ge_u32 s2, 256")
    a.e("s_cbranch_scc1 K1_END")
    stamp(a, 0)
    a.e(f"s_load_dwordx4 s[36:39], s[0:1], {KA['x']}")
    a.e(f"s_load_dwordx4 s[40:43], s[0:1], {KA['wq']}")
    a.e(f"s_load_dwordx2 s[44:45], s[0:1], {KA['wuv']}")
    a.e(f"s_load_dwordx4 s[48:51], s[0:1], {KA['wg']}")
    a.e(f"s_load_dwordx2 s[52:53], s[0:1], {KA['ws']}")
    a.e(f"s_load_dwordx2 s[34:35], s[0:1], {KA['dbg']}")
    a.e("v_lshrrev_b32 v1, 6, v0")
    a.e("s_nop 0")
    a.e("v_readfirstlane_b32 s20, v1")
    a.e("v_and_b32 v1, 63, v0              ; lane")
    a.e("s_and_b32 s54, s2, 7              ; x")
    a.e("s_lshr_b32 s55, s2, 3             ; j")
    a.e("s_and_b32 s56, s55, 3             ; m")
    a.e("s_lshr_b32 s55, s55, 2            ; pi")
    a.e("s_waitcnt lgkmcnt(0)")
    if FUSE_LN:
        srd(a, "s36", "s37", 0x200000, 68)
        a.e("v_lshlrev_b32 v99, 4, v1")
        a.e("s_lshl_b32 s64, s20, 11")
        a.e("v_add_u32 v99, s64, v99")
        a.e("s_lshl_b32 s33, s2, 13")
        a.e("buffer_load_dwordx4 v[100:103], v99, s[68:71], s33 offen")
        a.e("buffer_load_dwordx4 v[104:107], v99, s[68:71], s33 offen offset:1024")
    a.e("s_cmp_ge_u32 s54, 4")
    a.e("s_cbranch_scc1 K1_XN")
    a.e("s_lshl_b32 s57, s54, 3")
    a.e("s_add_u32 s57, s57, s55           ; p 0..31")
    a.e("s_mov_b32 s60, s38")
    a.e("s_mov_b32 s61, s39")
    a.e("s_cmp_lt_u32 s57, 16")
    a.e("s_cselect_b32 s21, 0, 1           ; type K=0 / V=1")
    a.e("s_cselect_b32 s62, s42, s44")
    a.e("s_cselect_b32 s63, s43, s45       ; W")
    a.e(f"s_mov_b32 s59, {VF}")
    a.e(f"s_cselect_b32 s58, {KF}, s59")
    a.e("s_and_b32 s57, s57, 15            ; panel")
    a.e("s_branch K1_QKV")
    a.label("K1_XN")
    a.e("s_cmp_eq_u32 s55, 7")
    a.e("s_cbranch_scc1 K1_AUX")
    a.e("s_sub_u32 s57, s54, 4")
    a.e("s_mul_i32 s57, s57, 7")
    a.e("s_add_u32 s57, s57, s55           ; q")
    a.e("s_cmp_ge_u32 s57, 27")
    a.e("s_cbranch_scc1 K1_AUX")
    a.e(f"s_add_u32 s60, s52, {XN}")
    a.e("s_addc_u32 s61, s53, 0")
    a.e("s_cmp_ge_u32 s57, 16")
    a.e("s_cbranch_scc1 K1_GU")
    a.e("s_mov_b32 s21, 2")
    a.e("s_mov_b32 s62, s40")
    a.e("s_mov_b32 s63, s41")
    a.e(f"s_mov_b32 s58, {QF}")
    a.label("K1_QKV")
    a.e("s_mov_b32 s22, 8192")
    a.e("s_lshl_b32 s59, s57, 9")
    a.e("s_lshl_b32 s64, s20, 7")
    a.e("s_add_u32 s59, s59, s64")
    a.e("s_add_u32 s8, s62, s59")
    a.e("s_addc_u32 s9, s63, 0")
    a.e("s_and_b32 s9, s9, 0xffff")
    a.e("s_sub_u32 s10, 0x400000, s59")
    a.e("s_mov_b32 s11, 0x20000")
    a.e("s_add_u32 s12, s8, 64")
    a.e("s_addc_u32 s13, s9, 0")
    a.e("s_sub_u32 s14, s10, 64")
    a.e("s_mov_b32 s15, 0x20000")
    a.e("s_lshl_b32 s25, s57, 1")
    a.e("s_lshr_b32 s64, s20, 1")
    a.e("s_add_u32 s25, s25, s64           ; head")
    a.e("s_lshl_b32 s25, s25, 19")
    a.e("s_and_b32 s64, s20, 1")
    a.e("s_lshl_b32 s64, s64, 12")
    a.e("s_add_u32 s25, s25, s64")
    a.e("s_lshl_b32 s64, s56, 17           ; 16m*8192")
    a.e("s_add_u32 s25, s25, s64")
    a.e("s_mov_b32 s65, 0x1000000")
    a.e("s_branch K1_COMMON")
    a.label("K1_GU")
    a.e("s_mov_b32 s21, 3")
    a.e("s_sub_u32 s57, s57, 16")
    a.e("s_lshl_b32 s57, s57, 2")
    a.e("s_add_u32 s57, s57, s20           ; fs")
    a.e("s_min_u32 s57, s57, 42")
    a.e("s_mov_b32 s22, 2752")
    a.e("s_lshl_b32 s59, s57, 6")
    a.e("s_add_u32 s8, s48, s59")
    a.e("s_addc_u32 s9, s49, 0")
    a.e("s_and_b32 s9, s9, 0xffff")
    a.e(f"s_sub_u32 s10, {512*2752}, s59")
    a.e("s_mov_b32 s11, 0x20000")
    a.e("s_add_u32 s12, s50, s59")
    a.e("s_addc_u32 s13, s51, 0")
    a.e("s_and_b32 s13, s13, 0xffff")
    a.e("s_mov_b32 s14, s10")
    a.e("s_mov_b32 s15, 0x20000")
    a.e(f"s_mov_b32 s58, {HF}")
    a.e(f"s_mul_i32 s25, s56, {32*43*1024}")
    a.e("s_lshl_b32 s64, s57, 10")
    a.e("s_add_u32 s25, s25, s64")
    a.e(f"s_mov_b32 s65, {128*43*1024}")
    a.label("K1_COMMON")
    a.e("s_lshl_b32 s64, s56, 19")
    a.e("s_add_u32 s4, s60, s64")
    a.e("s_addc_u32 s5, s61, 0")
    a.e("s_and_b32 s5, s5, 0xffff")
    a.e("s_mov_b32 s6, 0x80000")
    a.e("s_mov_b32 s7, 0x20000")
    a.e("s_add_u32 s16, s52, s58")
    a.e("s_addc_u32 s17, s53, 0")
    a.e("s_and_b32 s17, s17, 0xffff")
    a.e("s_mov_b32 s18, s65")
    a.e("s_mov_b32 s19, 0x20000")
    a.e("s_mov_b32 s27, 0x80000000")
    a.e("s_mov_b32 s29, 0x80000000")
    a.e("s_mov_b32 s30, 0x3e0293ee         ; 128^-0.5*log2(e)")
    a.e("s_mov_b32 s31, 0xbfb8aa3b         ; -log2(e)")
    a.e("v_lshrrev_b32 v9, 3, v1")
    a.e("s_lshl_b32 s64, s20, 3")
    a.e("v_add_u32 v9, s64, v9")
    a.e("v_lshlrev_b32 v2, 10, v9")
    a.e("s_and_b32 s64, s20, 1")
    a.e("s_lshl_b32 s64, s64, 2")
    a.e("v_lshrrev_b32 v9, 4, v1")
    a.e("v_add_u32 v9, s64, v9")
    a.e("v_and_b32 v10, 7, v1")
    a.e("v_xor_b32 v9, v9, v10")
    a.e("v_and_b32 v9, 7, v9")
    a.e("v_lshl_add_u32 v2, v9, 4, v2")
    a.e("v_and_b32 v9, 15, v1              ; t")
    a.e("v_lshrrev_b32 v10, 4, v1          ; g")
    a.e("v_lshrrev_b32 v11, 1, v9")
    a.e("v_xor_b32 v11, v11, v10")
    a.e("v_lshlrev_b32 v11, 4, v11")
    a.e("v_lshl_add_u32 v3, v9, 7, v11")
    a.e("v_xor_b32 v4, 64, v3")
    a.e("v_lshrrev_b32 v11, 2, v9          ; i>>2")
    a.e("v_lshl_add_u32 v11, v10, 3, v11")
    a.e("v_lshlrev_b32 v11, 6, v11")
    a.e("v_and_b32 v12, 3, v9")
    a.e("v_lshl_add_u32 v11, v12, 3, v11")
    a.e("v_and_b32 v12, 1, v10")
    a.e("v_lshl_add_u32 v5, v12, 5, v11")
    a.e("s_lshl_b32 s64, s20, 13")
    a.e("s_add_u32 s64, s64, 0x20000")
    a.e("v_add_u32 v5, s64, v5")
    a.e("v_xor_b32 v6, 32, v5")
    a.e("v_lshlrev_b32 v14, 4, v1")
    a.e("v_add_u32 v14, s64, v14")
    a.e("v_add_u32 v12, 0x10000, v3")
    a.e("v_add_u32 v13, 0x10000, v4")
    a.e("v_lshrrev_b32 v11, 2, v1")
    a.e("v_mul_lo_u32 v7, v11, s22")
    a.e("v_lshrrev_b32 v11, 1, v1")
    a.e("v_lshrrev_b32 v15, 5, v1")
    a.e("v_xor_b32 v11, v11, v15")
    a.e("v_and_b32 v11, 1, v11")
    a.e("v_lshl_add_u32 v7, v11, 5, v7")
    a.e("v_and_b32 v11, 1, v1")
    a.e("v_lshl_add_u32 v7, v11, 4, v7")
    a.e("s_lshl_b32 s66, s22, 4            ; 16 rows")
    a.e("s_mov_b32 s67, 0")
    a.e("s_lshl_b32 s26, s20, 10           ; m0 base = w*1024")
    def group_ops(g):
        out = []
        for ks in (2 * g, 2 * g + 1):
            for half in range(2):
                srdn = "s[8:11]" if half == 0 else "s[12:15]"
                for hf in range(2):
                    b = 16 * ks + 4 * (2 * half + hf)
                    bundle = []
                    if half == 0 and hf == 0: bundle.append("s_add_u32 s72, s67, s66")
                    bundle.append(f"buffer_load_dwordx4 a[{b}:{b+3}], v7, {srdn}, {'s67' if hf == 0 else 's72'} offen")
                    if half == 1 and hf == 1: bundle.append("s_add_u32 s67, s72, s66")
                    out.append(bundle)
        for t in range(4): out.append(slab_dma(t, g))
        return out
    def slab_dma(t, g):
        return [f"s_add_u32 m0, s26, {(t & 3)*32768 + g*4096 - g*128}", f"s_mov_b32 s73, {t*32768}",
                f"buffer_load_dwordx4 v2, s[4:7], s73 offen offset:{g*128} lds"]
    KL = 3
    vq = []
    for g in range(KL):
        for bnd in group_ops(g):
            for o in bnd: a.e(o)
        vq += [("W", g)] * 8 + [("T", g)] * 4
    stamp(a, 8)
    def tdma():
        for slab in range(8):
            a.e("s_mov_b32 m0, s26" if slab == 0 else "s_add_u32 m0, m0, 3968")
            a.e("s_nop 0")
            a.e(f"buffer_load_dwordx4 v2, s[4:7], s24 offen offset:{slab*128} lds")
        a.e("s_add_u32 s24, s24, 0x8000")
        a.e("s_add_u32 s26, s26, 0x8000")
        a.e("s_and_b32 s26, s26, 0x1ffff")
    a.e("v_lshrrev_b32 v11, 1, v10         ; g>>1")
    a.e("v_lshlrev_b32 v8, 10, v11")
    a.e("v_and_b32 v11, 1, v10")
    a.e("v_lshl_add_u32 v8, v11, 9, v8     ; + (g&1)*512")
    a.e("s_cmp_eq_u32 s21, 0")
    a.e("s_cbranch_scc0 K1_A1")
    a.e("v_lshrrev_b32 v11, 3, v9          ; K: r=16*(t>>3)+(t&7)")
    a.e("v_lshlrev_b32 v11, 4, v11")
    a.e("v_and_b32 v15, 7, v9")
    a.e("v_add_u32 v11, v11, v15")
    a.e("v_lshl_add_u32 v8, v11, 4, v8")
    a.e("s_branch K1_A3")
    a.label("K1_A1")
    a.e("s_cmp_eq_u32 s21, 3")
    a.e("s_cbranch_scc1 K1_A2")
    a.e("v_lshl_add_u32 v8, v9, 4, v8      ; Q,V: + t*16")
    a.e("s_branch K1_A3")
    a.label("K1_A2")
    a.e("v_lshlrev_b32 v8, 4, v1")
    a.label("K1_A3")
    a.e("s_cmp_eq_u32 s21, 1")
    a.e("s_cbranch_scc1 K1_KO_V")
    acc2 = lambda j, c: 128 + 16 * j + 4 * c
    vq0 = list(vq)
    for var in ("N", "V"):
        a.block(f"k1_ko_{var}")
        if var == "V": a.label("K1_KO_V")
        vq = list(vq0)
        def vwait(*need):
            nonlocal vq
            last = max(i for i, q in enumerate(vq) if q in need)
            a.e(f"s_waitcnt vmcnt({len(vq) - 1 - last})")
            vq = vq[last + 1:]
        def wwrites(g): return [f"ds_write_b128 v14, a[{16*ks+4*q}:{16*ks+4*q+3}] offset:{(ks&1)*4096 + q*1024}" for ks in (2*g, 2*g+1) for q in range(4)]
        def wtr(g): return [f"ds_read_b64_tr_b16 a[{16*ks+4*c+2*e4}:{16*ks+4*c+2*e4+1}], v{5 + (c & 1)} offset:{(ks&1)*4096 + (c >> 1)*2048 + e4*256}" for ks in (2*g, 2*g+1) for c in range(4) for e4 in range(2)]
        def xreads(ks):
            out = []
            X = 16 if ks % 2 == 0 else 48
            for j in range(8):
                t, tt = j >> 1, j & 1
                base = {(0, 0): "v3", (0, 1): "v4", (1, 0): "v12", (1, 1): "v13"}[(t >> 1, ks & 1)]
                out.append(f"ds_read_b128 v[{X+4*j}:{X+4*j+3}], {base} offset:{(t&1)*32768 + (ks >> 1)*4096 + tt*2048}")
            return out
        vwait(("W", 0))
        if var == "N": stamp(a, 5)
        for o in wwrites(0): a.e(o)
        a.e("s_waitcnt lgkmcnt(0)")
        for o in wtr(0): a.e(o)
        for sl in range(8):
            if sl < 7: vwait(("T", sl), ("W", sl + 1))
            else: vwait(("T", sl))
            if sl == 4 and var == "N": stamp(a, 7)
            a.e("s_barrier")
            for o in xreads(2 * sl): a.e(o)
            vb = []
            if sl >= 1:
                vb += [slab_dma(t, sl - 1) for t in (4, 5, 6)]; vq += [("N", sl - 1)] * 3
            if sl + KL <= 7:
                vb += group_ops(sl + KL); vq += [("W", sl + KL)] * 8 + [("T", sl + KL)] * 4
            for ks in (2 * sl, 2 * sl + 1):
                a.e("s_waitcnt lgkmcnt(0)")
                side = []
                if ks % 2 == 0:
                    side = (wwrites(sl + 1) if sl < 7 else []) + xreads(ks + 1)
                else:
                    side = wtr(sl + 1) if sl < 7 else []
                half = (len(vb) + 1) // 2
                vv = vb[:half] if ks % 2 == 0 else vb[half:]
                fill = {}
                for n, o in enumerate(side): fill.setdefault((n * 30) // max(len(side), 1), []).append(o)
                for n, bnd in enumerate(vv): fill.setdefault(1 + (n * 30) // max(len(vv), 1), []).extend(bnd)
                X = 16 if ks % 2 == 0 else 48
                m = 0
                for j in range(8):
                    for c in range(4):
                        d = acc2(j, c); w = 16 * ks + 4 * c
                        cin = "0" if ks == 0 else f"v[{d}:{d+3}]"
                        if var == "V": a.e(f"v_mfma_f32_16x16x32_bf16 v[{d}:{d+3}], v[{X+4*j}:{X+4*j+3}], a[{w}:{w+3}], {cin}")
                        else: a.e(f"v_mfma_f32_16x16x32_bf16 v[{d}:{d+3}], a[{w}:{w+3}], v[{X+4*j}:{X+4*j+3}], {cin}")
                        for o in fill.get(m, []): a.e(o)
                        m += 1
        a.e("s_barrier")
        stamp(a, 1)
        for t in (4, 5, 6):
            for o in slab_dma(t, 7): a.e(o)
        a.e("s_mov_b32 s24, 0x38000")
        a.e("s_add_u32 s26, s26, 0x18000")
        if var == "N":
            a.e("s_cmp_eq_u32 s21, 2")
            a.e("s_cbranch_scc1 K1_EB_Q")
            a.e("s_cmp_eq_u32 s21, 3")
            a.e("s_cbranch_scc1 K1_EB_G")
            a.e("s_branch K1_EB_K")
        else:
            a.e("s_branch K1_EB_V")
    for typ in "KVQG":
        a.block(f"k1_eb_{typ}")
        a.label(f"K1_EB_{typ}")
        nst = 0
        for t in range(4):
            for tt in range(2):
                accf = lambda tt_, c, j=2 * t + tt: acc2(j, c)
                ops = make_epi(typ, stflag, accf, tt, "s25")
                prev = None
                for o in ops:
                    ins = Ins(o)
                    if prev is not None and prev.kind == "trans" and ins.kind == "valu" and set(prev.wr) & set(ins.rd): a.e("s_nop 0")
                    a.e(o); prev = ins
                    if o.startswith("buffer_store"): nst += 1
                if typ == "G": a.e("s_add_u32 s25, s25, 44032")
            if typ != "G": a.e("s_add_u32 s25, s25, 8192")
        a.e(f"s_waitcnt vmcnt({1 + nst})")
        a.e("s_barrier")
        stamp(a, 2)
        for f in range(3):
            xb = XB + 4 * f
            a.e(f"ds_read_b128 v[{xb}:{xb+3}], {'v3' if f % 2 == 0 else 'v4'} offset:{(f >> 1)*4096}")
        a.e("s_mov_b32 s23, 12")
        a.e(f"s_branch K1_LOOP_{typ}")
    for typ in "KVQG":
        a.block(f"k1_loop_{typ}")
        a.raw(".p2align 6")
        a.label(f"K1_LOOP_{typ}")
        e1 = k1_period(a, typ, stflag)
        a.e("s_sub_u32 s23, s23, 1")
        a.e("s_cmp_lg_u32 s23, 0")
        a.e(f"s_cbranch_scc1 K1_LOOP_{typ}")
        a.block(f"k1_tail_{typ}")
        a.e("s_nop 7")
        stamp(a, 3)
        for o in e1: a.e(o)
        if common.DIAG:
            a.e("s_waitcnt vmcnt(0)")
            stamp(a, 4)
            stamp_flush(a, 1, 9)
        a.e("s_endpgm")
    gen_aux(a)
    a.cur = None
    a.label("K1_END")
    a.e("s_endpgm")
    return kernel_desc(name, 512, 96, 256)

def check_k1(a):
    probs = []
    for typ in "KVQG":
        tr = a.blocks["k1_pro"] + a.blocks["k1_ko_V" if typ == "V" else "k1_ko_N"] + a.blocks[f"k1_eb_{typ}"] + a.blocks[f"k1_loop_{typ}"] * 3 + a.blocks[f"k1_tail_{typ}"]
        probs += check_trace(tr, "k1" + typ)
    probs += check_trace(a.blocks["k1_pro"][:40] + a.blocks["k1_aux"], "k1aux")
    return probs
```

```python
from common import *
import common, os
from k0 import ln_rows
ST_FLAG = ""
FUSE_LN = False
WFLAG = os.environ.get('WFLAG', '')
XB = 16
ACC = [48, 64]
TMP = 80

def cvt(dst, s0, s1): return f"v_cvt_pk_bf16_f32 v{dst}, v{s0}, v{s1}"
def make_epi(typ, stflag, acc, tt, soff):
    def st(q, soff, off): return f"buffer_store_dwordx4 v[{q}:{q+3}], v8, s[16:19], {soff} offen offset:{off}{stflag}"
    ops = []
    if typ in "KQ":
        for pr in range(2):
            q = TMP + 8 * tt + 4 * pr
            if typ == "Q":
                for c in (2 * pr, 2 * pr + 1):
                    for j in range(4): ops.append(f"v_mul_f32 v{acc(tt,c)+j}, s30, v{acc(tt,c)+j}")
            for h, c in enumerate((2 * pr, 2 * pr + 1)):
                ops.append(cvt(q + 2 * h, acc(tt, c), acc(tt, c) + 1))
                ops.append(cvt(q + 2 * h + 1, acc(tt, c) + 2, acc(tt, c) + 3))
            off = pr * 2048 + tt * (128 if typ == "K" else 256)
            ops.append(st(q, soff, off))
    elif typ == "V":
        for c in range(4):
            q = TMP + 4 * c
            ops.append(cvt(q + 2 * tt, acc(tt, c), acc(tt, c) + 1))
            ops.append(cvt(q + 2 * tt + 1, acc(tt, c) + 2, acc(tt, c) + 3))
            if tt == 1:
                ops.append(st(q, soff, (c & 1) * 256 + (c >> 1) * 2048))
    else:
        T = TMP + 16
        groups = [[(c, j) for j in range(4)] for c in range(2)]
        for grp in groups:
            for n, (c, j) in enumerate(grp): ops.append(f"v_mul_f32 v{T+n}, s31, v{acc(tt,c)+j}")
            for n, (c, j) in enumerate(grp): ops.append(f"v_exp_f32 v{T+n}, v{T+n}")
            for n, (c, j) in enumerate(grp): ops.append(f"v_add_f32 v{T+n}, 1.0, v{T+n}")
            for n, (c, j) in enumerate(grp): ops.append(f"v_rcp_f32 v{T+n}, v{T+n}")
            for n, (c, j) in enumerate(grp): ops.append(f"v_mul_f32 v{acc(tt,c)+j}, v{acc(tt,c)+j}, v{acc(tt,c+2)+j}")
            for n, (c, j) in enumerate(grp): ops.append(f"v_mul_f32 v{acc(tt,c)+j}, v{acc(tt,c)+j}, v{T+n}")
            c = grp[0][0]
            q = TMP + 4 * tt
            ops.append(cvt(q + 2 * c, acc(tt, c), acc(tt, c) + 1))
            ops.append(cvt(q + 2 * c + 1, acc(tt, c) + 2, acc(tt, c) + 3))
        ops.append(st(TMP + 4 * tt, soff, 0))
    return ops

def k1_period(a, typ, stflag):
    fill = {}
    def acc(tt, c): return ACC[tt] + 4 * c
    mf = []
    for tt in range(2):
        for ks in range(16):
            f = tt * 16 + ks
            xb = XB + 4 * (f % 4)
            for c in range(4):
                w = 16 * ks + 4 * c
                d = acc(tt, c)
                cin = "0" if ks == 0 else f"v[{d}:{d+3}]"
                if typ == "V":
                    mf.append(f"v_mfma_f32_16x16x32_bf16 v[{d}:{d+3}], v[{xb}:{xb+3}], a[{w}:{w+3}], {cin}")
                else:
                    mf.append(f"v_mfma_f32_16x16x32_bf16 v[{d}:{d+3}], a[{w}:{w+3}], v[{xb}:{xb+3}], {cin}")
    pre = {}
    for f in range(3, 35):
        ff = f % 32
        tt, ks = ff // 16, ff % 16
        xb = XB + 4 * (f % 4)
        base = "v3" if ks % 2 == 0 else "v4"
        off = (ks >> 1) * 4096 + tt * 2048
        idx = 4 * (f - 3)
        rd = f"ds_read_b128 v[{xb}:{xb+3}], {base} offset:{off}"
        if f == 32:
            fill.setdefault(idx - 3, []).append("v_add_u32 v3, 0x8000, v3")
            fill.setdefault(idx - 2, []).append("v_and_b32 v3, 0x1ffff, v3")
            fill.setdefault(idx - 1, []).append("v_xor_b32 v4, 64, v3")
        fill.setdefault(idx, []).append(rd)
    for f in range(32):
        pre.setdefault(4 * f, []).append("s_waitcnt lgkmcnt(2)")
    epi = lambda tt, soff: make_epi(typ, stflag, acc, tt, soff)
    e1 = epi(1, "s27" if typ != "G" else "s29")
    e0 = epi(0, "s25")
    spread(fill, e1, 3, 58)
    dma = []
    for slab in range(8):
        m0 = "s_mov_b32 m0, s26" if slab == 0 else "s_add_u32 m0, m0, 3968"
        dma.append((m0, f"buffer_load_dwordx4 v2, s[4:7], s24 offen offset:{slab*128} lds"))
    spread(fill, e0, 67, 104)
    for n, (m0, ld) in enumerate(dma):
        g = 106 + 2 * n
        fill.setdefault(g, []).append(m0)
        fill.setdefault(g + 1, []).append(ld)
    book = ["s_add_u32 s24, s24, 0x8000", "s_add_u32 s26, s26, 0x8000", "s_and_b32 s26, s26, 0x1ffff"]
    if typ == "G":
        book += ["s_add_u32 s29, s25, 44032", "s_add_u32 s25, s25, 88064"]
    else:
        book += ["s_mov_b32 s27, s25", "s_add_u32 s25, s25, 8192"]
    fill.setdefault(124, []).extend(book[:3]); fill.setdefault(125, []).extend(book[3:])
    nst1 = sum(1 for o in e1 if o.startswith("buffer_store")); nst0 = sum(1 for o in e0 if o.startswith("buffer_store"))
    N = nst1 + nst0 + 8 + nst1
    pre.setdefault(64, []).insert(0, f"s_waitcnt vmcnt({N})")
    pre[64].insert(1, "s_barrier")
    for i, m in enumerate(mf):
        for p in pre.get(i, []): a.e(p)
        a.e(m)
        for p in fill.get(i, []): a.e(p)
    return e1

def ln_finish(a):
    ln_rows(a, 2, 100, 108, 44)
    a.e(f"s_add_u32 s68, s52, {XN}")
    a.e("s_addc_u32 s69, s53, 0")
    a.e("s_and_b32 s69, s69, 0xffff")
    a.e("buffer_store_dwordx4 v[100:103], v99, s[68:71], s33 offen sc1")
    a.e("buffer_store_dwordx4 v[104:107], v99, s[68:71], s33 offen offset:1024 sc1")
    a.e("s_waitcnt vmcnt(0)")
    a.e("s_barrier")
    l = a.newlabel("K1_SIG")
    a.e("s_cmp_lg_u32 s20, 0")
    a.e(f"s_cbranch_scc1 {l}")
    a.e("s_lshr_b32 s32, s2, 4")
    a.e("s_lshl_b32 s32, s32, 4")
    a.e("v_mov_b32 v98, s32")
    a.e("v_mov_b32 v97, 1")
    a.e("s_mov_b64 exec, 1")
    a.e("global_atomic_add v98, v97, s[34:35] sc1")
    a.e("s_mov_b64 exec, -1")
    a.label(l)

def poll_xn(a):
    a.e("v_and_b32 v98, 3, v1")
    a.e("s_lshl_b32 s32, s56, 2")
    a.e("v_add_u32 v98, s32, v98")
    a.e("v_lshlrev_b32 v98, 4, v98")
    l = a.newlabel("K1_POLL")
    a.label(l)
    a.e("global_load_dword v97, v98, s[34:35] sc1")
    a.e("s_waitcnt vmcnt(0)")
    a.e("v_cmp_ne_u32 vcc, 16, v97")
    a.e("s_nop 4")
    a.e(f"s_cbranch_vccnz {l}")

def gen_aux(a):
    a.block("k1_aux")
    a.label("K1_AUX")
    if FUSE_LN:
        a.e("s_waitcnt vmcnt(0)")
        ln_finish(a)
    a.e(f"s_load_dwordx2 s[40:41], s[0:1], {KA['wo']}")
    a.e(f"s_load_dwordx2 s[42:43], s[0:1], {KA['wd']}")
    a.e("s_sub_u32 s57, s54, 4")
    a.e("s_lshl_b32 s57, s57, 2")
    a.e("s_cmp_eq_u32 s55, 7")
    a.e("s_cselect_b32 s57, s57, 16")
    a.e("s_add_u32 s57, s57, s56")
    a.e("s_lshl_b32 s57, s57, 2")
    a.e("s_add_u32 s57, s57, s20")
    a.e(f"s_mul_i32 s58, s20, 40960")
    a.e("s_waitcnt lgkmcnt(0)")
    srd(a, "s40", "s41", 0x400000, 4)
    srd(a, "s42", "s43", 1376 * 1024, 8)
    a.e(f"s_add_u32 s16, s52, {WF}"); a.e("s_addc_u32 s17, s53, 0"); a.e("s_and_b32 s17, s17, 0xffff")
    a.e(f"s_mov_b32 s18, {8*172*4096}"); a.e("s_mov_b32 s19, 0x20000")
    a.e("v_lshrrev_b32 v9, 1, v1")
    a.e("v_and_b32 v18, 1, v1")
    a.e("v_lshlrev_b32 v18, 4, v18")
    for r7 in range(8):
        a.e(f"v_xor_b32 v{10+r7}, {r7}, v9")
        a.e(f"v_lshl_add_u32 v{10+r7}, v{10+r7}, 5, v18")
    a.e("v_and_b32 v2, 15, v1              ; i")
    a.e("v_lshrrev_b32 v3, 4, v1           ; g")
    a.e("v_lshrrev_b32 v4, 2, v2")
    a.e("v_lshl_add_u32 v5, v3, 2, v4      ; r0")
    a.e("v_and_b32 v6, 7, v5               ; f")
    a.e("v_lshlrev_b32 v5, 10, v5")
    a.e("v_and_b32 v7, 3, v2")
    a.e("v_lshl_add_u32 v5, v7, 3, v5")
    a.e("v_add_u32 v5, s58, v5")
    for b in range(8):
        a.e(f"v_xor_b32 v7, {b}, v6")
        a.e(f"v_lshl_add_u32 v{20+b}, v7, 5, v5")
    a.e("v_lshlrev_b32 v8, 4, v1           ; lane*16")
    if os.environ.get("NOAUX"): a.e("s_mov_b32 s57, 200")
    a.label("K1_AUXL")
    a.e("s_cmp_ge_u32 s57, 171")
    a.e("s_cbranch_scc1 K1_AUXE")
    a.e("s_cmp_lt_u32 s57, 128")
    for k in range(4): a.e(f"s_cselect_b32 s{12+k}, s{4+k}, s{8+k}")
    a.e("s_mov_b32 s15, 0x20000")
    a.e("s_and_b32 s59, s57, 127")
    a.e("s_lshl_b32 s59, s59, 15")
    a.e("s_mov_b32 m0, s58")
    a.e("s_nop 0")
    for r in range(32):
        a.e(f"buffer_load_dwordx4 v{10+(r&7)}, s[12:15], s59 offen lds")
        a.e("s_add_u32 m0, m0, 1024")
        a.e("s_add_u32 s59, s59, 1024")
    a.e("s_lshl_b32 s60, s57, 12           ; u*4096")
    a.e("s_waitcnt vmcnt(0)")
    for N in range(8):
        q = 64 + 16 * (N & 3)
        for mt in range(4):
            cidx = 4 * N + mt
            for e4 in range(2):
                a.e(f"ds_read_b64_tr_b16 v[{q+4*mt+2*e4}:{q+4*mt+2*e4+1}], v{20+(cidx&7)} offset:{(cidx>>3)*256 + e4*16384}")
        a.e("s_waitcnt lgkmcnt(0)")
        for mt in range(4):
            a.e(f"buffer_store_dwordx4 v[{q+4*mt}:{q+4*mt+3}], v8, s[16:19], s60 offen offset:{mt*1024} sc1")
        a.e(f"s_add_u32 s60, s60, {172*4096}")
    a.e("s_waitcnt vmcnt(0)")
    a.e("s_add_u32 s57, s57, 80")
    a.e("s_branch K1_AUXL")
    a.label("K1_AUXE")
    if common.DIAG:
        stamp(a, 4)
        stamp_flush(a, 1, 9)
    a.e("s_endpgm")

def gen_k1(a, name="proj_kernel", stflag=""):
    kernel_header(a, name)
    a.block("k1_pro")
    a.e("s_cmp_ge_u32 s2, 256")
    a.e("s_cbranch_scc1 K1_END")
    stamp(a, 0)
    a.e(f"s_load_dwordx4 s[36:39], s[0:1], {KA['x']}")
    a.e(f"s_load_dwordx4 s[40:43], s[0:1], {KA['wq']}")
    a.e(f"s_load_dwordx2 s[44:45], s[0:1], {KA['wuv']}")
    a.e(f"s_load_dwordx4 s[48:51], s[0:1], {KA['wg']}")
    a.e(f"s_load_dwordx2 s[52:53], s[0:1], {KA['ws']}")
    a.e(f"s_load_dwordx2 s[34:35], s[0:1], {KA['dbg']}")
    a.e("v_lshrrev_b32 v1, 6, v0")
    a.e("s_nop 0")
    a.e("v_readfirstlane_b32 s20, v1")
    a.e("v_and_b32 v1, 63, v0              ; lane")
    a.e("s_and_b32 s54, s2, 7              ; x")
    a.e("s_lshr_b32 s55, s2, 3             ; j")
    a.e("s_and_b32 s56, s55, 3             ; m")
    a.e("s_lshr_b32 s55, s55, 2            ; pi")
    a.e("s_waitcnt lgkmcnt(0)")
    if FUSE_LN:
        srd(a, "s36", "s37", 0x200000, 68)
        a.e("v_lshlrev_b32 v99, 4, v1")
        a.e("s_lshl_b32 s64, s20, 11")
        a.e("v_add_u32 v99, s64, v99")
        a.e("s_lshl_b32 s33, s2, 13")
        a.e("buffer_load_dwordx4 v[100:103], v99, s[68:71], s33 offen")
        a.e("buffer_load_dwordx4 v[104:107], v99, s[68:71], s33 offen offset:1024")
    a.e("s_cmp_ge_u32 s54, 4")
    a.e("s_cbranch_scc1 K1_XN")
    a.e("s_lshl_b32 s57, s54, 3")
    a.e("s_add_u32 s57, s57, s55           ; p 0..31")
    a.e("s_mov_b32 s60, s38")
    a.e("s_mov_b32 s61, s39")
    a.e("s_cmp_lt_u32 s57, 16")
    a.e("s_cselect_b32 s21, 0, 1           ; type K=0 / V=1")
    a.e("s_cselect_b32 s62, s42, s44")
    a.e("s_cselect_b32 s63, s43, s45       ; W")
    a.e(f"s_mov_b32 s59, {VF}")
    a.e(f"s_cselect_b32 s58, {KF}, s59")
    a.e("s_and_b32 s57, s57, 15            ; panel")
    a.e("s_branch K1_QKV")
    a.label("K1_XN")
    a.e("s_cmp_eq_u32 s55, 7")
    a.e("s_cbranch_scc1 K1_AUX")
    a.e("s_sub_u32 s57, s54, 4")
    a.e("s_mul_i32 s57, s57, 7")
    a.e("s_add_u32 s57, s57, s55           ; q")
    a.e("s_cmp_ge_u32 s57, 27")
    a.e("s_cbranch_scc1 K1_AUX")
    a.e(f"s_add_u32 s60, s52, {XN}")
    a.e("s_addc_u32 s61, s53, 0")
    a.e("s_cmp_ge_u32 s57, 16")
    a.e("s_cbranch_scc1 K1_GU")
    a.e("s_mov_b32 s21, 2")
    a.e("s_mov_b32 s62, s40")
    a.e("s_mov_b32 s63, s41")
    a.e(f"s_mov_b32 s58, {QF}")
    a.label("K1_QKV")
    a.e("s_mov_b32 s22, 8192")
    a.e("s_lshl_b32 s59, s57, 9")
    a.e("s_lshl_b32 s64, s20, 7")
    a.e("s_add_u32 s59, s59, s64")
    a.e("s_add_u32 s8, s62, s59")
    a.e("s_addc_u32 s9, s63, 0")
    a.e("s_and_b32 s9, s9, 0xffff")
    a.e("s_sub_u32 s10, 0x400000, s59")
    a.e("s_mov_b32 s11, 0x20000")
    a.e("s_add_u32 s12, s8, 64")
    a.e("s_addc_u32 s13, s9, 0")
    a.e("s_sub_u32 s14, s10, 64")
    a.e("s_mov_b32 s15, 0x20000")
    a.e("s_lshl_b32 s25, s57, 1")
    a.e("s_lshr_b32 s64, s20, 1")
    a.e("s_add_u32 s25, s25, s64           ; head")
    a.e("s_lshl_b32 s25, s25, 19")
    a.e("s_and_b32 s64, s20, 1")
    a.e("s_lshl_b32 s64, s64, 12")
    a.e("s_add_u32 s25, s25, s64")
    a.e("s_lshl_b32 s64, s56, 17           ; 16m*8192")
    a.e("s_add_u32 s25, s25, s64")
    a.e("s_mov_b32 s65, 0x1000000")
    a.e("s_branch K1_COMMON")
    a.label("K1_GU")
    a.e("s_mov_b32 s21, 3")
    a.e("s_sub_u32 s57, s57, 16")
    a.e("s_lshl_b32 s57, s57, 2")
    a.e("s_add_u32 s57, s57, s20           ; fs")
    a.e("s_min_u32 s57, s57, 42")
    a.e("s_mov_b32 s22, 2752")
    a.e("s_lshl_b32 s59, s57, 6")
    a.e("s_add_u32 s8, s48, s59")
    a.e("s_addc_u32 s9, s49, 0")
    a.e("s_and_b32 s9, s9, 0xffff")
    a.e(f"s_sub_u32 s10, {512*2752}, s59")
    a.e("s_mov_b32 s11, 0x20000")
    a.e("s_add_u32 s12, s50, s59")
    a.e("s_addc_u32 s13, s51, 0")
    a.e("s_and_b32 s13, s13, 0xffff")
    a.e("s_mov_b32 s14, s10")
    a.e("s_mov_b32 s15, 0x20000")
    a.e(f"s_mov_b32 s58, {HF}")
    a.e(f"s_mul_i32 s25, s56, {32*43*1024}")
    a.e("s_lshl_b32 s64, s57, 10")
    a.e("s_add_u32 s25, s25, s64")
    a.e(f"s_mov_b32 s65, {128*43*1024}")
    a.label("K1_COMMON")
    a.e("s_lshl_b32 s64, s56, 19")
    a.e("s_add_u32 s4, s60, s64")
    a.e("s_addc_u32 s5, s61, 0")
    a.e("s_and_b32 s5, s5, 0xffff")
    a.e("s_mov_b32 s6, 0x80000")
    a.e("s_mov_b32 s7, 0x20000")
    a.e("s_add_u32 s16, s52, s58")
    a.e("s_addc_u32 s17, s53, 0")
    a.e("s_and_b32 s17, s17, 0xffff")
    a.e("s_mov_b32 s18, s65")
    a.e("s_mov_b32 s19, 0x20000")
    a.e("s_mov_b32 s27, 0x80000000")
    a.e("s_mov_b32 s29, 0x80000000")
    a.e("s_mov_b32 s30, 0x3e0293ee         ; 128^-0.5*log2(e)")
    a.e("s_mov_b32 s31, 0xbfb8aa3b         ; -log2(e)")
    a.e("v_lshrrev_b32 v9, 3, v1")
    a.e("s_lshl_b32 s64, s20, 3")
    a.e("v_add_u32 v9, s64, v9")
    a.e("v_lshlrev_b32 v2, 10, v9")
    a.e("s_and_b32 s64, s20, 1")
    a.e("s_lshl_b32 s64, s64, 2")
    a.e("v_lshrrev_b32 v9, 4, v1")
    a.e("v_add_u32 v9, s64, v9")
    a.e("v_and_b32 v10, 7, v1")
    a.e("v_xor_b32 v9, v9, v10")
    a.e("v_and_b32 v9, 7, v9")
    a.e("v_lshl_add_u32 v2, v9, 4, v2")
    a.e("v_and_b32 v9, 15, v1              ; t")
    a.e("v_lshrrev_b32 v10, 4, v1          ; g")
    a.e("v_lshrrev_b32 v11, 1, v9")
    a.e("v_xor_b32 v11, v11, v10")
    a.e("v_lshlrev_b32 v11, 4, v11")
    a.e("v_lshl_add_u32 v3, v9, 7, v11")
    a.e("v_xor_b32 v4, 64, v3")
    a.e("v_lshrrev_b32 v11, 2, v9          ; i>>2")
    a.e("v_lshl_add_u32 v11, v10, 3, v11")
    a.e("v_lshlrev_b32 v11, 6, v11")
    a.e("v_and_b32 v12, 3, v9")
    a.e("v_lshl_add_u32 v11, v12, 3, v11")
    a.e("v_and_b32 v12, 1, v10")
    a.e("v_lshl_add_u32 v5, v12, 5, v11")
    a.e("s_lshl_b32 s64, s20, 15")
    a.e("s_add_u32 s64, s64, 0x8000")
    a.e("v_add_u32 v5, s64, v5")
    a.e("v_xor_b32 v6, 32, v5")
    a.e("v_lshlrev_b32 v14, 4, v1")
    a.e("v_add_u32 v14, s64, v14")
    a.e("v_add_u32 v12, 0x10000, v3")
    a.e("v_add_u32 v13, 0x10000, v4")
    a.e("v_lshrrev_b32 v11, 2, v1")
    a.e("v_mul_lo_u32 v7, v11, s22")
    a.e("v_lshrrev_b32 v11, 1, v1")
    a.e("v_lshrrev_b32 v15, 5, v1")
    a.e("v_xor_b32 v11, v11, v15")
    a.e("v_and_b32 v11, 1, v11")
    a.e("v_lshl_add_u32 v7, v11, 5, v7")
    a.e("v_and_b32 v11, 1, v1")
    a.e("v_lshl_add_u32 v7, v11, 4, v7")
    a.e("s_lshl_b32 s66, s22, 4            ; 16 rows")
    a.e("s_mov_b32 s67, 0")
    def wdma(ks):
        slot = ks % 8
        for half in range(2):
            for hf in range(2):
                srdn = "s[8:11]" if half == 0 else "s[12:15]"
                a.e(f"s_add_u32 m0, s64, {slot*4096 + half*2048 + hf*1024}")
                if hf == 0: a.e("s_mov_b32 s73, s67")
                else: a.e("s_add_u32 s73, s67, s66")
                a.e(f"buffer_load_dwordx4 v7, {srdn}, s73 offen{WFLAG} lds")
        a.e("s_add_u32 s67, s67, s66")
        a.e("s_add_u32 s67, s67, s66")
    a.e("s_lshl_b32 s26, s20, 10           ; m0 base = w*1024")
    a.e("s_mov_b32 s24, 0")
    def tdma():
        for slab in range(8):
            a.e("s_mov_b32 m0, s26" if slab == 0 else "s_add_u32 m0, m0, 3968")
            a.e("s_nop 0")
            a.e(f"buffer_load_dwordx4 v2, s[4:7], s24 offen offset:{slab*128} lds")
        a.e("s_add_u32 s24, s24, 0x8000")
        a.e("s_add_u32 s26, s26, 0x8000")
        a.e("s_and_b32 s26, s26, 0x1ffff")
    for ks in range(8): wdma(ks)
    tdma()
    stamp(a, 8)
    a.e("v_lshrrev_b32 v11, 1, v10         ; g>>1")
    a.e("v_lshlrev_b32 v8, 10, v11")
    a.e("v_and_b32 v11, 1, v10")
    a.e("v_lshl_add_u32 v8, v11, 9, v8     ; + (g&1)*512")
    a.e("s_cmp_eq_u32 s21, 0")
    a.e("s_cbranch_scc0 K1_A1")
    a.e("v_lshrrev_b32 v11, 3, v9          ; K: r=16*(t>>3)+(t&7)")
    a.e("v_lshlrev_b32 v11, 4, v11")
    a.e("v_and_b32 v15, 7, v9")
    a.e("v_add_u32 v11, v11, v15")
    a.e("v_lshl_add_u32 v8, v11, 4, v8")
    a.e("s_branch K1_A3")
    a.label("K1_A1")
    a.e("s_cmp_eq_u32 s21, 3")
    a.e("s_cbranch_scc1 K1_A2")
    a.e("v_lshl_add_u32 v8, v9, 4, v8      ; Q,V: + t*16")
    a.e("s_branch K1_A3")
    a.label("K1_A2")
    a.e("v_lshlrev_b32 v8, 4, v1")
    a.label("K1_A3")
    queue = [("W", k) for k in range(8) for _ in range(4)] + [("T", 0)] * 8
    for ks in range(16):
        last = max(i for i, q in enumerate(queue) if q == ("W", ks))
        a.e(f"s_waitcnt vmcnt({len(queue) - 1 - last})")
        queue = queue[last + 1:]
        if ks == 0: stamp(a, 5)
        slot = ks % 8
        for c in range(4):
            for e4 in range(2):
                w = 16 * ks + 4 * c + 2 * e4
                a.e(f"ds_read_b64_tr_b16 a[{w}:{w+1}], v{5 + (c & 1)} offset:{slot*4096 + (c >> 1)*2048 + e4*256}")
        if ks + 8 < 16:
            a.e("s_waitcnt lgkmcnt(0)")
            wdma(ks + 8)
            queue += [("W", ks + 8)] * 4
    a.e("s_waitcnt lgkmcnt(0)")
    stamp(a, 1)
    a.e("s_barrier")
    tdma(); tdma()
    a.e("s_waitcnt vmcnt(8)")
    a.e("s_barrier")
    stamp(a, 2)
    for f in range(3):
        xb = XB + 4 * f
        a.e(f"ds_read_b128 v[{xb}:{xb+3}], {'v3' if f % 2 == 0 else 'v4'} offset:{(f >> 1)*4096}")
    a.e("s_mov_b32 s23, 16")
    for typ, code in (("K", 0), ("V", 1), ("Q", 2)):
        a.e(f"s_cmp_eq_u32 s21, {code}")
        a.e(f"s_cbranch_scc1 K1_LOOP_{typ}")
    a.e("s_branch K1_LOOP_G")
    for typ in "KVQG":
        a.block(f"k1_loop_{typ}")
        a.raw(".p2align 6")
        a.label(f"K1_LOOP_{typ}")
        e1 = k1_period(a, typ, stflag)
        a.e("s_sub_u32 s23, s23, 1")
        a.e("s_cmp_lg_u32 s23, 0")
        a.e(f"s_cbranch_scc1 K1_LOOP_{typ}")
        a.block(f"k1_tail_{typ}")
        a.e("s_nop 7")
        stamp(a, 3)
        for o in e1: a.e(o)
        if common.DIAG:
            a.e("s_waitcnt vmcnt(0)")
            stamp(a, 4)
            stamp_flush(a, 1, 9)
        a.e("s_endpgm")
    gen_aux(a)
    a.cur = None
    a.label("K1_END")
    a.e("s_endpgm")
    return kernel_desc(name, 512, 96, 256)

def check_k1(a):
    probs = []
    for typ in "KVQG":
        tr = a.blocks["k1_pro"] + a.blocks[f"k1_loop_{typ}"] * 3 + a.blocks[f"k1_tail_{typ}"]
        probs += check_trace(tr, "k1" + typ)
    probs += check_trace(a.blocks["k1_pro"][:40] + a.blocks["k1_aux"], "k1aux")
    return probs
```

```python
from common import *
import common, os
EXP = os.environ.get('K2EXP', '')
QL, QS, KX, VX, QP = 0, 32, 64, 128, 192
OB = [96, 112, 160, 176]
SA, SB, PA, PB, TRI, NEG = 32, 48, 64, 72, 80, 96
LL, LS, LB = 112, 114, 116
OL, OS = 128, 192
VK, VV, VLANE, VT = 2, 3, 4, 5
CSTFLAG = ""
PRO_W0 = 30
PRO_W8 = 32
PREFETCH = False

def mf(d, a_, b_, c): return f"v_mfma_f32_32x32x16_bf16 v[{d}:{d+15}], {a_}, {b_}, {c}"
def A4(b): return f"a[{b}:{b+3}]"
def V4(b): return f"v[{b}:{b+3}]"

def qk(S, Q, K):
    return [mf(S, A4(K + 4*s), A4(Q + 4*s), "0" if s == 0 else f"v[{S}:{S+15}]") for s in range(8)]
def pv(P, V, O):
    if O == "B":
        return [f"v_mfma_f32_32x32x16_bf16 a[{OB[T]}:{OB[T]+15}], {A4(V + 4*(2*T + ks))}, {V4(P + 4*ks)}, a[{OB[T]}:{OB[T]+15}]" for ks in range(2) for T in range(4)]
    return [mf(O + 16*T, A4(V + 4*(2*T + ks)), V4(P + 4*ks), f"v[{O+16*T}:{O+16*T+15}]") for ks in range(2) for T in range(4)]

def sm_ops(S, P, L):
    ops = []
    for r in range(16):
        ops.append(dict(t=f"v_exp_f32 v{S+r}, v{S+r}", c=8, k="e", r=r, deps=[]))
    for r in range(16):
        ops.append(dict(t=f"v_add_f32 v{L+(r&1)}, v{L+(r&1)}, v{S+r}", c=4, k="a", r=r, deps=[r] + ([16 + r - 2] if r >= 2 else [])))
    for k in range(8):
        ops.append(dict(t=f"v_cvt_pk_bf16_f32 v{P+k}, v{S+2*k}, v{S+2*k+1}", c=4, k="c0" if k < 4 else "c1", r=k, deps=[2*k, 2*k+1]))
    return ops

def try_place(ops, start, end, c0_min, c1_min, used, b):
    used = dict(used); out = {}; pos = {}
    seq = 0
    for g in range(start, end + 1):
        room = b - used.get(g % 32, 0)
        last_e = None
        while True:
            best = None
            for n, o in enumerate(ops):
                if n in pos: continue
                if o["k"] == "c0" and g < c0_min: continue
                if o["k"] == "c1" and g < c1_min: continue
                if any(d not in pos for d in o["deps"]): continue
                if last_e is not None and last_e in o["deps"]: continue
                if o["c"] > room: continue
                pr = {"c0": 0, "c1": 0, "a": 1, "e": 2}[o["k"]]
                key = (pr, o["r"])
                if best is None or key < best[0]: best = (key, n)
            if best is None: break
            n = best[1]; o = ops[n]
            pos[n] = g; out.setdefault(g, []).append(o["t"]); room -= o["c"]; used[g % 32] = used.get(g % 32, 0) + o["c"]
            last_e = n if o["k"] == "e" else None
    return (out, used) if len(pos) == len(ops) else None

HEAD = lambda o: (o["k"] == "e" and o["r"] < 10) or (o["k"] == "a" and o["r"] < 8) or o["k"] == "c0"
def subset(ops, keep):
    idx = [n for n, o in enumerate(ops) if keep(o)]
    m = {n: i for i, n in enumerate(idx)}
    return [dict(o, deps=[m[d] for d in o["deps"] if d in m]) for n, o in enumerate(ops) if n in m]
def place3(A, Bh, Bt, used):
    res = []
    u = dict(used)
    for b in range(8, 41):
        rt = try_place(subset(Bt, lambda o: not HEAD(o)), 0, 7, 0, 0, u, b)
        if rt is not None: break
    u = rt[1]; bt = b
    for b in range(8, 41):
        ra = try_place(A, 10, 31, 19, 23, u, b)
        if ra is None: continue
        rb = try_place(subset(Bh, HEAD), 18, 31, 27, 32, ra[1], b)
        if rb is None: continue
        return ra[0], rb[0], rt[0], (bt, b)
    raise AssertionError("no placement")

def kread(buf): return [f"ds_read_b128 {A4(buf+4*s)}, v{VK} offset:{s*1024}" for s in range(8)]
def vread(buf): return [f"ds_read_b128 {A4(buf+4*(2*T+ks))}, v{VV} offset:{(2*T+ks)*1024}" for ks in range(2) for T in range(4)]
KADV = [f"v_add_u32 v{VK}, s35, v{VK}", f"v_and_b32 v{VK}, 0xffff, v{VK}"]
VADV = [f"v_add_u32 v{VT}, s34, v{VV}", f"v_bfi_b32 v{VV}, s31, v{VT}, v{VV}"]
def dma(kind):
    if kind == "K":
        return ["s_mov_b32 m0, s27", "s_add_u32 s27, s27, 0x2000",
                f"buffer_load_dwordx4 v{VLANE}, s[4:7], s25 offen lds", f"buffer_load_dwordx4 v{VLANE}, s[4:7], s25 offen offset:1024 lds",
                "s_and_b32 s27, s27, 0xffff", "s_add_u32 s25, s25, 0x2000"]
    return ["s_mov_b32 m0, s28", "s_add_u32 s28, s28, 0x2000",
            f"buffer_load_dwordx4 v{VLANE}, s[8:11], s26 offen lds", f"buffer_load_dwordx4 v{VLANE}, s[8:11], s26 offen offset:1024 lds",
            "s_and_b32 s28, s28, 0xffff", "s_or_b32 s28, s28, 0x10000", "s_add_u32 s26, s26, 0x2000"]

def period(a, kind, masked):
    hasQK = kind != "FIN"; hasPV = kind != "PRO"
    if kind in ("PRO", "P1"):
        M = qk(SA, QL, KX) + qk(SB, QS, KX) + pv(PA, VX, OL) + pv(PB, VX, OS); lA, lBh, lBt = LL, LS, LS
    elif kind == "TR":
        M = qk(SA, QL, KX) + qk(SB, QP, KX) + pv(PA, VX, OL) + pv(PB, VX, OS); lA, lBh, lBt = LL, LB, LS
    else:
        M = qk(SA, QL, KX) + qk(SB, QP, KX) + pv(PA, VX, OL) + pv(PB, VX, "B"); lA, lBh, lBt = LL, LB, LB
    fill, pre = {}, {}
    def add(d, g, ops):
        d.setdefault(g, []).extend(ops if isinstance(ops, list) else [ops])
    nread = {}
    def reads(lst, gaps, adv):
        for n, op in enumerate(lst):
            g = gaps[n * len(gaps) // len(lst)]
            add(fill, g, op); nread[g] = nread.get(g, 0) + 1
        add(fill, gaps[-1], adv[0]); add(fill, gaps[-1] + 1 if gaps[-1] < 31 else 31, adv[1])
    if kind == "PRO":
        for n, kk in enumerate("KKKVKVKVKVKV"): add(fill, n, dma(kk))
        for s_ in range(8):
            add(fill, 12 + s_ // 2, f"buffer_load_dwordx4 {A4(QP+4*s_)}, v{VLANE}, s[12:15], {'s62' if s_ < 4 else 's63'} offen offset:{(s_ & 3)*1024}")
        add(pre, 8, "s_waitcnt vmcnt(16)")
        add(pre, 16, "s_waitcnt vmcnt(30)"); add(pre, 16, "s_barrier")
        reads(kread(KX), list(range(16, 24)), KADV)
    elif kind in ("P1", "TR", "P2"):
        vm = {"P1": 20, "TR": 16, "P2": 14}[kind]
        add(pre, 0, f"s_waitcnt vmcnt({vm}) lgkmcnt(0)"); add(pre, 0, "s_barrier")
        reads(vread(VX), list(range(0, 12)), VADV); add(pre, 16, "s_waitcnt lgkmcnt(0)")
        reads(kread(KX), list(range(16, 28)), KADV)
    else:
        add(pre, 0, "s_waitcnt vmcnt(14) lgkmcnt(0)"); add(pre, 0, "s_barrier")
        add(pre, 0, vread(VX))
        add(pre, 16, "s_waitcnt lgkmcnt(0)")
    if kind == "PRO":
        d = dma("K") + dma("V"); spread(fill, d, 17, 21)
    elif kind in ("P1", "TR"):
        d = dma("K") + dma("V"); spread(fill, d, 6, 10)
    elif kind == "P2":
        spread(fill, dma("K") + dma("V"), 6, 10); spread(fill, dma("K") + dma("V"), 11, 17)
    if kind == "TR" and PREFETCH:
        add(fill, 12, ["buffer_load_dword v12, v10, s[48:51], 0 offen", "buffer_load_dword v13, v11, s[52:55], 0 offen"])
    used = {}
    for g in range(32): used[g] = 4 * nread.get(g, 0)
    A = sm_ops(SA, PA, lA); Bh = sm_ops(SB, PB, lBh); Bt = sm_ops(SB, PB, lBt)
    pa, pb, pt, bud = place3(A, Bh, Bt, used)
    if common.VERB: print("period", kind, masked, "budget", bud)
    if kind != "PRO":
        for g, ops in sorted(pt.items()):
            if kind != "FIN": add(fill, g, ops)
            else: add(pre, 0, ops)
    if hasQK:
        for g, ops in pa.items(): add(fill, g, ops)
        for g, ops in pb.items(): add(fill, g, ops)
    if masked:
        add(fill, 28, "s_add_u32 s29, s29, s33"); add(fill, 28, "s_add_u32 s30, s30, s33")
    state = {"prev": None}
    def E(p):
        if kind in ("P1", "P2", "TR"):
            if "noexp" in EXP and p.startswith("v_exp"): return
            if "noadd" in EXP and p.startswith("v_add_f32"): return
            if "nocvt" in EXP and p.startswith("v_cvt"): return
            if "nods" in EXP and p.startswith("ds_read"): return
            if "nodma" in EXP and p.startswith("buffer_load_dwordx4"): return
            if "nobar" in EXP and p.startswith("s_barrier"): return
            if "nomfma" in EXP and p.startswith("v_mfma"): return
        ins = Ins(p)
        pv_ = state["prev"]
        if pv_ is not None and pv_.kind == "trans" and ins.kind == "valu" and set(pv_.wr) & set(ins.rd): a.e("s_nop 0")
        a.e(p); state["prev"] = ins
    for i, m in enumerate(M):
        for p in pre.get(i, []): E(p)
        present = (hasQK if i < 16 else hasPV)
        if present:
            if masked and i in (0, 8):
                S = SA if i == 0 else SB; rel = "s29" if i == 0 else "s30"; wv = "s20" if i == 0 else "s60"
                base = m.rsplit(",", 1)[0]
                l1, l2, lj = a.newlabel("K2T"), a.newlabel("K2N"), a.newlabel("K2J")
                a.e(f"s_cmp_lt_i32 {rel}, {wv}")
                a.raw(f"    s_cbranch_scc0 {l1}\n    {m}\n    s_branch {lj}\n{l1}:")
                a.raw(f"    s_cmp_eq_i32 {rel}, {wv}\n    s_cbranch_scc1 {l2}\n    {base}, v[{NEG}:{NEG+15}]\n    s_branch {lj}\n{l2}:")
                a.e(f"{base}, v[{TRI}:{TRI+15}]")
                a.label(lj)
                state["prev"] = None
            else:
                E(m)
        for p in fill.get(i, []): E(p)

def ctx_addr(a):
    a.e("v_and_b32 v12, 31, v1             ; q")
    a.e("v_lshrrev_b32 v13, 5, v1          ; hh")
    a.e("v_lshrrev_b32 v8, 4, v12")
    a.e("v_lshlrev_b32 v8, 17, v8          ; (q>>4)*131072")
    a.e("v_lshl_add_u32 v8, v13, 8, v8")
    a.e("v_and_b32 v9, 15, v12")
    a.e("v_lshl_add_u32 v8, v9, 4, v8")
    a.e("s_lshl_b32 s44, s38, 12           ; head*4*1024")

def ctx_out(a, O, L, qt):
    if O == OL:
        a.e("s_waitcnt lgkmcnt(0)")
        a.e("s_barrier")
        for n in range(16):
            a.e(f"ds_read_b128 v[{32+4*n}:{32+4*n+3}], v6 offset:{n*1024}")
        a.e(f"ds_read_b32 v{LB}, v7 offset:16384")
    a.e(f"s_lshl_b32 s45, {qt}, 18       ; qtile*2*128*1024")
    a.e("s_add_u32 s45, s45, s44")
    a.e(f"v_add_f32 v{L}, v{L}, v{L+1}")
    if O == OL:
        a.e("s_waitcnt lgkmcnt(0)")
        a.e(f"v_add_f32 v{L}, v{L}, v{LB}")
    a.e(f"v_mov_b32 v10, v{L}")
    a.e("s_nop 1")
    a.e(f"v_permlane32_swap_b32 v{L}, v10")
    a.e("s_nop 1")
    a.e(f"v_add_f32 v{L}, v{L}, v10")
    a.e(f"v_rcp_f32 v10, v{L}")
    a.e("s_nop 0")
    a.e("v_mov_b32 v11, v10")
    for T in range(4):
        for c in range(2):
            q = 16 + 4 * ((2 * T + c) % 4)
            for h, i in enumerate((c, c + 2)):
                b = O + 16 * T + 4 * i
                for j in (0, 2):
                    if O == OL: a.e(f"v_pk_add_f32 v[{b+j}:{b+j+1}], v[{b+j}:{b+j+1}], v[{32+16*T+4*i+j}:{32+16*T+4*i+j+1}]")
                for j in (0, 2): a.e(f"v_pk_mul_f32 v[{b+j}:{b+j+1}], v[{b+j}:{b+j+1}], v[10:11]")
                a.e(f"v_cvt_pk_bf16_f32 v{q+2*h}, v{b}, v{b+1}")
                a.e(f"v_cvt_pk_bf16_f32 v{q+2*h+1}, v{b+2}, v{b+3}")
            a.e(f"buffer_store_dwordx4 v[{q}:{q+3}], v8, s[16:19], s45 offen offset:{T*1024 + c*512}{CSTFLAG}")

def gen_k2(a, name="attn_kernel"):
    kernel_header(a, name)
    a.block("k2_pre")
    a.e("s_cmp_ge_u32 s2, 256")
    a.e("s_cbranch_scc1 K2_END")
    stamp(a, 0)
    a.e(f"s_load_dwordx2 s[36:37], s[0:1], {KA['ws']}")
    a.e(f"s_load_dwordx2 s[56:57], s[0:1], {KA['wo']}")
    a.e(f"s_load_dwordx2 s[58:59], s[0:1], {KA['wd']}")
    a.e("v_lshrrev_b32 v1, 6, v0")
    a.e("s_nop 0")
    a.e("v_readfirstlane_b32 s20, v1       ; wave")
    a.e("v_and_b32 v1, 63, v0              ; lane")
    a.e("s_and_b32 s38, s2, 7")
    a.e("s_lshr_b32 s39, s2, 3")
    a.e("s_and_b32 s21, s39, 7             ; i")
    a.e("s_lshr_b32 s39, s39, 3")
    a.e("s_lshl_b32 s38, s38, 2")
    a.e("s_add_u32 s38, s38, s39           ; head")
    a.e("s_lshl_b32 s22, s21, 2")
    a.e("s_add_u32 s22, s22, 4             ; n1 = 4(i+1)")
    a.e("s_lshl_b32 s23, s21, 2")
    a.e("s_sub_u32 s23, 64, s23            ; nL = 4(16-i)")
    a.e("s_lshl_b32 s39, s38, 19           ; head*512K")
    a.e(f"v_lshlrev_b32 v{VLANE}, 4, v1")
    a.e("s_waitcnt lgkmcnt(0)")
    for srdn, reg in ((4, KF), (8, VF), (12, QF)):
        a.e(f"s_add_u32 s40, s39, {reg}")
        a.e(f"s_add_u32 s{srdn}, s36, s40")
        a.e(f"s_addc_u32 s{srdn+1}, s37, 0")
        a.e(f"s_and_b32 s{srdn+1}, s{srdn+1}, 0xffff")
        if srdn == 12: a.e(f"s_mov_b32 s{srdn+2}, 0x80000")
        else: a.e(f"s_lshl_b32 s{srdn+2}, s23, 13")
        a.e(f"s_mov_b32 s{srdn+3}, 0x20000")
    a.e(f"s_add_u32 s16, s36, {CF}")
    a.e("s_addc_u32 s17, s37, 0")
    a.e("s_and_b32 s17, s17, 0xffff")
    a.e("s_mov_b32 s18, 0x1000000")
    a.e("s_mov_b32 s19, 0x20000")
    srd(a, "s56", "s57", 0x400000, 48)
    srd(a, "s58", "s59", 1376 * 1024, 52)
    a.e("s_lshl_b32 s46, s2, 2")
    a.e("s_add_u32 s46, s46, s20")
    a.e("s_lshl_b32 s47, s46, 12")
    a.e("v_lshl_add_u32 v10, v1, 6, s47")
    a.e("v_and_b32 v11, 31, v1")
    a.e("s_lshl_b32 s47, s46, 11")
    a.e("v_lshl_add_u32 v11, v11, 6, s47")
    a.e("s_sub_u32 s40, 15, s21")
    a.e("s_lshl_b32 s40, s40, 2")
    a.e("s_add_u32 s40, s40, s20           ; qtile L")
    a.e("s_lshl_b32 s41, s21, 2")
    a.e("s_add_u32 s41, s41, s20           ; qtile S")
    a.e("s_lshl_b32 s42, s40, 13")
    a.e("s_lshl_b32 s43, s41, 13")
    a.e("s_add_u32 s44, s42, 0x1000")
    a.e("s_add_u32 s45, s43, 0x1000")
    a.e("s_xor_b32 s61, s40, 1")
    a.e("s_lshl_b32 s62, s61, 13")
    a.e("s_add_u32 s63, s62, 0x1000")
    a.e("s_lshl_b32 s27, s20, 11           ; K m0 base = w*2048")
    a.e("s_or_b32 s28, s27, 0x10000        ; V m0 base")
    a.e("s_mov_b32 s25, s27")
    a.e("s_mov_b32 s26, s27")
    a.e("s_mov_b32 s31, 0xffff")
    a.e("s_mov_b32 s34, 0x2000")
    a.e("s_mov_b32 s35, 0x2000")
    a.e("s_mov_b32 s60, s20")
    a.e("s_and_b32 s64, s20, 1")
    a.e("s_lshl_b32 s64, s64, 13           ; parity * 8192")
    def qload(base, lo, hi):
        for s_ in range(8):
            a.e(f"buffer_load_dwordx4 {A4(base+4*s_)}, v{VLANE}, s[12:15], {lo if s_ < 4 else hi} offen offset:{(s_ & 3)*1024}")
    def tile(kind):
        for o in dma(kind): a.e(o)
    tile("K"); qload(QL, "s42", "s44"); qload(QS, "s43", "s45")
    a.e(f"v_mov_b32 v{VK}, v{VLANE}")
    a.e(f"v_or_b32 v{VV}, 0x10000, v{VLANE}")
    for r in range(OL, OL + 128): a.e(f"v_mov_b32 v{r}, 0")
    for r in range(LL, LL + 6): a.e(f"v_mov_b32 v{r}, 0")
    for T in range(4):
        for r in range(16): a.e(f"v_accvgpr_write_b32 a{OB[T]+r}, 0")
    a.e("v_and_b32 v6, 31, v1")
    a.e("v_lshrrev_b32 v7, 5, v1")
    a.e("v_lshlrev_b32 v7, 2, v7")
    a.e("v_sub_u32 v6, v6, v7              ; q - 4h")
    a.e("v_mov_b32 v7, 0xf149f2ca          ; -1e30")
    for r in range(16):
        i, j = r >> 2, r & 3
        key = 16 * (i & 1) + 8 * (i >> 1) + j
        a.e(f"v_cmp_le_i32 vcc, {key}, v6")
        a.e(f"v_mov_b32 v{NEG+r}, v7")
        a.e("s_nop 0")
        a.e(f"v_cndmask_b32 v{TRI+r}, v7, 0, vcc" .replace("v7, 0, vcc", "v7, v8, vcc") if False else f"v_cndmask_b32 v{TRI+r}, v7, v{LL}, vcc")
    a.e("s_sub_u32 s29, 4, s23")
    a.e("s_sub_u32 s30, 4, s22")
    a.e("s_mov_b32 s33, 1")
    a.e("s_waitcnt vmcnt(8)")
    a.e("s_barrier")
    for o in kread(KX): a.e(o)
    for o in KADV: a.e(o)
    a.e("s_waitcnt lgkmcnt(0)")
    stamp(a, 1)
    stamp(a, 4, True)
    a.block("k2_PRO"); period(a, "PRO", True)
    a.block("k2_c1")
    a.e("s_sub_u32 s24, s22, 5")
    a.e("s_cmp_gt_i32 s24, 0")
    a.e("s_cbranch_scc0 K2_P1M_PRE")
    a.e("s_add_u32 s29, s29, s24")
    a.e("s_add_u32 s30, s30, s24")
    a.raw(".p2align 6")
    a.label("K2_P1U")
    a.block("k2_P1U"); period(a, "P1", False)
    a.e("s_sub_u32 s24, s24, 1")
    a.e("s_cmp_lg_u32 s24, 0")
    a.e("s_cbranch_scc1 K2_P1U")
    a.block("k2_c2")
    a.label("K2_P1M_PRE")
    a.e("s_sub_u32 s24, s22, 1")
    a.e("s_min_u32 s24, s24, 4")
    a.raw(".p2align 6")
    a.label("K2_P1M")
    a.block("k2_P1M")
    a.e("s_add_u32 s65, s64, 0x2000")
    a.e("s_cmp_eq_u32 s24, 2")
    a.e("s_cselect_b32 s35, s65, 0x2000")
    a.e("s_cmp_eq_u32 s24, 1")
    a.e("s_cselect_b32 s35, 0x4000, s35")
    period(a, "P1", True)
    a.e("s_sub_u32 s24, s24, 1")
    a.e("s_cmp_lg_u32 s24, 0")
    a.e("s_cbranch_scc1 K2_P1M")
    a.block("k2_c3")
    a.e("s_and_b32 s65, s20, 1")
    a.e("s_add_u32 s29, s29, s65")
    a.e("s_mov_b32 s30, s29")
    a.e("s_xor_b32 s60, s20, 1")
    a.e("s_mov_b32 s33, 2")
    a.e("s_add_u32 s34, s64, 0x2000")
    a.block("k2_TR"); period(a, "TR", True)
    a.block("k2_c4")
    a.e("s_mov_b32 s34, 0x4000")
    ctx_addr(a)
    ctx_out(a, OS, LS, "s41")
    a.e("s_sub_u32 s24, s23, s22")
    a.e("s_lshr_b32 s24, s24, 1")
    a.e("s_sub_u32 s24, s24, 3")
    a.e("s_cmp_gt_i32 s24, 0")
    a.e("s_cbranch_scc0 K2_P2M_PRE")
    a.e("s_lshl_b32 s65, s24, 1")
    a.e("s_add_u32 s29, s29, s65")
    a.e("s_add_u32 s30, s30, s65")
    a.raw(".p2align 6")
    a.label("K2_P2U")
    a.block("k2_P2U"); period(a, "P2", False)
    a.e("s_sub_u32 s24, s24, 1")
    a.e("s_cmp_lg_u32 s24, 0")
    a.e("s_cbranch_scc1 K2_P2U")
    a.block("k2_c5")
    a.label("K2_P2M_PRE")
    a.e("s_sub_u32 s24, s23, s22")
    a.e("s_lshr_b32 s24, s24, 1")
    a.e("s_sub_u32 s24, s24, 1")
    a.e("s_min_u32 s24, s24, 2")
    a.raw(".p2align 6")
    a.label("K2_P2M")
    a.block("k2_P2M"); period(a, "P2", True)
    a.e("s_sub_u32 s24, s24, 1")
    a.e("s_cmp_lg_u32 s24, 0")
    a.e("s_cbranch_scc1 K2_P2M")
    a.block("k2_FIN"); period(a, "FIN", False)
    a.block("k2_epi")
    stamp(a, 2)
    stamp(a, 5, True)
    a.e("s_barrier")
    a.e(f"s_mul_i32 s65, s20, 16640")
    a.e(f"v_add_u32 v6, s65, v{VLANE}")
    a.e(f"v_add_f32 v{LB}, v{LB}, v{LB+1}")
    a.e("v_lshlrev_b32 v7, 2, v1")
    a.e("v_add_u32 v7, s65, v7")
    a.e("s_nop 5")
    for T in range(4):
        for k in range(4):
            a.e(f"ds_write_b128 v6, a[{OB[T]+4*k}:{OB[T]+4*k+3}] offset:{(4*T+k)*1024}")
    a.e(f"ds_write_b32 v7, v{LB} offset:16384")
    a.e("s_xor_b32 s65, s20, 1")
    a.e(f"s_mul_i32 s65, s65, 16640")
    a.e(f"v_add_u32 v6, s65, v{VLANE}")
    a.e("v_lshlrev_b32 v7, 2, v1")
    a.e("v_add_u32 v7, s65, v7")
    ctx_out(a, OL, LL, "s40")
    if common.DIAG:
        a.e("s_waitcnt vmcnt(0)")
        stamp(a, 3)
        stamp_flush(a, 2, 6)
    a.e("s_endpgm")
    a.cur = None
    a.label("K2_END")
    a.e("s_endpgm")
    return kernel_desc(name, 512, 96, 256)

def check_k2(a):
    B = a.blocks
    tr = B["k2_pre"] + B["k2_PRO"] + B["k2_c1"] + B["k2_P1U"] * 2 + B["k2_c2"] + B["k2_P1M"] * 2 + B["k2_c3"] + B["k2_TR"] + B["k2_c4"] + B["k2_P2U"] * 2 + B["k2_c5"] + B["k2_P2M"] * 2 + B["k2_FIN"] + B["k2_epi"]
    p = check_trace(tr, "k2a")
    tr = B["k2_pre"] + B["k2_PRO"] + B["k2_c1"] + B["k2_c2"] + B["k2_P1M"] * 3 + B["k2_c3"] + B["k2_TR"] + B["k2_c4"] + B["k2_c5"] + B["k2_P2M"] + B["k2_FIN"] + B["k2_epi"]
    return p + check_trace(tr, "k2b")
```

```python
from common import *
import common, os
EXP = os.environ.get('K2EXP', '')
QL, QS, KX, VX, QP = 0, 32, 64, 128, 192
OB = [96, 112, 160, 176]
SA, SB, PA, PB, TRI, NEG = 32, 48, 64, 72, 80, 96
LL, LS, LB = 112, 114, 116
OL, OS = 128, 192
VK, VV, VLANE, VT = 2, 3, 4, 5
CSTFLAG = ""
PRO_W0 = 30
PRO_W8 = 32
PREFETCH = False

def mf(d, a_, b_, c): return f"v_mfma_f32_32x32x16_bf16 v[{d}:{d+15}], {a_}, {b_}, {c}"
def A4(b): return f"a[{b}:{b+3}]"
def V4(b): return f"v[{b}:{b+3}]"

def qk(S, Q, K):
    return [mf(S, A4(K + 4*s), A4(Q + 4*s), "0" if s == 0 else f"v[{S}:{S+15}]") for s in range(8)]
def pv(P, V, O):
    if O == "B":
        return [f"v_mfma_f32_32x32x16_bf16 a[{OB[T]}:{OB[T]+15}], {A4(V + 4*(2*T + ks))}, {V4(P + 4*ks)}, a[{OB[T]}:{OB[T]+15}]" for ks in range(2) for T in range(4)]
    return [mf(O + 16*T, A4(V + 4*(2*T + ks)), V4(P + 4*ks), f"v[{O+16*T}:{O+16*T+15}]") for ks in range(2) for T in range(4)]

def sm_ops(S, P, L):
    ops = []
    for r in range(16):
        ops.append(dict(t=f"v_exp_f32 v{S+r}, v{S+r}", c=8, k="e", r=r, deps=[]))
    for r in range(16):
        ops.append(dict(t=f"v_add_f32 v{L+(r&1)}, v{L+(r&1)}, v{S+r}", c=4, k="a", r=r, deps=[r] + ([16 + r - 2] if r >= 2 else [])))
    for k in range(8):
        ops.append(dict(t=f"v_cvt_pk_bf16_f32 v{P+k}, v{S+2*k}, v{S+2*k+1}", c=4, k="c0" if k < 4 else "c1", r=k, deps=[2*k, 2*k+1]))
    return ops

def try_place(ops, start, end, c0_min, c1_min, used, b):
    used = dict(used); out = {}; pos = {}
    seq = 0
    for g in range(start, end + 1):
        room = b - used.get(g % 32, 0)
        last_e = None
        while True:
            best = None
            for n, o in enumerate(ops):
                if n in pos: continue
                if o["k"] == "c0" and g < c0_min: continue
                if o["k"] == "c1" and g < c1_min: continue
                if any(d not in pos for d in o["deps"]): continue
                if last_e is not None and last_e in o["deps"]: continue
                if o["c"] > room: continue
                pr = {"c0": 0, "c1": 0, "a": 1, "e": 2}[o["k"]]
                key = (pr, o["r"])
                if best is None or key < best[0]: best = (key, n)
            if best is None: break
            n = best[1]; o = ops[n]
            pos[n] = g; out.setdefault(g, []).append(o["t"]); room -= o["c"]; used[g % 32] = used.get(g % 32, 0) + o["c"]
            last_e = n if o["k"] == "e" else None
    return (out, used) if len(pos) == len(ops) else None

HEAD = lambda o: (o["k"] == "e" and o["r"] < 10) or (o["k"] == "a" and o["r"] < 8) or o["k"] == "c0"
def subset(ops, keep):
    idx = [n for n, o in enumerate(ops) if keep(o)]
    m = {n: i for i, n in enumerate(idx)}
    return [dict(o, deps=[m[d] for d in o["deps"] if d in m]) for n, o in enumerate(ops) if n in m]
def place3(A, Bh, Bt, used):
    res = []
    u = dict(used)
    for b in range(8, 41):
        rt = try_place(subset(Bt, lambda o: not HEAD(o)), 0, 7, 0, 0, u, b)
        if rt is not None: break
    u = rt[1]; bt = b
    for b in range(8, 41):
        ra = try_place(A, 10, 31, 19, 23, u, b)
        if ra is None: continue
        rb = try_place(subset(Bh, HEAD), 18, 31, 27, 32, ra[1], b)
        if rb is None: continue
        return ra[0], rb[0], rt[0], (bt, b)
    raise AssertionError("no placement")

def kread(buf): return [f"ds_read_b128 {A4(buf+4*s)}, v{VK} offset:{s*1024}" for s in range(8)]
def vread(buf): return [f"ds_read_b128 {A4(buf+4*(2*T+ks))}, v{VV} offset:{(2*T+ks)*1024}" for ks in range(2) for T in range(4)]
KADV = [f"v_add_u32 v{VK}, s35, v{VK}", f"v_and_b32 v{VK}, 0xffff, v{VK}"]
VADV = [f"v_add_u32 v{VT}, s34, v{VV}", f"v_bfi_b32 v{VV}, s31, v{VT}, v{VV}"]
def dma(kind):
    if kind == "K":
        return ["s_mov_b32 m0, s27", "s_add_u32 s27, s27, 0x2000",
                f"buffer_load_dwordx4 v{VLANE}, s[4:7], s25 offen lds", f"buffer_load_dwordx4 v{VLANE}, s[4:7], s25 offen offset:1024 lds",
                "s_and_b32 s27, s27, 0xffff", "s_add_u32 s25, s25, 0x2000"]
    return ["s_mov_b32 m0, s28", "s_add_u32 s28, s28, 0x2000",
            f"buffer_load_dwordx4 v{VLANE}, s[8:11], s26 offen lds", f"buffer_load_dwordx4 v{VLANE}, s[8:11], s26 offen offset:1024 lds",
            "s_and_b32 s28, s28, 0xffff", "s_or_b32 s28, s28, 0x10000", "s_add_u32 s26, s26, 0x2000"]

def period(a, kind, masked):
    hasQK = kind != "FIN"; hasPV = kind != "PRO"
    if kind in ("PRO", "P1"):
        M = qk(SA, QL, KX) + qk(SB, QS, KX) + pv(PA, VX, OL) + pv(PB, VX, OS); lA, lBh, lBt = LL, LS, LS
    elif kind == "TR":
        M = qk(SA, QL, KX) + qk(SB, QP, KX) + pv(PA, VX, OL) + pv(PB, VX, OS); lA, lBh, lBt = LL, LB, LS
    else:
        M = qk(SA, QL, KX) + qk(SB, QP, KX) + pv(PA, VX, OL) + pv(PB, VX, "B"); lA, lBh, lBt = LL, LB, LB
    fill, pre = {}, {}
    def add(d, g, ops):
        d.setdefault(g, []).extend(ops if isinstance(ops, list) else [ops])
    nread = {}
    def reads(lst, gaps, adv):
        for n, op in enumerate(lst):
            g = gaps[n * len(gaps) // len(lst)]
            add(fill, g, op); nread[g] = nread.get(g, 0) + 1
        add(fill, gaps[-1], adv[0]); add(fill, gaps[-1] + 1 if gaps[-1] < 31 else 31, adv[1])
    if kind == "PRO":
        for n, kk in enumerate("KKKVKVKVKVKV"): add(fill, n, dma(kk))
        for s_ in range(8):
            add(fill, 12 + s_ // 2, f"buffer_load_dwordx4 {A4(QP+4*s_)}, v{VLANE}, s[12:15], {'s62' if s_ < 4 else 's63'} offen offset:{(s_ & 3)*1024}")
        add(pre, 8, "s_waitcnt vmcnt(16)")
        add(pre, 16, "s_waitcnt vmcnt(30)"); add(pre, 16, "s_barrier")
        reads(kread(KX), list(range(16, 24)), KADV)
    elif kind in ("P1", "TR", "P2"):
        vm = {"P1": 20, "TR": 16, "P2": 14}[kind]
        add(pre, 0, f"s_waitcnt vmcnt({vm}) lgkmcnt(0)"); add(pre, 0, "s_barrier")
        reads(vread(VX), list(range(0, 12)), VADV); add(pre, 16, "s_waitcnt lgkmcnt(0)")
        reads(kread(KX), list(range(16, 28)), KADV)
    else:
        add(pre, 0, "s_waitcnt vmcnt(14) lgkmcnt(0)"); add(pre, 0, "s_barrier")
        add(pre, 0, vread(VX))
        add(pre, 16, "s_waitcnt lgkmcnt(0)")
    if kind == "PRO":
        d = dma("K") + dma("V"); spread(fill, d, 17, 21)
    elif kind in ("P1", "TR"):
        d = dma("K") + dma("V"); spread(fill, d, 6, 10)
    elif kind == "P2":
        spread(fill, dma("K") + dma("V"), 6, 10); spread(fill, dma("K") + dma("V"), 11, 17)
    if kind == "TR" and PREFETCH:
        add(fill, 12, ["buffer_load_dword v12, v10, s[48:51], 0 offen", "buffer_load_dword v13, v11, s[52:55], 0 offen"])
    used = {}
    for g in range(32): used[g] = 4 * nread.get(g, 0)
    A = sm_ops(SA, PA, lA); Bh = sm_ops(SB, PB, lBh); Bt = sm_ops(SB, PB, lBt)
    pa, pb, pt, bud = place3(A, Bh, Bt, used)
    if common.VERB: print("period", kind, masked, "budget", bud)
    if kind != "PRO":
        for g, ops in sorted(pt.items()):
            if kind != "FIN": add(fill, g, ops)
            else: add(pre, 0, ops)
    if hasQK:
        for g, ops in pa.items(): add(fill, g, ops)
        for g, ops in pb.items(): add(fill, g, ops)
    if masked:
        add(fill, 28, "s_add_u32 s29, s29, s33"); add(fill, 28, "s_add_u32 s30, s30, s33")
    state = {"prev": None}
    def E(p):
        if kind in ("P1", "P2", "TR"):
            if "noexp" in EXP and p.startswith("v_exp"): return
            if "noadd" in EXP and p.startswith("v_add_f32"): return
            if "nocvt" in EXP and p.startswith("v_cvt"): return
            if "nods" in EXP and p.startswith("ds_read"): return
            if "nodma" in EXP and p.startswith("buffer_load_dwordx4"): return
            if "nobar" in EXP and p.startswith("s_barrier"): return
            if "nomfma" in EXP and p.startswith("v_mfma"): return
        ins = Ins(p)
        pv_ = state["prev"]
        if pv_ is not None and pv_.kind == "trans" and ins.kind == "valu" and set(pv_.wr) & set(ins.rd): a.e("s_nop 0")
        a.e(p); state["prev"] = ins
    for i, m in enumerate(M):
        for p in pre.get(i, []): E(p)
        present = (hasQK if i < 16 else hasPV)
        if present:
            if masked and i in (0, 8):
                S = SA if i == 0 else SB; rel = "s29" if i == 0 else "s30"; wv = "s20" if i == 0 else "s60"
                base = m.rsplit(",", 1)[0]
                l1, l2, lj = a.newlabel("K2T"), a.newlabel("K2N"), a.newlabel("K2J")
                a.e(f"s_cmp_lt_i32 {rel}, {wv}")
                a.raw(f"    s_cbranch_scc0 {l1}\n    {m}\n    s_branch {lj}\n{l1}:")
                a.raw(f"    s_cmp_eq_i32 {rel}, {wv}\n    s_cbranch_scc1 {l2}\n    {base}, v[{NEG}:{NEG+15}]\n    s_branch {lj}\n{l2}:")
                a.e(f"{base}, v[{TRI}:{TRI+15}]")
                a.label(lj)
                state["prev"] = None
            else:
                E(m)
        for p in fill.get(i, []): E(p)

def ctx_addr(a):
    a.e("v_and_b32 v12, 31, v1             ; q")
    a.e("v_lshrrev_b32 v13, 5, v1          ; hh")
    a.e("v_lshrrev_b32 v8, 4, v12")
    a.e("v_lshlrev_b32 v8, 17, v8          ; (q>>4)*131072")
    a.e("v_lshl_add_u32 v8, v13, 8, v8")
    a.e("v_and_b32 v9, 15, v12")
    a.e("v_lshl_add_u32 v8, v9, 4, v8")
    a.e("s_lshl_b32 s44, s38, 12           ; head*4*1024")

def tri_init(a, zero_reg):
    a.e("v_and_b32 v6, 31, v1")
    a.e("v_lshrrev_b32 v7, 5, v1")
    a.e("v_lshlrev_b32 v7, 2, v7")
    a.e("v_sub_u32 v6, v6, v7              ; q - 4h")
    a.e("v_mov_b32 v7, 0xf149f2ca          ; -1e30")
    for r in range(16):
        i, j = r >> 2, r & 3
        key = 16 * (i & 1) + 8 * (i >> 1) + j
        a.e(f"v_cmp_le_i32 vcc, {key}, v6")
        a.e("s_nop 1")
        a.e(f"v_cndmask_b32 v{TRI+r}, v7, v{zero_reg}, vcc")

def ctx_out(a, O, L, qt, combine=False, flagbit=None):
    if combine:
        a.e("s_waitcnt lgkmcnt(0)")
        a.e("s_barrier")
        for n in range(16):
            a.e(f"ds_read_b128 v[{32+4*n}:{32+4*n+3}], v6 offset:{n*1024}")
        a.e(f"ds_read_b32 v{LB}, v7 offset:16384")
    a.e(f"s_lshl_b32 s45, {qt}, 18       ; qtile*2*128*1024")
    a.e("s_add_u32 s45, s45, s44")
    a.e(f"v_add_f32 v{L}, v{L}, v{L+1}")
    if combine:
        a.e("s_waitcnt lgkmcnt(0)")
        a.e(f"v_add_f32 v{L}, v{L}, v{LB}")
    a.e(f"v_mov_b32 v10, v{L}")
    a.e("s_nop 1")
    a.e(f"v_permlane32_swap_b32 v{L}, v10")
    a.e("s_nop 1")
    a.e(f"v_add_f32 v{L}, v{L}, v10")
    if combine:
        for r in range(0, 64, 2): a.e(f"v_pk_add_f32 v[{O+r}:{O+r+1}], v[{O+r}:{O+r+1}], v[{32+r}:{32+r+1}]")
    skip = None
    if flagbit is not None:
        a.e(f"v_pk_add_f32 v[14:15], v[{O}:{O+1}], v[{O+2}:{O+3}]")
        for r in range(4, 64, 2): a.e(f"v_pk_add_f32 v[14:15], v[14:15], v[{O+r}:{O+r+1}]")
        a.e("v_add_f32 v14, v14, v15")
        a.e("s_mov_b32 s67, 0x21800000         ; 2^-60")
        a.e("s_mov_b32 s68, 0x5d800000         ; 2^60")
        a.e(f"v_cmp_nle_f32 s[70:71], s67, v{L}          ; !(2^-60 <= l)")
        a.e(f"v_cmp_nge_f32 s[72:73], s68, v{L}          ; !(2^60 >= l)")
        a.e("v_cmp_class_f32 vcc, v14, s69")
        a.e("s_nop 1")
        a.e("s_or_b64 s[70:71], s[70:71], s[72:73]")
        a.e("s_or_b64 s[70:71], s[70:71], vcc")
        skip = a.newlabel("K2_OK"); done = a.newlabel("K2_DONE")
        a.e("s_cmp_eq_u64 s[70:71], 0")
        a.e(f"s_cbranch_scc1 {skip}")
        a.e(f"s_or_b32 s66, s66, {flagbit}")
        a.e(f"s_branch {done}")
        a.label(skip)
    a.e(f"v_rcp_f32 v10, v{L}")
    a.e("s_nop 0")
    a.e("v_mov_b32 v11, v10")
    for T in range(4):
        for c in range(2):
            q = 16 + 4 * ((2 * T + c) % 4)
            for h, i in enumerate((c, c + 2)):
                b = O + 16 * T + 4 * i
                for j in (0, 2): a.e(f"v_pk_mul_f32 v[{b+j}:{b+j+1}], v[{b+j}:{b+j+1}], v[10:11]")
                a.e(f"v_cvt_pk_bf16_f32 v{q+2*h}, v{b}, v{b+1}")
                a.e(f"v_cvt_pk_bf16_f32 v{q+2*h+1}, v{b+2}, v{b+3}")
            a.e(f"buffer_store_dwordx4 v[{q}:{q+3}], v8, s[16:19], s45 offen offset:{T*1024 + c*512}{CSTFLAG}")
    if skip: a.label(done)

def slow_path(a):
    S, P, M_, Lr, SC, QS_ = 32, 64, 112, 114, 116, 192
    a.label("K2_SLOW")
    a.e("s_cmp_eq_u32 s66, 0")
    a.e("s_cbranch_scc1 K2_END")
    a.e("s_waitcnt vmcnt(0)")
    a.e("s_bitcmp1_b32 s66, 0")
    a.e("s_cbranch_scc0 K2_SLOW_L")
    a.e("s_and_b32 s66, s66, 2")
    for r in range(32): a.e(f"v_accvgpr_mov_b32 a{QS_+r}, a{QS+r}")
    a.e("s_sub_u32 s24, s22, 4")
    a.e("s_mov_b32 s46, s41")
    a.e("s_branch K2_SLOW_GO")
    a.label("K2_SLOW_L")
    a.e("s_mov_b32 s66, 0")
    for r in range(32): a.e(f"v_accvgpr_mov_b32 a{QS_+r}, a{QL+r}")
    a.e("s_sub_u32 s24, s23, 4")
    a.e("s_mov_b32 s46, s40")
    a.label("K2_SLOW_GO")
    a.e("s_add_u32 s24, s24, s20")
    for r in range(64): a.e(f"v_mov_b32 v{OL+r}, 0")
    a.e(f"v_mov_b32 v{Lr}, 0")
    a.e(f"v_mov_b32 v{Lr+1}, 0")
    tri_init(a, Lr)
    a.e(f"v_mov_b32 v{M_}, 0xff800000")
    a.e("s_mov_b32 s25, 0                  ; tile")
    a.label("K2_SLOW_LOOP")
    a.e("s_lshl_b32 s26, s25, 13")
    a.e("s_add_u32 s27, s26, 0x1000")
    for k in range(8):
        a.e(f"buffer_load_dwordx4 {A4(KX+4*k)}, v{VLANE}, s[4:7], {'s26' if k < 4 else 's27'} offen offset:{(k & 3)*1024}")
    for k in range(8):
        a.e(f"buffer_load_dwordx4 {A4(VX+4*k)}, v{VLANE}, s[8:11], {'s26' if k < 4 else 's27'} offen offset:{(k & 3)*1024}")
    a.e("s_waitcnt vmcnt(0)")
    m = qk(S, QS_, KX)
    l1, lj = a.newlabel("K2_ST"), a.newlabel("K2_SJ")
    a.e("s_cmp_eq_u32 s25, s24")
    a.raw(f"    s_cbranch_scc1 {l1}\n    {m[0]}\n    s_branch {lj}\n{l1}:")
    a.e(m[0].rsplit(",", 1)[0] + f", v[{TRI}:{TRI+15}]")
    a.label(lj)
    for x in m[1:]: a.e(x)
    a.e("s_nop 15")
    a.e(f"v_max3_f32 v{SC}, v{S}, v{S+1}, v{M_}")
    for r in range(2, 16, 2): a.e(f"v_max3_f32 v{SC}, v{S+r}, v{S+r+1}, v{SC}")
    a.e(f"v_mov_b32 v10, v{SC}")
    a.e("s_nop 1")
    a.e(f"v_permlane32_swap_b32 v{SC}, v10")
    a.e("s_nop 1")
    a.e(f"v_max_f32 v{SC}, v{SC}, v10")
    a.e(f"v_sub_f32 v10, v{M_}, v{SC}")
    a.e(f"v_mov_b32 v{M_}, v{SC}")
    a.e("v_exp_f32 v10, v10")
    for r in range(16): a.e(f"v_sub_f32 v{S+r}, v{S+r}, v{M_}")
    for r in range(16): a.e(f"v_exp_f32 v{S+r}, v{S+r}")
    a.e(f"v_mul_f32 v{Lr}, v{Lr}, v10")
    for r in range(16): a.e(f"v_add_f32 v{Lr}, v{Lr}, v{S+r}")
    for k in range(8): a.e(f"v_cvt_pk_bf16_f32 v{P+k}, v{S+2*k}, v{S+2*k+1}")
    for r in range(64): a.e(f"v_mul_f32 v{OL+r}, v{OL+r}, v10")
    a.e("s_nop 1")
    for x in pv(P, VX, OL): a.e(x)
    a.e("s_nop 15")
    a.e("s_add_u32 s25, s25, 1")
    a.e("s_cmp_le_u32 s25, s24")
    a.e("s_cbranch_scc1 K2_SLOW_LOOP")
    ctx_out(a, OL, Lr, "s46")
    a.e("s_branch K2_SLOW")

def gen_k2(a, name="attn_kernel"):
    kernel_header(a, name)
    a.block("k2_pre")
    a.e("s_cmp_ge_u32 s2, 256")
    a.e("s_cbranch_scc1 K2_END")
    stamp(a, 0)
    a.e(f"s_load_dwordx2 s[36:37], s[0:1], {KA['ws']}")
    a.e(f"s_load_dwordx2 s[56:57], s[0:1], {KA['wo']}")
    a.e(f"s_load_dwordx2 s[58:59], s[0:1], {KA['wd']}")
    a.e("v_lshrrev_b32 v1, 6, v0")
    a.e("s_nop 0")
    a.e("v_readfirstlane_b32 s20, v1       ; wave")
    a.e("v_and_b32 v1, 63, v0              ; lane")
    a.e("s_and_b32 s38, s2, 7")
    a.e("s_lshr_b32 s39, s2, 3")
    a.e("s_and_b32 s21, s39, 7             ; i")
    a.e("s_lshr_b32 s39, s39, 3")
    a.e("s_lshl_b32 s38, s38, 2")
    a.e("s_add_u32 s38, s38, s39           ; head")
    a.e("s_lshl_b32 s22, s21, 2")
    a.e("s_add_u32 s22, s22, 4             ; n1 = 4(i+1)")
    a.e("s_lshl_b32 s23, s21, 2")
    a.e("s_sub_u32 s23, 64, s23            ; nL = 4(16-i)")
    a.e("s_lshl_b32 s39, s38, 19           ; head*512K")
    a.e(f"v_lshlrev_b32 v{VLANE}, 4, v1")
    a.e("s_waitcnt lgkmcnt(0)")
    for srdn, reg in ((4, KF), (8, VF), (12, QF)):
        a.e(f"s_add_u32 s40, s39, {reg}")
        a.e(f"s_add_u32 s{srdn}, s36, s40")
        a.e(f"s_addc_u32 s{srdn+1}, s37, 0")
        a.e(f"s_and_b32 s{srdn+1}, s{srdn+1}, 0xffff")
        if srdn == 12: a.e(f"s_mov_b32 s{srdn+2}, 0x80000")
        else: a.e(f"s_lshl_b32 s{srdn+2}, s23, 13")
        a.e(f"s_mov_b32 s{srdn+3}, 0x20000")
    a.e(f"s_add_u32 s16, s36, {CF}")
    a.e("s_addc_u32 s17, s37, 0")
    a.e("s_and_b32 s17, s17, 0xffff")
    a.e("s_mov_b32 s18, 0x1000000")
    a.e("s_mov_b32 s19, 0x20000")
    srd(a, "s56", "s57", 0x400000, 48)
    srd(a, "s58", "s59", 1376 * 1024, 52)
    a.e("s_lshl_b32 s46, s2, 2")
    a.e("s_add_u32 s46, s46, s20")
    a.e("s_lshl_b32 s47, s46, 12")
    a.e("v_lshl_add_u32 v10, v1, 6, s47")
    a.e("v_and_b32 v11, 31, v1")
    a.e("s_lshl_b32 s47, s46, 11")
    a.e("v_lshl_add_u32 v11, v11, 6, s47")
    a.e("s_sub_u32 s40, 15, s21")
    a.e("s_lshl_b32 s40, s40, 2")
    a.e("s_add_u32 s40, s40, s20           ; qtile L")
    a.e("s_lshl_b32 s41, s21, 2")
    a.e("s_add_u32 s41, s41, s20           ; qtile S")
    a.e("s_lshl_b32 s42, s40, 13")
    a.e("s_lshl_b32 s43, s41, 13")
    a.e("s_add_u32 s44, s42, 0x1000")
    a.e("s_add_u32 s45, s43, 0x1000")
    a.e("s_xor_b32 s61, s40, 1")
    a.e("s_lshl_b32 s62, s61, 13")
    a.e("s_add_u32 s63, s62, 0x1000")
    a.e("s_lshl_b32 s27, s20, 11           ; K m0 base = w*2048")
    a.e("s_or_b32 s28, s27, 0x10000        ; V m0 base")
    a.e("s_mov_b32 s25, s27")
    a.e("s_mov_b32 s26, s27")
    a.e("s_mov_b32 s31, 0xffff")
    a.e("s_mov_b32 s34, 0x2000")
    a.e("s_mov_b32 s35, 0x2000")
    a.e("s_mov_b32 s60, s20")
    a.e("s_and_b32 s64, s20, 1")
    a.e("s_lshl_b32 s64, s64, 13           ; parity * 8192")
    def qload(base, lo, hi):
        for s_ in range(8):
            a.e(f"buffer_load_dwordx4 {A4(base+4*s_)}, v{VLANE}, s[12:15], {lo if s_ < 4 else hi} offen offset:{(s_ & 3)*1024}")
    def tile(kind):
        for o in dma(kind): a.e(o)
    tile("K"); qload(QL, "s42", "s44"); qload(QS, "s43", "s45")
    a.e(f"v_mov_b32 v{VK}, v{VLANE}")
    a.e(f"v_or_b32 v{VV}, 0x10000, v{VLANE}")
    for r in range(OL, OL + 128): a.e(f"v_mov_b32 v{r}, 0")
    for r in range(LL, LL + 6): a.e(f"v_mov_b32 v{r}, 0")
    for T in range(4):
        for r in range(16): a.e(f"v_accvgpr_write_b32 a{OB[T]+r}, 0")
    tri_init(a, LL)
    for r in range(16): a.e(f"v_mov_b32 v{NEG+r}, v7")
    a.e("s_mov_b32 s66, 0")
    a.e("s_mov_b32 s69, 0x207")
    a.e("s_sub_u32 s29, 4, s23")
    a.e("s_sub_u32 s30, 4, s22")
    a.e("s_mov_b32 s33, 1")
    a.e("s_waitcnt vmcnt(8)")
    a.e("s_barrier")
    for o in kread(KX): a.e(o)
    for o in KADV: a.e(o)
    a.e("s_waitcnt lgkmcnt(0)")
    stamp(a, 1)
    stamp(a, 4, True)
    a.block("k2_PRO"); period(a, "PRO", True)
    a.block("k2_c1")
    a.e("s_sub_u32 s24, s22, 5")
    a.e("s_cmp_gt_i32 s24, 0")
    a.e("s_cbranch_scc0 K2_P1M_PRE")
    a.e("s_add_u32 s29, s29, s24")
    a.e("s_add_u32 s30, s30, s24")
    a.raw(".p2align 6")
    a.label("K2_P1U")
    a.block("k2_P1U"); period(a, "P1", False)
    a.e("s_sub_u32 s24, s24, 1")
    a.e("s_cmp_lg_u32 s24, 0")
    a.e("s_cbranch_scc1 K2_P1U")
    a.block("k2_c2")
    a.label("K2_P1M_PRE")
    a.e("s_sub_u32 s24, s22, 1")
    a.e("s_min_u32 s24, s24, 4")
    a.raw(".p2align 6")
    a.label("K2_P1M")
    a.block("k2_P1M")
    a.e("s_add_u32 s65, s64, 0x2000")
    a.e("s_cmp_eq_u32 s24, 2")
    a.e("s_cselect_b32 s35, s65, 0x2000")
    a.e("s_cmp_eq_u32 s24, 1")
    a.e("s_cselect_b32 s35, 0x4000, s35")
    period(a, "P1", True)
    a.e("s_sub_u32 s24, s24, 1")
    a.e("s_cmp_lg_u32 s24, 0")
    a.e("s_cbranch_scc1 K2_P1M")
    a.block("k2_c3")
    a.e("s_and_b32 s65, s20, 1")
    a.e("s_add_u32 s29, s29, s65")
    a.e("s_mov_b32 s30, s29")
    a.e("s_xor_b32 s60, s20, 1")
    a.e("s_mov_b32 s33, 2")
    a.e("s_add_u32 s34, s64, 0x2000")
    a.block("k2_TR"); period(a, "TR", True)
    a.block("k2_c4")
    a.e("s_mov_b32 s34, 0x4000")
    ctx_addr(a)
    ctx_out(a, OS, LS, "s41", flagbit=1)
    a.e("s_sub_u32 s24, s23, s22")
    a.e("s_lshr_b32 s24, s24, 1")
    a.e("s_sub_u32 s24, s24, 3")
    a.e("s_cmp_gt_i32 s24, 0")
    a.e("s_cbranch_scc0 K2_P2M_PRE")
    a.e("s_lshl_b32 s65, s24, 1")
    a.e("s_add_u32 s29, s29, s65")
    a.e("s_add_u32 s30, s30, s65")
    a.raw(".p2align 6")
    a.label("K2_P2U")
    a.block("k2_P2U"); period(a, "P2", False)
    a.e("s_sub_u32 s24, s24, 1")
    a.e("s_cmp_lg_u32 s24, 0")
    a.e("s_cbranch_scc1 K2_P2U")
    a.block("k2_c5")
    a.label("K2_P2M_PRE")
    a.e("s_sub_u32 s24, s23, s22")
    a.e("s_lshr_b32 s24, s24, 1")
    a.e("s_sub_u32 s24, s24, 1")
    a.e("s_min_u32 s24, s24, 2")
    a.raw(".p2align 6")
    a.label("K2_P2M")
    a.block("k2_P2M"); period(a, "P2", True)
    a.e("s_sub_u32 s24, s24, 1")
    a.e("s_cmp_lg_u32 s24, 0")
    a.e("s_cbranch_scc1 K2_P2M")
    a.block("k2_FIN"); period(a, "FIN", False)
    a.block("k2_epi")
    stamp(a, 2)
    stamp(a, 5, True)
    a.e("s_barrier")
    a.e(f"s_mul_i32 s65, s20, 16640")
    a.e(f"v_add_u32 v6, s65, v{VLANE}")
    a.e(f"v_add_f32 v{LB}, v{LB}, v{LB+1}")
    a.e("v_lshlrev_b32 v7, 2, v1")
    a.e("v_add_u32 v7, s65, v7")
    a.e("s_nop 5")
    for T in range(4):
        for k in range(4):
            a.e(f"ds_write_b128 v6, a[{OB[T]+4*k}:{OB[T]+4*k+3}] offset:{(4*T+k)*1024}")
    a.e(f"ds_write_b32 v7, v{LB} offset:16384")
    a.e("s_xor_b32 s65, s20, 1")
    a.e(f"s_mul_i32 s65, s65, 16640")
    a.e(f"v_add_u32 v6, s65, v{VLANE}")
    a.e("v_lshlrev_b32 v7, 2, v1")
    a.e("v_add_u32 v7, s65, v7")
    ctx_out(a, OL, LL, "s40", combine=True, flagbit=2)
    if common.DIAG:
        a.e("s_waitcnt vmcnt(0)")
        stamp(a, 3)
        stamp_flush(a, 2, 6)
    a.block("k2_slow")
    slow_path(a)
    a.cur = None
    a.label("K2_END")
    a.e("s_endpgm")
    return kernel_desc(name, 512, 96, 256)

def check_k2(a):
    B = a.blocks
    tr = B["k2_pre"] + B["k2_PRO"] + B["k2_c1"] + B["k2_P1U"] * 2 + B["k2_c2"] + B["k2_P1M"] * 2 + B["k2_c3"] + B["k2_TR"] + B["k2_c4"] + B["k2_P2U"] * 2 + B["k2_c5"] + B["k2_P2M"] * 2 + B["k2_FIN"] + B["k2_epi"]
    p = check_trace(tr, "k2a")
    tr = B["k2_pre"] + B["k2_PRO"] + B["k2_c1"] + B["k2_c2"] + B["k2_P1M"] * 3 + B["k2_c3"] + B["k2_TR"] + B["k2_c4"] + B["k2_c5"] + B["k2_P2M"] + B["k2_FIN"] + B["k2_epi"]
    return p + check_trace(tr, "k2b") + check_trace(B["k2_epi"] + B["k2_slow"] + B["k2_slow"], "k2s")
```

```python
from common import *
import common, os
from k0 import ln_rows
ST_FLAG = ""
FUSE_LN = os.environ.get('FUSE', '0') == '1'
WFLAG = os.environ.get('WFLAG', '')
XB = 16
ACC = [48, 64]
TMP = 80

def cvt(dst, s0, s1): return f"v_cvt_pk_bf16_f32 v{dst}, v{s0}, v{s1}"
def make_epi(typ, stflag, acc, tt, soff):
    def st(q, soff, off): return f"buffer_store_dwordx4 v[{q}:{q+3}], v8, s[16:19], {soff} offen offset:{off}{stflag}"
    ops = []
    if typ in "KQ":
        for pr in range(2):
            q = TMP + 8 * tt + 4 * pr
            if typ == "Q":
                for c in (2 * pr, 2 * pr + 1):
                    for j in range(4): ops.append(f"v_mul_f32 v{acc(tt,c)+j}, s30, v{acc(tt,c)+j}")
            for h, c in enumerate((2 * pr, 2 * pr + 1)):
                ops.append(cvt(q + 2 * h, acc(tt, c), acc(tt, c) + 1))
                ops.append(cvt(q + 2 * h + 1, acc(tt, c) + 2, acc(tt, c) + 3))
            off = pr * 2048 + tt * (128 if typ == "K" else 256)
            ops.append(st(q, soff, off))
    elif typ == "V":
        for c in range(4):
            q = TMP + 4 * c
            ops.append(cvt(q + 2 * tt, acc(tt, c), acc(tt, c) + 1))
            ops.append(cvt(q + 2 * tt + 1, acc(tt, c) + 2, acc(tt, c) + 3))
            if tt == 1:
                ops.append(st(q, soff, (c & 1) * 256 + (c >> 1) * 2048))
    else:
        T = TMP + 16
        groups = [[(c, j) for j in range(4)] for c in range(2)]
        for grp in groups:
            for n, (c, j) in enumerate(grp): ops.append(f"v_mul_f32 v{T+n}, s31, v{acc(tt,c)+j}")
            for n, (c, j) in enumerate(grp): ops.append(f"v_exp_f32 v{T+n}, v{T+n}")
            for n, (c, j) in enumerate(grp): ops.append(f"v_add_f32 v{T+n}, 1.0, v{T+n}")
            for n, (c, j) in enumerate(grp): ops.append(f"v_rcp_f32 v{T+n}, v{T+n}")
            for n, (c, j) in enumerate(grp): ops.append(f"v_mul_f32 v{acc(tt,c)+j}, v{acc(tt,c)+j}, v{acc(tt,c+2)+j}")
            for n, (c, j) in enumerate(grp): ops.append(f"v_mul_f32 v{acc(tt,c)+j}, v{acc(tt,c)+j}, v{T+n}")
            c = grp[0][0]
            q = TMP + 4 * tt
            ops.append(cvt(q + 2 * c, acc(tt, c), acc(tt, c) + 1))
            ops.append(cvt(q + 2 * c + 1, acc(tt, c) + 2, acc(tt, c) + 3))
        ops.append(st(TMP + 4 * tt, soff, 0))
    return ops

def k1_period(a, typ, stflag):
    fill = {}
    def acc(tt, c): return ACC[tt] + 4 * c
    mf = []
    for tt in range(2):
        for ks in range(16):
            f = tt * 16 + ks
            xb = XB + 4 * (f % 4)
            for c in range(4):
                w = 16 * ks + 4 * c
                d = acc(tt, c)
                cin = "0" if ks == 0 else f"v[{d}:{d+3}]"
                if typ == "V":
                    mf.append(f"v_mfma_f32_16x16x32_bf16 v[{d}:{d+3}], v[{xb}:{xb+3}], a[{w}:{w+3}], {cin}")
                else:
                    mf.append(f"v_mfma_f32_16x16x32_bf16 v[{d}:{d+3}], a[{w}:{w+3}], v[{xb}:{xb+3}], {cin}")
    pre = {}
    for f in range(3, 35):
        ff = f % 32
        tt, ks = ff // 16, ff % 16
        xb = XB + 4 * (f % 4)
        base = "v3" if ks % 2 == 0 else "v4"
        off = (ks >> 1) * 4096 + tt * 2048
        idx = 4 * (f - 3)
        rd = f"ds_read_b128 v[{xb}:{xb+3}], {base} offset:{off}"
        if f == 32:
            fill.setdefault(idx - 3, []).append("v_add_u32 v3, 0x8000, v3")
            fill.setdefault(idx - 2, []).append("v_and_b32 v3, 0x1ffff, v3")
            fill.setdefault(idx - 1, []).append("v_xor_b32 v4, 64, v3")
        fill.setdefault(idx, []).append(rd)
    for f in range(32):
        pre.setdefault(4 * f, []).append("s_waitcnt lgkmcnt(2)")
    epi = lambda tt, soff: make_epi(typ, stflag, acc, tt, soff)
    e1 = epi(1, "s27" if typ != "G" else "s29")
    e0 = epi(0, "s25")
    spread(fill, e1, 3, 58)
    dma = []
    for slab in range(8):
        m0 = "s_mov_b32 m0, s26" if slab == 0 else "s_add_u32 m0, m0, 3968"
        dma.append((m0, f"buffer_load_dwordx4 v2, s[4:7], s24 offen offset:{slab*128} lds"))
    spread(fill, e0, 67, 104)
    for n, (m0, ld) in enumerate(dma):
        g = 106 + 2 * n
        fill.setdefault(g, []).append(m0)
        fill.setdefault(g + 1, []).append(ld)
    book = ["s_add_u32 s24, s24, 0x8000", "s_add_u32 s26, s26, 0x8000", "s_and_b32 s26, s26, 0x1ffff"]
    if typ == "G":
        book += ["s_add_u32 s29, s25, 44032", "s_add_u32 s25, s25, 88064"]
    else:
        book += ["s_mov_b32 s27, s25", "s_add_u32 s25, s25, 8192"]
    fill.setdefault(124, []).extend(book[:3]); fill.setdefault(125, []).extend(book[3:])
    nst1 = sum(1 for o in e1 if o.startswith("buffer_store")); nst0 = sum(1 for o in e0 if o.startswith("buffer_store"))
    N = nst1 + nst0 + 8 + nst1
    pre.setdefault(64, []).insert(0, f"s_waitcnt vmcnt({N})")
    pre[64].insert(1, "s_barrier")
    for i, m in enumerate(mf):
        for p in pre.get(i, []): a.e(p)
        a.e(m)
        for p in fill.get(i, []): a.e(p)
    return e1

def ln_compute(a):
    for k in range(4): ln_rows(a, 2, 100 + 8 * k, 132, 44)
    a.e(f"s_add_u32 s68, s52, {XN}")
    a.e("s_addc_u32 s69, s53, 0")
    a.e("s_and_b32 s69, s69, 0xffff")
    a.e("s_add_u32 s32, s33, 0x1000")
    for r in range(8):
        a.e(f"buffer_store_dwordx4 v[{100+4*r}:{103+4*r}], v99, s[68:71], {'s33' if r < 4 else 's32'} offen offset:{(r & 3)*1024} sc1")

def ln_signal(a):
    a.e("s_barrier")
    l = a.newlabel("K1_SIG")
    a.e("s_cmp_lg_u32 s20, 0")
    a.e(f"s_cbranch_scc1 {l}")
    a.e("s_lshr_b32 s32, s2, 4")
    a.e("s_lshl_b32 s32, s32, 4")
    a.e("v_mov_b32 v98, s32")
    a.e("v_mov_b32 v97, 1")
    a.e("s_mov_b64 exec, 1")
    a.e("global_atomic_add v98, v97, s[34:35] sc1")
    a.e("s_mov_b64 exec, -1")
    a.label(l)

def poll_xn(a):
    a.e("v_and_b32 v98, 3, v1")
    a.e("s_lshl_b32 s32, s56, 2")
    a.e("v_add_u32 v98, s32, v98")
    a.e("v_lshlrev_b32 v98, 4, v98")
    l = a.newlabel("K1_POLL")
    a.label(l)
    a.e("global_load_dword v97, v98, s[34:35] sc1")
    a.e("s_waitcnt vmcnt(0)")
    a.e("v_cmp_ne_u32 vcc, 4, v97")
    a.e("s_nop 4")
    a.e(f"s_cbranch_vccnz {l}")

def gen_aux(a):
    a.block("k1_aux")
    a.label("K1_AUX")
    if FUSE_LN:
        a.e("s_cmp_lg_u32 s74, 0")
        a.e("s_cbranch_scc1 K1_AUX2")
        a.e("s_waitcnt vmcnt(0)")
        ln_compute(a)
        a.e("s_waitcnt vmcnt(0)")
        ln_signal(a)
        a.label("K1_AUX2")
    a.e(f"s_load_dwordx2 s[40:41], s[0:1], {KA['wo']}")
    a.e(f"s_load_dwordx2 s[42:43], s[0:1], {KA['wd']}")
    a.e("s_sub_u32 s57, s54, 4")
    a.e("s_lshl_b32 s57, s57, 2")
    a.e("s_cmp_eq_u32 s55, 7")
    a.e("s_cselect_b32 s57, s57, 16")
    a.e("s_add_u32 s57, s57, s56")
    a.e("s_lshl_b32 s57, s57, 2")
    a.e("s_add_u32 s57, s57, s20")
    a.e(f"s_mul_i32 s58, s20, 40960")
    a.e("s_waitcnt lgkmcnt(0)")
    srd(a, "s40", "s41", 0x400000, 4)
    srd(a, "s42", "s43", 1376 * 1024, 8)
    a.e(f"s_add_u32 s16, s52, {WF}"); a.e("s_addc_u32 s17, s53, 0"); a.e("s_and_b32 s17, s17, 0xffff")
    a.e(f"s_mov_b32 s18, {8*172*4096}"); a.e("s_mov_b32 s19, 0x20000")
    a.e("v_lshrrev_b32 v9, 1, v1")
    a.e("v_and_b32 v18, 1, v1")
    a.e("v_lshlrev_b32 v18, 4, v18")
    for r7 in range(8):
        a.e(f"v_xor_b32 v{10+r7}, {r7}, v9")
        a.e(f"v_lshl_add_u32 v{10+r7}, v{10+r7}, 5, v18")
    a.e("v_and_b32 v2, 15, v1              ; i")
    a.e("v_lshrrev_b32 v3, 4, v1           ; g")
    a.e("v_lshrrev_b32 v4, 2, v2")
    a.e("v_lshl_add_u32 v5, v3, 2, v4      ; r0")
    a.e("v_and_b32 v6, 7, v5               ; f")
    a.e("v_lshlrev_b32 v5, 10, v5")
    a.e("v_and_b32 v7, 3, v2")
    a.e("v_lshl_add_u32 v5, v7, 3, v5")
    a.e("v_add_u32 v5, s58, v5")
    for b in range(8):
        a.e(f"v_xor_b32 v7, {b}, v6")
        a.e(f"v_lshl_add_u32 v{20+b}, v7, 5, v5")
    a.e("v_lshlrev_b32 v8, 4, v1           ; lane*16")
    if os.environ.get("NOAUX"): a.e("s_mov_b32 s57, 200")
    a.label("K1_AUXL")
    a.e("s_cmp_ge_u32 s57, 171")
    a.e("s_cbranch_scc1 K1_AUXE")
    a.e("s_cmp_lt_u32 s57, 128")
    for k in range(4): a.e(f"s_cselect_b32 s{12+k}, s{4+k}, s{8+k}")
    a.e("s_mov_b32 s15, 0x20000")
    a.e("s_and_b32 s59, s57, 127")
    a.e("s_lshl_b32 s59, s59, 15")
    a.e("s_mov_b32 m0, s58")
    a.e("s_nop 0")
    for r in range(32):
        a.e(f"buffer_load_dwordx4 v{10+(r&7)}, s[12:15], s59 offen lds")
        a.e("s_add_u32 m0, m0, 1024")
        a.e("s_add_u32 s59, s59, 1024")
    a.e("s_lshl_b32 s60, s57, 12           ; u*4096")
    a.e("s_waitcnt vmcnt(0)")
    for N in range(8):
        q = 64 + 16 * (N & 3)
        for mt in range(4):
            cidx = 4 * N + mt
            for e4 in range(2):
                a.e(f"ds_read_b64_tr_b16 v[{q+4*mt+2*e4}:{q+4*mt+2*e4+1}], v{20+(cidx&7)} offset:{(cidx>>3)*256 + e4*16384}")
        a.e("s_waitcnt lgkmcnt(0)")
        for mt in range(4):
            a.e(f"buffer_store_dwordx4 v[{q+4*mt}:{q+4*mt+3}], v8, s[16:19], s60 offen offset:{mt*1024} sc1")
        a.e(f"s_add_u32 s60, s60, {172*4096}")
    a.e("s_waitcnt vmcnt(0)")
    a.e("s_add_u32 s57, s57, 80")
    a.e("s_branch K1_AUXL")
    a.label("K1_AUXE")
    if common.DIAG:
        stamp(a, 4)
        stamp_flush(a, 1, 9)
    a.e("s_endpgm")

def gen_k1(a, name="proj_kernel", stflag=""):
    kernel_header(a, name)
    a.block("k1_pro")
    a.e("s_cmp_ge_u32 s2, 256")
    a.e("s_cbranch_scc1 K1_END")
    stamp(a, 0)
    a.e(f"s_load_dwordx4 s[36:39], s[0:1], {KA['x']}")
    a.e(f"s_load_dwordx4 s[40:43], s[0:1], {KA['wq']}")
    a.e(f"s_load_dwordx2 s[44:45], s[0:1], {KA['wuv']}")
    a.e(f"s_load_dwordx4 s[48:51], s[0:1], {KA['wg']}")
    a.e(f"s_load_dwordx2 s[52:53], s[0:1], {KA['ws']}")
    a.e(f"s_load_dwordx2 s[34:35], s[0:1], {KA['dbg']}")
    a.e("v_lshrrev_b32 v1, 6, v0")
    a.e("s_nop 0")
    a.e("v_readfirstlane_b32 s20, v1")
    a.e("v_and_b32 v1, 63, v0              ; lane")
    code_touch(a, name, "K1_END", 1, 250, 251, "s20")
    a.e("s_and_b32 s54, s2, 7              ; x")
    a.e("s_lshr_b32 s55, s2, 3             ; j")
    a.e("s_and_b32 s56, s55, 3             ; m")
    a.e("s_lshr_b32 s55, s55, 2            ; pi")
    a.e("s_waitcnt lgkmcnt(0)")
    if FUSE_LN:
        srd(a, "s36", "s37", 0x200000, 68)
        a.e("v_lshlrev_b32 v99, 4, v1")
        a.e("s_lshl_b32 s64, s20, 13")
        a.e("v_add_u32 v99, s64, v99")
        a.e("s_lshr_b32 s33, s2, 2")
        a.e("s_lshl_b32 s33, s33, 15")
        a.e("s_and_b32 s74, s2, 3")
        a.e("s_cmp_lg_u32 s74, 0")
        a.e("s_cbranch_scc1 K1_NOX")
        for r in range(8):
            if r == 4: a.e("s_add_u32 s32, s33, 0x1000")
            a.e(f"buffer_load_dwordx4 v[{100+4*r}:{103+4*r}], v99, s[68:71], {'s33' if r < 4 else 's32'} offen offset:{(r & 3)*1024}")
        a.label("K1_NOX")
    a.e("s_cmp_ge_u32 s54, 4")
    a.e("s_cbranch_scc1 K1_XN")
    a.e("s_lshl_b32 s57, s54, 3")
    a.e("s_add_u32 s57, s57, s55           ; p 0..31")
    a.e("s_mov_b32 s60, s38")
    a.e("s_mov_b32 s61, s39")
    a.e("s_cmp_lt_u32 s57, 16")
    a.e("s_cselect_b32 s21, 0, 1           ; type K=0 / V=1")
    a.e("s_cselect_b32 s62, s42, s44")
    a.e("s_cselect_b32 s63, s43, s45       ; W")
    a.e(f"s_mov_b32 s59, {VF}")
    a.e(f"s_cselect_b32 s58, {KF}, s59")
    a.e("s_and_b32 s57, s57, 15            ; panel")
    a.e("s_branch K1_QKV")
    a.label("K1_XN")
    a.e("s_cmp_eq_u32 s55, 7")
    a.e("s_cbranch_scc1 K1_AUX")
    a.e("s_sub_u32 s57, s54, 4")
    a.e("s_mul_i32 s57, s57, 7")
    a.e("s_add_u32 s57, s57, s55           ; q")
    a.e("s_cmp_ge_u32 s57, 27")
    a.e("s_cbranch_scc1 K1_AUX")
    a.e(f"s_add_u32 s60, s52, {XN}")
    a.e("s_addc_u32 s61, s53, 0")
    a.e("s_cmp_ge_u32 s57, 16")
    a.e("s_cbranch_scc1 K1_GU")
    a.e("s_mov_b32 s21, 2")
    a.e("s_mov_b32 s62, s40")
    a.e("s_mov_b32 s63, s41")
    a.e(f"s_mov_b32 s58, {QF}")
    a.label("K1_QKV")
    a.e("s_mov_b32 s22, 8192")
    a.e("s_lshl_b32 s59, s57, 9")
    a.e("s_lshl_b32 s64, s20, 7")
    a.e("s_add_u32 s59, s59, s64")
    a.e("s_add_u32 s8, s62, s59")
    a.e("s_addc_u32 s9, s63, 0")
    a.e("s_and_b32 s9, s9, 0xffff")
    a.e("s_sub_u32 s10, 0x400000, s59")
    a.e("s_mov_b32 s11, 0x20000")
    a.e("s_add_u32 s12, s8, 64")
    a.e("s_addc_u32 s13, s9, 0")
    a.e("s_sub_u32 s14, s10, 64")
    a.e("s_mov_b32 s15, 0x20000")
    a.e("s_lshl_b32 s25, s57, 1")
    a.e("s_lshr_b32 s64, s20, 1")
    a.e("s_add_u32 s25, s25, s64           ; head")
    a.e("s_lshl_b32 s25, s25, 19")
    a.e("s_and_b32 s64, s20, 1")
    a.e("s_lshl_b32 s64, s64, 12")
    a.e("s_add_u32 s25, s25, s64")
    a.e("s_lshl_b32 s64, s56, 17           ; 16m*8192")
    a.e("s_add_u32 s25, s25, s64")
    a.e("s_mov_b32 s65, 0x1000000")
    a.e("s_branch K1_COMMON")
    a.label("K1_GU")
    a.e("s_mov_b32 s21, 3")
    a.e("s_sub_u32 s57, s57, 16")
    a.e("s_lshl_b32 s57, s57, 2")
    a.e("s_add_u32 s57, s57, s20           ; fs")
    a.e("s_min_u32 s57, s57, 42")
    a.e("s_mov_b32 s22, 2752")
    a.e("s_lshl_b32 s59, s57, 6")
    a.e("s_add_u32 s8, s48, s59")
    a.e("s_addc_u32 s9, s49, 0")
    a.e("s_and_b32 s9, s9, 0xffff")
    a.e(f"s_sub_u32 s10, {512*2752}, s59")
    a.e("s_mov_b32 s11, 0x20000")
    a.e("s_add_u32 s12, s50, s59")
    a.e("s_addc_u32 s13, s51, 0")
    a.e("s_and_b32 s13, s13, 0xffff")
    a.e("s_mov_b32 s14, s10")
    a.e("s_mov_b32 s15, 0x20000")
    a.e(f"s_mov_b32 s58, {HF}")
    a.e(f"s_mul_i32 s25, s56, {32*43*1024}")
    a.e("s_lshl_b32 s64, s57, 10")
    a.e("s_add_u32 s25, s25, s64")
    a.e(f"s_mov_b32 s65, {128*43*1024}")
    a.label("K1_COMMON")
    a.e("s_lshl_b32 s64, s56, 19")
    a.e("s_add_u32 s4, s60, s64")
    a.e("s_addc_u32 s5, s61, 0")
    a.e("s_and_b32 s5, s5, 0xffff")
    a.e("s_mov_b32 s6, 0x80000")
    a.e("s_mov_b32 s7, 0x20000")
    a.e("s_add_u32 s16, s52, s58")
    a.e("s_addc_u32 s17, s53, 0")
    a.e("s_and_b32 s17, s17, 0xffff")
    a.e("s_mov_b32 s18, s65")
    a.e("s_mov_b32 s19, 0x20000")
    a.e("s_mov_b32 s27, 0x80000000")
    a.e("s_mov_b32 s29, 0x80000000")
    a.e("s_mov_b32 s30, 0x3e0293ee         ; 128^-0.5*log2(e)")
    a.e("s_mov_b32 s31, 0xbfb8aa3b         ; -log2(e)")
    a.e("v_lshrrev_b32 v9, 3, v1")
    a.e("s_lshl_b32 s64, s20, 3")
    a.e("v_add_u32 v9, s64, v9")
    a.e("v_lshlrev_b32 v2, 10, v9")
    a.e("s_and_b32 s64, s20, 1")
    a.e("s_lshl_b32 s64, s64, 2")
    a.e("v_lshrrev_b32 v9, 4, v1")
    a.e("v_add_u32 v9, s64, v9")
    a.e("v_and_b32 v10, 7, v1")
    a.e("v_xor_b32 v9, v9, v10")
    a.e("v_and_b32 v9, 7, v9")
    a.e("v_lshl_add_u32 v2, v9, 4, v2")
    a.e("v_and_b32 v9, 15, v1              ; t")
    a.e("v_lshrrev_b32 v10, 4, v1          ; g")
    a.e("v_lshrrev_b32 v11, 1, v9")
    a.e("v_xor_b32 v11, v11, v10")
    a.e("v_lshlrev_b32 v11, 4, v11")
    a.e("v_lshl_add_u32 v3, v9, 7, v11")
    a.e("v_xor_b32 v4, 64, v3")
    a.e("v_lshrrev_b32 v11, 2, v9          ; i>>2")
    a.e("v_lshl_add_u32 v11, v10, 3, v11")
    a.e("v_lshlrev_b32 v11, 6, v11")
    a.e("v_and_b32 v12, 3, v9")
    a.e("v_lshl_add_u32 v11, v12, 3, v11")
    a.e("v_and_b32 v12, 1, v10")
    a.e("v_lshl_add_u32 v5, v12, 5, v11")
    a.e("s_lshl_b32 s64, s20, 15")
    a.e("s_add_u32 s64, s64, 0x8000")
    a.e("v_add_u32 v5, s64, v5")
    a.e("v_xor_b32 v6, 32, v5")
    a.e("v_lshlrev_b32 v14, 4, v1")
    a.e("v_add_u32 v14, s64, v14")
    a.e("v_add_u32 v12, 0x10000, v3")
    a.e("v_add_u32 v13, 0x10000, v4")
    a.e("v_lshrrev_b32 v11, 2, v1")
    a.e("v_mul_lo_u32 v7, v11, s22")
    a.e("v_lshrrev_b32 v11, 1, v1")
    a.e("v_lshrrev_b32 v15, 5, v1")
    a.e("v_xor_b32 v11, v11, v15")
    a.e("v_and_b32 v11, 1, v11")
    a.e("v_lshl_add_u32 v7, v11, 5, v7")
    a.e("v_and_b32 v11, 1, v1")
    a.e("v_lshl_add_u32 v7, v11, 4, v7")
    a.e("s_lshl_b32 s66, s22, 4            ; 16 rows")
    a.e("s_mov_b32 s67, 0")
    def wdma(ks):
        slot = ks % 8
        for half in range(2):
            for hf in range(2):
                srdn = "s[8:11]" if half == 0 else "s[12:15]"
                a.e(f"s_add_u32 m0, s64, {slot*4096 + half*2048 + hf*1024}")
                if hf == 0: a.e("s_mov_b32 s73, s67")
                else: a.e("s_add_u32 s73, s67, s66")
                a.e(f"buffer_load_dwordx4 v7, {srdn}, s73 offen{WFLAG} lds")
        a.e("s_add_u32 s67, s67, s66")
        a.e("s_add_u32 s67, s67, s66")
    a.e("s_lshl_b32 s26, s20, 10           ; m0 base = w*1024")
    a.e("s_mov_b32 s24, 0")
    def tdma():
        for slab in range(8):
            a.e("s_mov_b32 m0, s26" if slab == 0 else "s_add_u32 m0, m0, 3968")
            a.e("s_nop 0")
            a.e(f"buffer_load_dwordx4 v2, s[4:7], s24 offen offset:{slab*128} lds")
        a.e("s_add_u32 s24, s24, 0x8000")
        a.e("s_add_u32 s26, s26, 0x8000")
        a.e("s_and_b32 s26, s26, 0x1ffff")
    for ks in range(8): wdma(ks)
    if FUSE_LN:
        a.e("s_cmp_lt_u32 s21, 2")
        a.e("s_cbranch_scc0 K1_NOT0")
    tdma()
    if FUSE_LN:
        a.label("K1_NOT0")
        a.e("s_cmp_lg_u32 s74, 0")
        a.e("s_cbranch_scc1 K1_NOLN")
        a.e("s_waitcnt vmcnt(32)")
        ln_compute(a)
        a.label("K1_NOLN")
    stamp(a, 8)
    a.e("v_lshrrev_b32 v11, 1, v10         ; g>>1")
    a.e("v_lshlrev_b32 v8, 10, v11")
    a.e("v_and_b32 v11, 1, v10")
    a.e("v_lshl_add_u32 v8, v11, 9, v8     ; + (g&1)*512")
    a.e("s_cmp_eq_u32 s21, 0")
    a.e("s_cbranch_scc0 K1_A1")
    a.e("v_lshrrev_b32 v11, 3, v9          ; K: r=16*(t>>3)+(t&7)")
    a.e("v_lshlrev_b32 v11, 4, v11")
    a.e("v_and_b32 v15, 7, v9")
    a.e("v_add_u32 v11, v11, v15")
    a.e("v_lshl_add_u32 v8, v11, 4, v8")
    a.e("s_branch K1_A3")
    a.label("K1_A1")
    a.e("s_cmp_eq_u32 s21, 3")
    a.e("s_cbranch_scc1 K1_A2")
    a.e("v_lshl_add_u32 v8, v9, 4, v8      ; Q,V: + t*16")
    a.e("s_branch K1_A3")
    a.label("K1_A2")
    a.e("v_lshlrev_b32 v8, 4, v1")
    a.label("K1_A3")
    queue = [("W", k) for k in range(8) for _ in range(4)] + ([] if FUSE_LN else [("T", 0)] * 8)
    for ks in range(16):
        last = max(i for i, q in enumerate(queue) if q == ("W", ks))
        a.e(f"s_waitcnt vmcnt({len(queue) - 1 - last})")
        queue = queue[last + 1:]
        if ks == 0: stamp(a, 5)
        if ks == 8 and FUSE_LN:
            a.e("s_cmp_lg_u32 s74, 0")
            a.e("s_cbranch_scc1 K1_NOSIG")
            ln_signal(a)
            a.label("K1_NOSIG")
        slot = ks % 8
        for c in range(4):
            for e4 in range(2):
                w = 16 * ks + 4 * c + 2 * e4
                a.e(f"ds_read_b64_tr_b16 a[{w}:{w+1}], v{5 + (c & 1)} offset:{slot*4096 + (c >> 1)*2048 + e4*256}")
        if ks + 8 < 16:
            a.e("s_waitcnt lgkmcnt(0)")
            wdma(ks + 8)
            queue += [("W", ks + 8)] * 4
    a.e("s_waitcnt lgkmcnt(0)")
    stamp(a, 1)
    if FUSE_LN:
        a.e("s_cmp_lt_u32 s21, 2")
        a.e("s_cbranch_scc1 K1_T12")
        a.e("s_cmp_lg_u32 s20, 0")
        a.e("s_cbranch_scc1 K1_NOPOLL")
        poll_xn(a)
        a.label("K1_NOPOLL")
        a.e("s_barrier")
        a.e("buffer_inv sc1")
        a.e("s_waitcnt vmcnt(0)")
        tdma()
        a.label("K1_T12")
    a.e("s_barrier")
    tdma(); tdma()
    a.e("s_waitcnt vmcnt(8)")
    a.e("s_barrier")
    stamp(a, 2)
    for f in range(3):
        xb = XB + 4 * f
        a.e(f"ds_read_b128 v[{xb}:{xb+3}], {'v3' if f % 2 == 0 else 'v4'} offset:{(f >> 1)*4096}")
    a.e("s_mov_b32 s23, 16")
    for typ, code in (("K", 0), ("V", 1), ("Q", 2)):
        a.e(f"s_cmp_eq_u32 s21, {code}")
        a.e(f"s_cbranch_scc1 K1_LOOP_{typ}")
    a.e("s_branch K1_LOOP_G")
    for typ in "KVQG":
        a.block(f"k1_loop_{typ}")
        a.raw(".p2align 6")
        a.label(f"K1_LOOP_{typ}")
        e1 = k1_period(a, typ, stflag)
        a.e("s_sub_u32 s23, s23, 1")
        a.e("s_cmp_lg_u32 s23, 0")
        a.e(f"s_cbranch_scc1 K1_LOOP_{typ}")
        a.block(f"k1_tail_{typ}")
        a.e("s_nop 7")
        stamp(a, 3)
        for o in e1: a.e(o)
        if common.DIAG:
            a.e("s_waitcnt vmcnt(0)")
            stamp(a, 4)
            stamp_flush(a, 1, 9)
        a.e("s_endpgm")
    gen_aux(a)
    a.cur = None
    a.label("K1_END")
    a.e("s_endpgm")
    return kernel_desc(name, 512, 102, 256)

def check_k1(a):
    probs = []
    for typ in "KVQG":
        tr = a.blocks["k1_pro"] + a.blocks[f"k1_loop_{typ}"] * 3 + a.blocks[f"k1_tail_{typ}"]
        probs += check_trace(tr, "k1" + typ)
    probs += check_trace(a.blocks["k1_pro"][:40] + a.blocks["k1_aux"], "k1aux")
    return probs
```

```python
from common import *
import common, os
EXP = os.environ.get('K2EXP', '')
QL, QS, KX, VX, QP = 0, 32, 64, 128, 192
OB = [96, 112, 160, 176]
SA, SB, PA, PB, TRI, NEG = 32, 48, 64, 72, 80, 96
LL, LS, LB = 112, 114, 116
OL, OS = 128, 192
VK, VV, VLANE, VT = 2, 3, 4, 5
CSTFLAG = ""
PRO_W0 = 30
PRO_W8 = 32
PREFETCH = False

def mf(d, a_, b_, c): return f"v_mfma_f32_32x32x16_bf16 v[{d}:{d+15}], {a_}, {b_}, {c}"
def A4(b): return f"a[{b}:{b+3}]"
def V4(b): return f"v[{b}:{b+3}]"

def qk(S, Q, K):
    return [mf(S, A4(K + 4*s), A4(Q + 4*s), "0" if s == 0 else f"v[{S}:{S+15}]") for s in range(8)]
def pv(P, V, O):
    if O == "B":
        return [f"v_mfma_f32_32x32x16_bf16 a[{OB[T]}:{OB[T]+15}], {A4(V + 4*(2*T + ks))}, {V4(P + 4*ks)}, a[{OB[T]}:{OB[T]+15}]" for ks in range(2) for T in range(4)]
    return [mf(O + 16*T, A4(V + 4*(2*T + ks)), V4(P + 4*ks), f"v[{O+16*T}:{O+16*T+15}]") for ks in range(2) for T in range(4)]

def sm_ops(S, P, L):
    ops = []
    for r in range(16):
        ops.append(dict(t=f"v_exp_f32 v{S+r}, v{S+r}", c=8, k="e", r=r, deps=[]))
    for r in range(16):
        ops.append(dict(t=f"v_add_f32 v{L+(r&1)}, v{L+(r&1)}, v{S+r}", c=4, k="a", r=r, deps=[r] + ([16 + r - 2] if r >= 2 else [])))
    for k in range(8):
        ops.append(dict(t=f"v_cvt_pk_bf16_f32 v{P+k}, v{S+2*k}, v{S+2*k+1}", c=4, k="c0" if k < 4 else "c1", r=k, deps=[2*k, 2*k+1]))
    return ops

def try_place(ops, start, end, c0_min, c1_min, used, b):
    used = dict(used); out = {}; pos = {}
    seq = 0
    for g in range(start, end + 1):
        room = (b(g) if callable(b) else b) - used.get(g % 32, 0)
        last_e = None
        while True:
            best = None
            for n, o in enumerate(ops):
                if n in pos: continue
                if o["k"] == "c0" and g < c0_min: continue
                if o["k"] == "c1" and g < c1_min: continue
                if any(d not in pos for d in o["deps"]): continue
                if last_e is not None and last_e in o["deps"]: continue
                if o["c"] > room: continue
                pr = {"c0": 0, "c1": 0, "a": 1, "e": 2}[o["k"]]
                key = (pr, o["r"])
                if best is None or key < best[0]: best = (key, n)
            if best is None: break
            n = best[1]; o = ops[n]
            pos[n] = g; out.setdefault(g, []).append(o["t"]); room -= o["c"]; used[g % 32] = used.get(g % 32, 0) + o["c"]
            last_e = n if o["k"] == "e" else None
    return (out, used) if len(pos) == len(ops) else None

HEAD = lambda o: (o["k"] == "e" and o["r"] < 10) or (o["k"] == "a" and o["r"] < 8) or o["k"] == "c0"
def subset(ops, keep):
    idx = [n for n, o in enumerate(ops) if keep(o)]
    m = {n: i for i, n in enumerate(idx)}
    return [dict(o, deps=[m[d] for d in o["deps"] if d in m]) for n, o in enumerate(ops) if n in m]
def place3(A, Bh, Bt, used):
    res = []
    u = dict(used)
    for b in range(8, 41):
        rt = try_place(subset(Bt, lambda o: not HEAD(o)), 0, 7, 0, 0, u, b)
        if rt is not None: break
    u = rt[1]; bt = b
    cands = []
    for base in (12, 16, 20, 24, 28, 32):
        cands.append((base, 0))
        for m in (6, 4, 3, 2): cands.append((base, m))
    for base, m in cands:
        b = (lambda g, base=base, m=m: base + (4 if m and g % m == 0 else 0))
        ra = try_place(A, 10, 31, 19, 23, u, b)
        if ra is None: continue
        rb = try_place(subset(Bh, HEAD), 18, 31, 27, 32, ra[1], b)
        if rb is None: continue
        return ra[0], rb[0], rt[0], (bt, base, m)
    raise AssertionError("no placement")

def kread(buf): return [f"ds_read_b128 {A4(buf+4*s)}, v{VK} offset:{s*1024}" for s in range(8)]
def vread(buf): return [f"ds_read_b128 {A4(buf+4*(2*T+ks))}, v{VV} offset:{(2*T+ks)*1024}" for ks in range(2) for T in range(4)]
KADV = [f"v_add_u32 v{VK}, s35, v{VK}", f"v_and_b32 v{VK}, 0xffff, v{VK}"]
VADV = [f"v_add_u32 v{VT}, s34, v{VV}", f"v_bfi_b32 v{VV}, s31, v{VT}, v{VV}"]
def dma(kind):
    if kind == "K":
        return ["s_mov_b32 m0, s27", "s_add_u32 s27, s27, 0x2000",
                f"buffer_load_dwordx4 v{VLANE}, s[4:7], s25 offen lds", f"buffer_load_dwordx4 v{VLANE}, s[4:7], s25 offen offset:1024 lds",
                "s_and_b32 s27, s27, 0xffff", "s_add_u32 s25, s25, 0x2000"]
    return ["s_mov_b32 m0, s28", "s_add_u32 s28, s28, 0x2000",
            f"buffer_load_dwordx4 v{VLANE}, s[8:11], s26 offen lds", f"buffer_load_dwordx4 v{VLANE}, s[8:11], s26 offen offset:1024 lds",
            "s_and_b32 s28, s28, 0xffff", "s_or_b32 s28, s28, 0x10000", "s_add_u32 s26, s26, 0x2000"]

def period(a, kind, masked):
    hasQK = kind != "FIN"; hasPV = kind != "PRO"
    if kind in ("PRO", "P1"):
        M = qk(SA, QL, KX) + qk(SB, QS, KX) + pv(PA, VX, OL) + pv(PB, VX, OS); lA, lBh, lBt = LL, LS, LS
    elif kind == "TR":
        M = qk(SA, QL, KX) + qk(SB, QP, KX) + pv(PA, VX, OL) + pv(PB, VX, OS); lA, lBh, lBt = LL, LB, LS
    else:
        M = qk(SA, QL, KX) + qk(SB, QP, KX) + pv(PA, VX, OL) + pv(PB, VX, "B"); lA, lBh, lBt = LL, LB, LB
    fill, pre = {}, {}
    def add(d, g, ops):
        d.setdefault(g, []).extend(ops if isinstance(ops, list) else [ops])
    nread = {}
    def reads(lst, gaps, adv):
        for n, op in enumerate(lst):
            g = gaps[n * len(gaps) // len(lst)]
            add(fill, g, op); nread[g] = nread.get(g, 0) + 1
        add(fill, gaps[-1], adv[0]); add(fill, gaps[-1] + 1 if gaps[-1] < 31 else 31, adv[1])
    if kind == "PRO":
        for n, kk in enumerate("KKKVKVKVKVKV"): add(fill, n, dma(kk))
        for s_ in range(8):
            add(fill, 12 + s_ // 2, f"buffer_load_dwordx4 {A4(QP+4*s_)}, v{VLANE}, s[12:15], {'s62' if s_ < 4 else 's63'} offen offset:{(s_ & 3)*1024}")
        add(pre, 8, "s_waitcnt vmcnt(16)")
        add(pre, 16, "s_waitcnt vmcnt(30)"); add(pre, 16, "s_barrier")
        reads(kread(KX), list(range(16, 24)), KADV)
    elif kind in ("P1", "TR", "P2"):
        vm = {"P1": 20, "TR": 16, "P2": 14}[kind]
        add(pre, 0, f"s_waitcnt vmcnt({vm}) lgkmcnt(0)"); add(pre, 0, "s_barrier")
        reads(vread(VX), list(range(0, 12)), VADV); add(pre, 16, "s_waitcnt lgkmcnt(0)")
        reads(kread(KX), list(range(16, 28)), KADV)
    else:
        add(pre, 0, "s_waitcnt vmcnt(14) lgkmcnt(0)"); add(pre, 0, "s_barrier")
        add(pre, 0, vread(VX))
        add(pre, 16, "s_waitcnt lgkmcnt(0)")
    if kind == "PRO":
        d = dma("K") + dma("V"); spread(fill, d, 17, 21)
    elif kind in ("P1", "TR"):
        d = dma("K") + dma("V"); spread(fill, d, 7, 9)
    elif kind == "P2":
        spread(fill, dma("K") + dma("V"), 7, 9); spread(fill, dma("K") + dma("V"), 27, 31)
    if kind == "TR" and PREFETCH:
        add(fill, 12, ["buffer_load_dword v12, v10, s[48:51], 0 offen", "buffer_load_dword v13, v11, s[52:55], 0 offen"])
    used = {}
    for g in range(32): used[g] = 4 * len(fill.get(g, [])) if kind != "PRO" else 4 * nread.get(g, 0)
    A = sm_ops(SA, PA, lA); Bh = sm_ops(SB, PB, lBh); Bt = sm_ops(SB, PB, lBt)
    pa, pb, pt, bud = place3(A, Bh, Bt, used)
    if common.VERB: print("period", kind, masked, "budget", bud)
    if kind != "PRO":
        for g, ops in sorted(pt.items()):
            if kind != "FIN": add(fill, g, ops)
            else: add(pre, 0, ops)
    if hasQK:
        for g, ops in pa.items(): add(fill, g, ops)
        for g, ops in pb.items(): add(fill, g, ops)
    if masked:
        add(fill, 28, "s_add_u32 s29, s29, s33"); add(fill, 28, "s_add_u32 s30, s30, s33")
    state = {"prev": None}
    def E(p):
        if kind in ("P1", "P2", "TR"):
            if "noexp" in EXP and p.startswith("v_exp"): return
            if "noadd" in EXP and p.startswith("v_add_f32"): return
            if "nocvt" in EXP and p.startswith("v_cvt"): return
            if "nods" in EXP and p.startswith("ds_read"): return
            if "nodma" in EXP and p.startswith("buffer_load_dwordx4"): return
            if "nobar" in EXP and p.startswith("s_barrier"): return
            if "nomfma" in EXP and p.startswith("v_mfma"): return
        ins = Ins(p)
        pv_ = state["prev"]
        if pv_ is not None and pv_.kind == "trans" and ins.kind == "valu" and set(pv_.wr) & set(ins.rd): a.e("s_nop 0")
        a.e(p); state["prev"] = ins
    for i, m in enumerate(M):
        for p in pre.get(i, []): E(p)
        present = (hasQK if i < 16 else hasPV)
        if present:
            if masked and i in (0, 8):
                S = SA if i == 0 else SB; rel = "s29" if i == 0 else "s30"; wv = "s20" if i == 0 else "s60"
                base = m.rsplit(",", 1)[0]
                l1, l2, lj = a.newlabel("K2T"), a.newlabel("K2N"), a.newlabel("K2J")
                a.e(f"s_cmp_lt_i32 {rel}, {wv}")
                a.raw(f"    s_cbranch_scc0 {l1}\n    {m}\n    s_branch {lj}\n{l1}:")
                a.raw(f"    s_cmp_eq_i32 {rel}, {wv}\n    s_cbranch_scc1 {l2}\n    {base}, v[{NEG}:{NEG+15}]\n    s_branch {lj}\n{l2}:")
                a.e(f"{base}, v[{TRI}:{TRI+15}]")
                a.label(lj)
                state["prev"] = None
            else:
                E(m)
        for p in fill.get(i, []): E(p)

def ctx_addr(a):
    a.e("v_and_b32 v12, 31, v1             ; q")
    a.e("v_lshrrev_b32 v13, 5, v1          ; hh")
    a.e("v_lshrrev_b32 v8, 4, v12")
    a.e("v_lshlrev_b32 v8, 17, v8          ; (q>>4)*131072")
    a.e("v_lshl_add_u32 v8, v13, 8, v8")
    a.e("v_and_b32 v9, 15, v12")
    a.e("v_lshl_add_u32 v8, v9, 4, v8")
    a.e("s_lshl_b32 s44, s38, 12           ; head*4*1024")

def tri_init(a, zero_reg):
    a.e("v_and_b32 v6, 31, v1")
    a.e("v_lshrrev_b32 v7, 5, v1")
    a.e("v_lshlrev_b32 v7, 2, v7")
    a.e("v_sub_u32 v6, v6, v7              ; q - 4h")
    a.e("v_mov_b32 v7, 0xf149f2ca          ; -1e30")
    for r in range(16):
        i, j = r >> 2, r & 3
        key = 16 * (i & 1) + 8 * (i >> 1) + j
        a.e(f"v_cmp_le_i32 vcc, {key}, v6")
        a.e("s_nop 1")
        a.e(f"v_cndmask_b32 v{TRI+r}, v7, v{zero_reg}, vcc")

def ctx_out(a, O, L, qt, combine=False, flagbit=None):
    if combine:
        a.e("s_waitcnt lgkmcnt(0)")
        a.e("s_barrier")
        for n in range(16):
            a.e(f"ds_read_b128 v[{32+4*n}:{32+4*n+3}], v6 offset:{n*1024}")
        a.e(f"ds_read_b32 v{LB}, v7 offset:16384")
    a.e(f"s_lshl_b32 s45, {qt}, 18       ; qtile*2*128*1024")
    a.e("s_add_u32 s45, s45, s44")
    a.e(f"v_add_f32 v{L}, v{L}, v{L+1}")
    if combine:
        a.e("s_waitcnt lgkmcnt(0)")
        a.e(f"v_add_f32 v{L}, v{L}, v{LB}")
    a.e(f"v_mov_b32 v10, v{L}")
    a.e("s_nop 1")
    a.e(f"v_permlane32_swap_b32 v{L}, v10")
    a.e("s_nop 1")
    a.e(f"v_add_f32 v{L}, v{L}, v10")
    if combine:
        for r in range(0, 64, 2): a.e(f"v_pk_add_f32 v[{O+r}:{O+r+1}], v[{O+r}:{O+r+1}], v[{32+r}:{32+r+1}]")
    skip = None
    if flagbit is not None:
        a.e(f"v_pk_add_f32 v[14:15], v[{O}:{O+1}], v[{O+2}:{O+3}]")
        for r in range(4, 64, 2): a.e(f"v_pk_add_f32 v[14:15], v[14:15], v[{O+r}:{O+r+1}]")
        a.e("v_add_f32 v14, v14, v15")
        a.e("s_mov_b32 s67, 0x21800000         ; 2^-60")
        a.e("s_mov_b32 s68, 0x5d800000         ; 2^60")
        a.e(f"v_cmp_nle_f32 s[70:71], s67, v{L}          ; !(2^-60 <= l)")
        a.e(f"v_cmp_nge_f32 s[72:73], s68, v{L}          ; !(2^60 >= l)")
        a.e("v_cmp_class_f32 vcc, v14, s69")
        a.e("s_nop 1")
        a.e("s_or_b64 s[70:71], s[70:71], s[72:73]")
        a.e("s_or_b64 s[70:71], s[70:71], vcc")
        skip = a.newlabel("K2_OK"); done = a.newlabel("K2_DONE")
        a.e("s_cmp_eq_u64 s[70:71], 0")
        a.e(f"s_cbranch_scc1 {skip}")
        a.e(f"s_or_b32 s66, s66, {flagbit}")
        a.e(f"s_branch {done}")
        a.label(skip)
    a.e(f"v_rcp_f32 v10, v{L}")
    a.e("s_nop 0")
    a.e("v_mov_b32 v11, v10")
    for T in range(4):
        for c in range(2):
            q = 16 + 4 * ((2 * T + c) % 4)
            for h, i in enumerate((c, c + 2)):
                b = O + 16 * T + 4 * i
                for j in (0, 2): a.e(f"v_pk_mul_f32 v[{b+j}:{b+j+1}], v[{b+j}:{b+j+1}], v[10:11]")
                a.e(f"v_cvt_pk_bf16_f32 v{q+2*h}, v{b}, v{b+1}")
                a.e(f"v_cvt_pk_bf16_f32 v{q+2*h+1}, v{b+2}, v{b+3}")
            a.e(f"buffer_store_dwordx4 v[{q}:{q+3}], v8, s[16:19], s45 offen offset:{T*1024 + c*512}{CSTFLAG}")
    if skip: a.label(done)

def slow_path(a):
    S, P, M_, Lr, SC, QS_ = 32, 64, 112, 114, 116, 192
    a.label("K2_SLOW")
    a.e("s_cmp_eq_u32 s66, 0")
    a.e("s_cbranch_scc1 K2_END")
    a.e("s_waitcnt vmcnt(0)")
    a.e("s_bitcmp1_b32 s66, 0")
    a.e("s_cbranch_scc0 K2_SLOW_L")
    a.e("s_and_b32 s66, s66, 2")
    for r in range(32): a.e(f"v_accvgpr_mov_b32 a{QS_+r}, a{QS+r}")
    a.e("s_sub_u32 s24, s22, 4")
    a.e("s_mov_b32 s46, s41")
    a.e("s_branch K2_SLOW_GO")
    a.label("K2_SLOW_L")
    a.e("s_mov_b32 s66, 0")
    for r in range(32): a.e(f"v_accvgpr_mov_b32 a{QS_+r}, a{QL+r}")
    a.e("s_sub_u32 s24, s23, 4")
    a.e("s_mov_b32 s46, s40")
    a.label("K2_SLOW_GO")
    a.e("s_add_u32 s24, s24, s20")
    for r in range(64): a.e(f"v_mov_b32 v{OL+r}, 0")
    a.e(f"v_mov_b32 v{Lr}, 0")
    a.e(f"v_mov_b32 v{Lr+1}, 0")
    tri_init(a, Lr)
    a.e(f"v_mov_b32 v{M_}, 0xff800000")
    a.e("s_mov_b32 s25, 0                  ; tile")
    a.label("K2_SLOW_LOOP")
    a.e("s_lshl_b32 s26, s25, 13")
    a.e("s_add_u32 s27, s26, 0x1000")
    for k in range(8):
        a.e(f"buffer_load_dwordx4 {A4(KX+4*k)}, v{VLANE}, s[4:7], {'s26' if k < 4 else 's27'} offen offset:{(k & 3)*1024}")
    for k in range(8):
        a.e(f"buffer_load_dwordx4 {A4(VX+4*k)}, v{VLANE}, s[8:11], {'s26' if k < 4 else 's27'} offen offset:{(k & 3)*1024}")
    a.e("s_waitcnt vmcnt(0)")
    m = qk(S, QS_, KX)
    l1, lj = a.newlabel("K2_ST"), a.newlabel("K2_SJ")
    a.e("s_cmp_eq_u32 s25, s24")
    a.raw(f"    s_cbranch_scc1 {l1}\n    {m[0]}\n    s_branch {lj}\n{l1}:")
    a.e(m[0].rsplit(",", 1)[0] + f", v[{TRI}:{TRI+15}]")
    a.label(lj)
    for x in m[1:]: a.e(x)
    a.e("s_nop 15")
    a.e(f"v_max3_f32 v{SC}, v{S}, v{S+1}, v{M_}")
    for r in range(2, 16, 2): a.e(f"v_max3_f32 v{SC}, v{S+r}, v{S+r+1}, v{SC}")
    a.e(f"v_mov_b32 v10, v{SC}")
    a.e("s_nop 1")
    a.e(f"v_permlane32_swap_b32 v{SC}, v10")
    a.e("s_nop 1")
    a.e(f"v_max_f32 v{SC}, v{SC}, v10")
    a.e(f"v_sub_f32 v10, v{M_}, v{SC}")
    a.e(f"v_mov_b32 v{M_}, v{SC}")
    a.e("v_exp_f32 v10, v10")
    for r in range(16): a.e(f"v_sub_f32 v{S+r}, v{S+r}, v{M_}")
    for r in range(16): a.e(f"v_exp_f32 v{S+r}, v{S+r}")
    a.e(f"v_mul_f32 v{Lr}, v{Lr}, v10")
    for r in range(16): a.e(f"v_add_f32 v{Lr}, v{Lr}, v{S+r}")
    for k in range(8): a.e(f"v_cvt_pk_bf16_f32 v{P+k}, v{S+2*k}, v{S+2*k+1}")
    for r in range(64): a.e(f"v_mul_f32 v{OL+r}, v{OL+r}, v10")
    a.e("s_nop 1")
    for x in pv(P, VX, OL): a.e(x)
    a.e("s_nop 15")
    a.e("s_add_u32 s25, s25, 1")
    a.e("s_cmp_le_u32 s25, s24")
    a.e("s_cbranch_scc1 K2_SLOW_LOOP")
    ctx_out(a, OL, Lr, "s46")
    a.e("s_branch K2_SLOW")

def gen_k2(a, name="attn_kernel"):
    kernel_header(a, name)
    a.block("k2_pre")
    a.e("s_cmp_ge_u32 s2, 256")
    a.e("s_cbranch_scc1 K2_END")
    stamp(a, 0)
    a.e(f"s_load_dwordx2 s[36:37], s[0:1], {KA['ws']}")
    a.e(f"s_load_dwordx2 s[56:57], s[0:1], {KA['wo']}")
    a.e(f"s_load_dwordx2 s[58:59], s[0:1], {KA['wd']}")
    a.e("v_lshrrev_b32 v1, 6, v0")
    a.e("s_nop 0")
    a.e("v_readfirstlane_b32 s20, v1       ; wave")
    a.e("v_and_b32 v1, 63, v0              ; lane")
    code_touch(a, name, "K2_END", 1, 14, 15, "s20")
    a.e("s_and_b32 s38, s2, 7")
    a.e("s_lshr_b32 s39, s2, 3")
    a.e("s_and_b32 s21, s39, 7             ; i")
    a.e("s_lshr_b32 s39, s39, 3")
    a.e("s_lshl_b32 s38, s38, 2")
    a.e("s_add_u32 s38, s38, s39           ; head")
    a.e("s_lshl_b32 s22, s21, 2")
    a.e("s_add_u32 s22, s22, 4             ; n1 = 4(i+1)")
    a.e("s_lshl_b32 s23, s21, 2")
    a.e("s_sub_u32 s23, 64, s23            ; nL = 4(16-i)")
    a.e("s_lshl_b32 s39, s38, 19           ; head*512K")
    a.e(f"v_lshlrev_b32 v{VLANE}, 4, v1")
    a.e("s_waitcnt lgkmcnt(0)")
    for srdn, reg in ((4, KF), (8, VF), (12, QF)):
        a.e(f"s_add_u32 s40, s39, {reg}")
        a.e(f"s_add_u32 s{srdn}, s36, s40")
        a.e(f"s_addc_u32 s{srdn+1}, s37, 0")
        a.e(f"s_and_b32 s{srdn+1}, s{srdn+1}, 0xffff")
        if srdn == 12: a.e(f"s_mov_b32 s{srdn+2}, 0x80000")
        else: a.e(f"s_lshl_b32 s{srdn+2}, s23, 13")
        a.e(f"s_mov_b32 s{srdn+3}, 0x20000")
    a.e(f"s_add_u32 s16, s36, {CF}")
    a.e("s_addc_u32 s17, s37, 0")
    a.e("s_and_b32 s17, s17, 0xffff")
    a.e("s_mov_b32 s18, 0x1000000")
    a.e("s_mov_b32 s19, 0x20000")
    srd(a, "s56", "s57", 0x400000, 48)
    srd(a, "s58", "s59", 1376 * 1024, 52)
    a.e("s_lshl_b32 s46, s2, 2")
    a.e("s_add_u32 s46, s46, s20")
    a.e("s_lshl_b32 s47, s46, 12")
    a.e("v_lshl_add_u32 v10, v1, 6, s47")
    a.e("v_and_b32 v11, 31, v1")
    a.e("s_lshl_b32 s47, s46, 11")
    a.e("v_lshl_add_u32 v11, v11, 6, s47")
    a.e("s_sub_u32 s40, 15, s21")
    a.e("s_lshl_b32 s40, s40, 2")
    a.e("s_add_u32 s40, s40, s20           ; qtile L")
    a.e("s_lshl_b32 s41, s21, 2")
    a.e("s_add_u32 s41, s41, s20           ; qtile S")
    a.e("s_lshl_b32 s42, s40, 13")
    a.e("s_lshl_b32 s43, s41, 13")
    a.e("s_add_u32 s44, s42, 0x1000")
    a.e("s_add_u32 s45, s43, 0x1000")
    a.e("s_xor_b32 s61, s40, 1")
    a.e("s_lshl_b32 s62, s61, 13")
    a.e("s_add_u32 s63, s62, 0x1000")
    a.e("s_lshl_b32 s27, s20, 11           ; K m0 base = w*2048")
    a.e("s_or_b32 s28, s27, 0x10000        ; V m0 base")
    a.e("s_mov_b32 s25, s27")
    a.e("s_mov_b32 s26, s27")
    a.e("s_mov_b32 s31, 0xffff")
    a.e("s_mov_b32 s34, 0x2000")
    a.e("s_mov_b32 s35, 0x2000")
    a.e("s_mov_b32 s60, s20")
    a.e("s_and_b32 s64, s20, 1")
    a.e("s_lshl_b32 s64, s64, 13           ; parity * 8192")
    def qload(base, lo, hi):
        for s_ in range(8):
            a.e(f"buffer_load_dwordx4 {A4(base+4*s_)}, v{VLANE}, s[12:15], {lo if s_ < 4 else hi} offen offset:{(s_ & 3)*1024}")
    def tile(kind):
        for o in dma(kind): a.e(o)
    tile("K"); qload(QL, "s42", "s44"); qload(QS, "s43", "s45")
    a.e(f"v_mov_b32 v{VK}, v{VLANE}")
    a.e(f"v_or_b32 v{VV}, 0x10000, v{VLANE}")
    for r in range(OL, OL + 128): a.e(f"v_mov_b32 v{r}, 0")
    for r in range(LL, LL + 6): a.e(f"v_mov_b32 v{r}, 0")
    for T in range(4):
        for r in range(16): a.e(f"v_accvgpr_write_b32 a{OB[T]+r}, 0")
    tri_init(a, LL)
    for r in range(16): a.e(f"v_mov_b32 v{NEG+r}, v7")
    a.e("s_mov_b32 s66, 0")
    a.e("s_mov_b32 s69, 0x207")
    a.e("s_sub_u32 s29, 4, s23")
    a.e("s_sub_u32 s30, 4, s22")
    a.e("s_mov_b32 s33, 1")
    a.e("s_waitcnt vmcnt(8)")
    a.e("s_barrier")
    for o in kread(KX): a.e(o)
    for o in KADV: a.e(o)
    a.e("s_waitcnt lgkmcnt(0)")
    stamp(a, 1)
    stamp(a, 4, True)
    a.block("k2_PRO"); period(a, "PRO", True)
    a.block("k2_c1")
    a.e("s_sub_u32 s24, s22, 5")
    a.e("s_cmp_gt_i32 s24, 0")
    a.e("s_cbranch_scc0 K2_P1M_PRE")
    a.e("s_add_u32 s29, s29, s24")
    a.e("s_add_u32 s30, s30, s24")
    a.raw(".p2align 6")
    a.label("K2_P1U")
    a.block("k2_P1U"); period(a, "P1", False)
    a.e("s_sub_u32 s24, s24, 1")
    a.e("s_cmp_lg_u32 s24, 0")
    a.e("s_cbranch_scc1 K2_P1U")
    a.block("k2_c2")
    a.label("K2_P1M_PRE")
    a.e("s_sub_u32 s24, s22, 1")
    a.e("s_min_u32 s24, s24, 4")
    a.raw(".p2align 6")
    a.label("K2_P1M")
    a.block("k2_P1M")
    a.e("s_add_u32 s65, s64, 0x2000")
    a.e("s_cmp_eq_u32 s24, 2")
    a.e("s_cselect_b32 s35, s65, 0x2000")
    a.e("s_cmp_eq_u32 s24, 1")
    a.e("s_cselect_b32 s35, 0x4000, s35")
    period(a, "P1", True)
    a.e("s_sub_u32 s24, s24, 1")
    a.e("s_cmp_lg_u32 s24, 0")
    a.e("s_cbranch_scc1 K2_P1M")
    a.block("k2_c3")
    a.e("s_and_b32 s65, s20, 1")
    a.e("s_add_u32 s29, s29, s65")
    a.e("s_mov_b32 s30, s29")
    a.e("s_xor_b32 s60, s20, 1")
    a.e("s_mov_b32 s33, 2")
    a.e("s_add_u32 s34, s64, 0x2000")
    a.block("k2_TR"); period(a, "TR", True)
    a.block("k2_c4")
    a.e("s_mov_b32 s34, 0x4000")
    ctx_addr(a)
    ctx_out(a, OS, LS, "s41", flagbit=1)
    a.e("s_sub_u32 s24, s23, s22")
    a.e("s_lshr_b32 s24, s24, 1")
    a.e("s_sub_u32 s24, s24, 3")
    a.e("s_cmp_gt_i32 s24, 0")
    a.e("s_cbranch_scc0 K2_P2M_PRE")
    a.e("s_lshl_b32 s65, s24, 1")
    a.e("s_add_u32 s29, s29, s65")
    a.e("s_add_u32 s30, s30, s65")
    a.raw(".p2align 6")
    a.label("K2_P2U")
    a.block("k2_P2U"); period(a, "P2", False)
    a.e("s_sub_u32 s24, s24, 1")
    a.e("s_cmp_lg_u32 s24, 0")
    a.e("s_cbranch_scc1 K2_P2U")
    a.block("k2_c5")
    a.label("K2_P2M_PRE")
    a.e("s_sub_u32 s24, s23, s22")
    a.e("s_lshr_b32 s24, s24, 1")
    a.e("s_sub_u32 s24, s24, 1")
    a.e("s_min_u32 s24, s24, 2")
    a.raw(".p2align 6")
    a.label("K2_P2M")
    a.block("k2_P2M"); period(a, "P2", True)
    a.e("s_sub_u32 s24, s24, 1")
    a.e("s_cmp_lg_u32 s24, 0")
    a.e("s_cbranch_scc1 K2_P2M")
    a.block("k2_FIN"); period(a, "FIN", False)
    a.block("k2_epi")
    stamp(a, 2)
    stamp(a, 5, True)
    a.e("s_barrier")
    a.e(f"s_mul_i32 s65, s20, 16640")
    a.e(f"v_add_u32 v6, s65, v{VLANE}")
    a.e(f"v_add_f32 v{LB}, v{LB}, v{LB+1}")
    a.e("v_lshlrev_b32 v7, 2, v1")
    a.e("v_add_u32 v7, s65, v7")
    a.e("s_nop 5")
    for T in range(4):
        for k in range(4):
            a.e(f"ds_write_b128 v6, a[{OB[T]+4*k}:{OB[T]+4*k+3}] offset:{(4*T+k)*1024}")
    a.e(f"ds_write_b32 v7, v{LB} offset:16384")
    a.e("s_xor_b32 s65, s20, 1")
    a.e(f"s_mul_i32 s65, s65, 16640")
    a.e(f"v_add_u32 v6, s65, v{VLANE}")
    a.e("v_lshlrev_b32 v7, 2, v1")
    a.e("v_add_u32 v7, s65, v7")
    ctx_out(a, OL, LL, "s40", combine=True, flagbit=2)
    if common.DIAG:
        a.e("s_waitcnt vmcnt(0)")
        stamp(a, 3)
        stamp_flush(a, 2, 6)
    a.block("k2_slow")
    slow_path(a)
    a.cur = None
    a.label("K2_END")
    a.e("s_endpgm")
    return kernel_desc(name, 512, 102, 256)

def check_k2(a):
    B = a.blocks
    tr = B["k2_pre"] + B["k2_PRO"] + B["k2_c1"] + B["k2_P1U"] * 2 + B["k2_c2"] + B["k2_P1M"] * 2 + B["k2_c3"] + B["k2_TR"] + B["k2_c4"] + B["k2_P2U"] * 2 + B["k2_c5"] + B["k2_P2M"] * 2 + B["k2_FIN"] + B["k2_epi"]
    p = check_trace(tr, "k2a")
    tr = B["k2_pre"] + B["k2_PRO"] + B["k2_c1"] + B["k2_c2"] + B["k2_P1M"] * 3 + B["k2_c3"] + B["k2_TR"] + B["k2_c4"] + B["k2_c5"] + B["k2_P2M"] + B["k2_FIN"] + B["k2_epi"]
    return p + check_trace(tr, "k2b") + check_trace(B["k2_epi"] + B["k2_slow"] + B["k2_slow"], "k2s")
```

```python
from common import *
import common
import os
CODEPF = os.environ.get('CODEPF', '1') == '1'
K0PF = os.environ.get('K0PF', '1')
PREFETCH = K0PF != '0'
def ln_rows(a, rows, vx, vt, sbase):
    n = rows
    F = lambda r, i: vt + 20 * r + i
    T = lambda r, i: vt + 20 * r + 8 + i
    for r in range(n):
        for i in range(4):
            a.e(f"v_lshlrev_b32 v{F(r,2*i)}, 16, v{vx+4*r+i}")
            a.e(f"v_and_b32 v{F(r,2*i+1)}, 0xffff0000, v{vx+4*r+i}")
    def reduce(src_is, dst):
        for sh in (8, 4, 2, 1):
            for r in range(n):
                a.e(f"s_nop 1")
                a.e(f"v_add_f32_dpp v{T(r,dst)}, v{T(r,dst)}, v{T(r,dst)} row_ror:{sh} row_mask:0xf bank_mask:0xf")
        a.e("s_nop 1")
        for r in range(n):
            for k in range(4):
                a.e(f"v_readlane_b32 s{sbase+4*r+k}, v{T(r,dst)}, {16*k}")
        a.e("s_nop 1")
        for r in range(n):
            a.e(f"v_mov_b32 v{T(r,dst)}, s{sbase+4*r}")
            a.e(f"v_add_f32 v{T(r,dst)}, s{sbase+4*r+1}, v{T(r,dst)}")
            a.e(f"v_add_f32 v{T(r,dst)}, s{sbase+4*r+2}, v{T(r,dst)}")
            a.e(f"v_add_f32 v{T(r,dst)}, s{sbase+4*r+3}, v{T(r,dst)}")
    for r in range(n):
        a.e(f"v_add_f32 v{T(r,0)}, v{F(r,0)}, v{F(r,1)}")
        for i in range(2, 8): a.e(f"v_add_f32 v{T(r,0)}, v{T(r,0)}, v{F(r,i)}")
    reduce(None, 0)
    for r in range(n):
        a.e(f"v_mul_f32 v{T(r,0)}, 0x3b000000, v{T(r,0)}")
    for r in range(n):
        a.e(f"v_sub_f32 v{T(r,2)}, v{F(r,0)}, v{T(r,0)}")
        a.e(f"v_mul_f32 v{T(r,1)}, v{T(r,2)}, v{T(r,2)}")
        for i in range(1, 8):
            a.e(f"v_sub_f32 v{T(r,2)}, v{F(r,i)}, v{T(r,0)}")
            a.e(f"v_fmac_f32 v{T(r,1)}, v{T(r,2)}, v{T(r,2)}")
    reduce(None, 1)
    for r in range(n):
        a.e(f"v_mul_f32 v{T(r,1)}, 0x3b000000, v{T(r,1)}")
        a.e(f"v_cvt_pk_bf16_f32 v{T(r,2)}, v{T(r,0)}, v{T(r,1)}")
        a.e(f"v_and_b32 v{T(r,1)}, 0xffff0000, v{T(r,2)}")
        a.e(f"v_lshlrev_b32 v{T(r,0)}, 16, v{T(r,2)}")
        a.e(f"v_add_f32 v{T(r,1)}, 0x3727c5ac, v{T(r,1)}")
        a.e(f"v_cvt_pk_bf16_f32 v{T(r,1)}, v{T(r,1)}, v{T(r,1)}")
        a.e(f"v_and_b32 v{T(r,1)}, 0xffff0000, v{T(r,1)}")
        a.e(f"v_sqrt_f32 v{T(r,1)}, v{T(r,1)}")
        a.e("s_nop 0")
        a.e(f"v_cvt_pk_bf16_f32 v{T(r,1)}, v{T(r,1)}, v{T(r,1)}")
        a.e(f"v_and_b32 v{T(r,1)}, 0xffff0000, v{T(r,1)}")
        a.e(f"v_rcp_f32 v{T(r,1)}, v{T(r,1)}")
        a.e("s_nop 0")
        for i in range(4):
            a.e(f"v_sub_f32 v{F(r,2*i)}, v{F(r,2*i)}, v{T(r,0)}")
            a.e(f"v_sub_f32 v{F(r,2*i+1)}, v{F(r,2*i+1)}, v{T(r,0)}")
            a.e(f"v_cvt_pk_bf16_f32 v{T(r,2)}, v{F(r,2*i)}, v{F(r,2*i+1)}")
            a.e(f"v_lshlrev_b32 v{F(r,2*i)}, 16, v{T(r,2)}")
            a.e(f"v_and_b32 v{F(r,2*i+1)}, 0xffff0000, v{T(r,2)}")
            a.e(f"v_mul_f32 v{F(r,2*i)}, v{F(r,2*i)}, v{T(r,1)}")
            a.e(f"v_mul_f32 v{F(r,2*i+1)}, v{F(r,2*i+1)}, v{T(r,1)}")
            a.e(f"v_cvt_pk_bf16_f32 v{vx+4*r+i}, v{F(r,2*i)}, v{F(r,2*i+1)}")

def gen_k0(a, name="ln_kernel"):
    kernel_header(a, name)
    a.block("k0")
    a.e("s_cmp_ge_u32 s2, 256")
    a.e("s_cbranch_scc1 K0_END")
    stamp(a, 0)
    a.e(f"s_load_dwordx2 s[4:5], s[0:1], {KA['x']}")
    a.e(f"s_load_dwordx2 s[6:7], s[0:1], {KA['ws']}")
    if PREFETCH:
        a.e(f"s_load_dwordx2 s[24:25], s[0:1], {KA['ckv']}")
        a.e(f"s_load_dwordx2 s[26:27], s[0:1], {KA['wuk']}")
        a.e(f"s_load_dwordx2 s[28:29], s[0:1], {KA['wuv']}")
        a.e(f"s_load_dwordx2 s[30:31], s[0:1], {KA['wq']}")
        a.e(f"s_load_dwordx4 s[32:35], s[0:1], {KA['wg']}")
    a.e("v_lshrrev_b32 v3, 6, v0")
    a.e("v_lshrrev_b32 v1, 6, v0")
    a.e("v_and_b32 v2, 63, v0")
    a.e("v_lshlrev_b32 v1, 11, v1")
    a.e("v_lshl_add_u32 v1, v2, 4, v1")
    a.e("s_lshl_b32 s3, s2, 13")
    a.e("s_waitcnt lgkmcnt(0)")
    srd(a, "s4", "s5", 0x200000, 8)
    srd(a, "s6", "s7", 0x200000, 12)
    a.e("buffer_load_dwordx4 v[4:7], v1, s[8:11], s3 offen")
    a.e("buffer_load_dwordx4 v[8:11], v1, s[8:11], s3 offen offset:1024")
    npf = 0
    if PREFETCH:
        a.e("s_lshl_b32 s40, s2, 2")
        a.e("v_readfirstlane_b32 s41, v3")
        a.e("s_add_u32 s40, s40, s41")
        a.e("v_lshlrev_b32 v60, 6, v2          ; lane*64")
        lst = ((24, 0x200000), (26, 0x400000), (28, 0x400000), (30, 0x400000), (32, 512*2752), (34, 512*2752))
        if K0PF == "c": lst = lst[:1]
        if K0PF == "h": lst = ((24, 0x200000), (26, 0x200000), (28, 0x200000), (30, 0x200000), (32, 256*2752), (34, 256*2752))
        if K0PF == "t": lst = ((24, 0x200000), (26, 0x300000), (28, 0x300000), (30, 0x300000), (32, 384*2752), (34, 384*2752))
        for (lo, size) in lst:
            a.e(f"s_mov_b32 s44, s{lo}"); a.e(f"s_and_b32 s45, s{lo+1}, 0xffff"); a.e(f"s_mov_b32 s46, {size}"); a.e("s_mov_b32 s47, 0x20000")
            if size > 0x200000:
                a.e("s_lshl_b32 s42, s40, 12")
                a.e(f"buffer_load_dword v{54+npf}, v60, s[44:47], s42 offen"); npf += 1
            else:
                a.e("s_lshl_b32 s42, s40, 11")
                a.e("v_and_b32 v62, 0x7ff, v60")
                a.e(f"buffer_load_dword v{54+npf}, v62, s[44:47], s42 offen"); npf += 1
    if CODEPF:
        a.e("s_getpc_b64 s[50:51]")
        a.label("K0_PC")
        a.e("s_sub_u32 s50, s50, K0_PC-ln_kernel")
        a.e("s_subb_u32 s51, s51, 0")
        a.e("s_lshl_b32 s52, s2, 2")
        a.e("v_readfirstlane_b32 s53, v3")
        a.e("s_add_u32 s52, s52, s53")
        a.e("s_lshl_b32 s52, s52, 12")
        a.e("s_cmp_ge_u32 s52, TEXT_END-ln_kernel")
        a.e("s_cbranch_scc1 K0_NOCODE")
        a.e("v_lshlrev_b32 v52, 6, v2")
        a.e("v_add_u32 v52, s52, v52")
        a.e("v_min_u32 v52, TEXT_END-ln_kernel-4, v52")
        a.e("global_load_dword v53, v52, s[50:51]")
        a.label("K0_NOCODE")
    a.e(f"s_waitcnt vmcnt({npf})")
    ln_rows(a, 2, 4, 16, 48)
    a.e("buffer_store_dwordx4 v[4:7], v1, s[12:15], s3 offen")
    a.e("buffer_store_dwordx4 v[8:11], v1, s[12:15], s3 offen offset:1024")
    if common.DIAG:
        stamp(a, 1)
        stamp_flush(a, 0, 2)
        a.e("s_endpgm")
    a.label("K0_END")
    a.e("s_endpgm")
    return kernel_desc(name, 256 if common.DIAG else 64, 96 if common.DIAG else 64, 256 if common.DIAG else 64)
```

```python
from asmlib import *
KA = dict(x=0, ckv=8, wq=16, wuk=24, wuv=32, wo=40, bx=48, wg=56, wu=64, wd=72, out=80, dbg=88, ws=96)
XN = 0x0000000
QF = 0x1000000
KF = 0x2000000
VF = 0x3000000
CF = 0x4000000
HF = 0x5000000
WF = 0x6000000
WS_USED = 0x6800000

def srd(a, base_lo, base_hi, size, s):
    a.e(f"s_mov_b32 s{s}, {base_lo}")
    a.e(f"s_and_b32 s{s+1}, {base_hi}, 0xffff")
    a.e(f"s_mov_b32 s{s+2}, {size}")
    a.e(f"s_mov_b32 s{s+3}, 0x20000")

def kernel_header(a, name):
    a.raw(f".globl {name}\n.p2align 8\n.type {name},@function\n{name}:")

def kernel_desc(name, vgpr, sgpr, accum):
    return f""".amdhsa_kernel {name}
  .amdhsa_next_free_vgpr {vgpr}
  .amdhsa_next_free_sgpr {sgpr}
  .amdhsa_accum_offset {accum}
  .amdhsa_group_segment_fixed_size 0
  .amdhsa_kernarg_size 104
  .amdhsa_user_sgpr_count 2
  .amdhsa_user_sgpr_kernarg_segment_ptr 1
  .amdhsa_system_sgpr_workgroup_id_x 1
.end_amdhsa_kernel
"""

def spread(fill, ops, start, end):
    n = len(ops)
    if n == 0: return
    span = end - start + 1
    for k, op in enumerate(ops):
        idx = start + (k * span) // n
        fill.setdefault(idx, []).append(op)

DIAG = False
VERB = True
STAMP_WS = 0x8000000
def stamp(a, n, cyc=False):
    import common
    if not common.DIAG: return
    if cyc: a.e(f"s_memtime s[{78+2*n}:{79+2*n}]")
    else: a.e(f"s_memrealtime s[{78+2*n}:{79+2*n}]")
    a.e("s_waitcnt lgkmcnt(0)")
def stamp_flush(a, kidx, nst):
    import common
    if not common.DIAG: return
    a.e(f"s_load_dwordx2 s[76:77], s[0:1], {KA['ws']}")
    a.e("s_waitcnt lgkmcnt(0)")
    a.e(f"s_add_u32 s76, s76, {STAMP_WS + kidx*0x20000}")
    a.e("s_addc_u32 s77, s77, 0")
    a.e("s_lshl_b32 s75, s2, 9")
    a.e("v_lshrrev_b32 v250, 6, v0")
    a.e("v_lshlrev_b32 v250, 7, v250")
    a.e("v_add_u32 v250, s75, v250")
    for n in range(nst):
        a.e(f"v_mov_b32 v252, s{78+2*n}")
        a.e(f"v_mov_b32 v253, s{79+2*n}")
        a.e(f"global_store_dwordx2 v250, v[252:253], s[76:77] offset:{8*n}")
        a.e("s_nop 1")

import os
CODE_TOUCH = os.environ.get("CTOUCH", "0") == "1"
def code_touch(a, start, end, vlane, vtmp, vdst, swave):
    if not CODE_TOUCH: return
    l = a.newlabel("CT"); e = a.newlabel("CTE")
    a.e("s_getpc_b64 s[96:97]")
    a.label(l)
    a.e(f"s_sub_u32 s96, s96, {l}-{start}")
    a.e("s_subb_u32 s97, s97, 0")
    a.e("s_lshr_b32 s98, s2, 3")
    a.e("s_lshl_b32 s98, s98, 2")
    a.e(f"s_add_u32 s98, s98, {swave}")
    a.e("s_lshl_b32 s98, s98, 12")
    a.e(f"s_cmp_ge_u32 s98, {end}-{start}")
    a.e(f"s_cbranch_scc1 {e}")
    a.e(f"v_lshlrev_b32 v{vtmp}, 6, v{vlane}")
    a.e(f"v_add_u32 v{vtmp}, s98, v{vtmp}")
    a.e(f"v_min_u32 v{vtmp}, {end}-{start}-4, v{vtmp}")
    a.e(f"global_load_dword v{vdst}, v{vtmp}, s[96:97]")
    a.label(e)
```

```python
from common import *
import common, os
from k0 import ln_rows
ST_FLAG = ""
NSL = 6
FUSE_LN = os.environ.get('FUSE', '0') == '1'
WFLAG = os.environ.get('WFLAG', '')
XB = 16
ACC = [48, 64]
TMP = 80

def cvt(dst, s0, s1): return f"v_cvt_pk_bf16_f32 v{dst}, v{s0}, v{s1}"
def make_epi(typ, stflag, acc, tt, soff):
    def st(q, soff, off): return f"buffer_store_dwordx4 v[{q}:{q+3}], v8, s[16:19], {soff} offen offset:{off}{stflag}"
    ops = []
    if typ in "KQ":
        for pr in range(2):
            q = TMP + 8 * tt + 4 * pr
            if typ == "Q":
                for c in (2 * pr, 2 * pr + 1):
                    for j in range(4): ops.append(f"v_mul_f32 v{acc(tt,c)+j}, s30, v{acc(tt,c)+j}")
            for h, c in enumerate((2 * pr, 2 * pr + 1)):
                ops.append(cvt(q + 2 * h, acc(tt, c), acc(tt, c) + 1))
                ops.append(cvt(q + 2 * h + 1, acc(tt, c) + 2, acc(tt, c) + 3))
            off = pr * 2048 + tt * (128 if typ == "K" else 256)
            ops.append(st(q, soff, off))
    elif typ == "V":
        for c in range(4):
            q = TMP + 4 * c
            ops.append(cvt(q + 2 * tt, acc(tt, c), acc(tt, c) + 1))
            ops.append(cvt(q + 2 * tt + 1, acc(tt, c) + 2, acc(tt, c) + 3))
            if tt == 1:
                ops.append(st(q, soff, (c & 1) * 256 + (c >> 1) * 2048))
    else:
        T = TMP + 16
        groups = [[(c, j) for j in range(4)] for c in range(2)]
        for grp in groups:
            for n, (c, j) in enumerate(grp): ops.append(f"v_mul_f32 v{T+n}, s31, v{acc(tt,c)+j}")
            for n, (c, j) in enumerate(grp): ops.append(f"v_exp_f32 v{T+n}, v{T+n}")
            for n, (c, j) in enumerate(grp): ops.append(f"v_add_f32 v{T+n}, 1.0, v{T+n}")
            for n, (c, j) in enumerate(grp): ops.append(f"v_rcp_f32 v{T+n}, v{T+n}")
            for n, (c, j) in enumerate(grp): ops.append(f"v_mul_f32 v{acc(tt,c)+j}, v{acc(tt,c)+j}, v{acc(tt,c+2)+j}")
            for n, (c, j) in enumerate(grp): ops.append(f"v_mul_f32 v{acc(tt,c)+j}, v{acc(tt,c)+j}, v{T+n}")
            c = grp[0][0]
            q = TMP + 4 * tt
            ops.append(cvt(q + 2 * c, acc(tt, c), acc(tt, c) + 1))
            ops.append(cvt(q + 2 * c + 1, acc(tt, c) + 2, acc(tt, c) + 3))
        ops.append(st(TMP + 4 * tt, soff, 0))
    return ops

def k1_period(a, typ, stflag):
    fill = {}
    def acc(tt, c): return ACC[tt] + 4 * c
    mf = []
    for tt in range(2):
        for ks in range(16):
            f = tt * 16 + ks
            xb = XB + 4 * (f % 4)
            for c in range(4):
                w = 16 * ks + 4 * c
                d = acc(tt, c)
                cin = "0" if ks == 0 else f"v[{d}:{d+3}]"
                if typ == "V":
                    mf.append(f"v_mfma_f32_16x16x32_bf16 v[{d}:{d+3}], v[{xb}:{xb+3}], a[{w}:{w+3}], {cin}")
                else:
                    mf.append(f"v_mfma_f32_16x16x32_bf16 v[{d}:{d+3}], a[{w}:{w+3}], v[{xb}:{xb+3}], {cin}")
    pre = {}
    for f in range(3, 35):
        ff = f % 32
        tt, ks = ff // 16, ff % 16
        xb = XB + 4 * (f % 4)
        base = "v3" if ks % 2 == 0 else "v4"
        off = (ks >> 1) * 4096 + tt * 2048
        idx = 4 * (f - 3)
        rd = f"ds_read_b128 v[{xb}:{xb+3}], {base} offset:{off}"
        if f == 32:
            fill.setdefault(idx - 3, []).append("v_add_u32 v3, 0x8000, v3")
            fill.setdefault(idx - 2, []).append("v_and_b32 v3, 0x1ffff, v3")
            fill.setdefault(idx - 1, []).append("v_xor_b32 v4, 64, v3")
        fill.setdefault(idx, []).append(rd)
    for f in range(32):
        pre.setdefault(4 * f, []).append("s_waitcnt lgkmcnt(2)")
    epi = lambda tt, soff: make_epi(typ, stflag, acc, tt, soff)
    e1 = epi(1, "s27" if typ != "G" else "s29")
    e0 = epi(0, "s25")
    spread(fill, e1, 3, 58)
    dma = []
    for slab in range(8):
        m0 = "s_mov_b32 m0, s26" if slab == 0 else "s_add_u32 m0, m0, 3968"
        dma.append((m0, f"buffer_load_dwordx4 v2, s[4:7], s24 offen offset:{slab*128} lds"))
    spread(fill, e0, 67, 104)
    for n, (m0, ld) in enumerate(dma):
        g = 106 + 2 * n
        fill.setdefault(g, []).append(m0)
        fill.setdefault(g + 1, []).append(ld)
    book = ["s_add_u32 s24, s24, 0x8000", "s_add_u32 s26, s26, 0x8000", "s_and_b32 s26, s26, 0x1ffff"]
    if typ == "G":
        book += ["s_add_u32 s29, s25, 44032", "s_add_u32 s25, s25, 88064"]
    else:
        book += ["s_mov_b32 s27, s25", "s_add_u32 s25, s25, 8192"]
    fill.setdefault(124, []).extend(book[:3]); fill.setdefault(125, []).extend(book[3:])
    nst1 = sum(1 for o in e1 if o.startswith("buffer_store")); nst0 = sum(1 for o in e0 if o.startswith("buffer_store"))
    N = nst1 + nst0 + 8 + nst1
    pre.setdefault(64, []).insert(0, f"s_waitcnt vmcnt({N})")
    pre[64].insert(1, "s_barrier")
    for i, m in enumerate(mf):
        for p in pre.get(i, []): a.e(p)
        a.e(m)
        for p in fill.get(i, []): a.e(p)
    return e1

def ln_compute(a):
    for k in range(4): ln_rows(a, 2, 100 + 8 * k, 132, 44)
    a.e(f"s_add_u32 s68, s52, {XN}")
    a.e("s_addc_u32 s69, s53, 0")
    a.e("s_and_b32 s69, s69, 0xffff")
    a.e("s_add_u32 s32, s33, 0x1000")
    for r in range(8):
        a.e(f"buffer_store_dwordx4 v[{100+4*r}:{103+4*r}], v99, s[68:71], {'s33' if r < 4 else 's32'} offen offset:{(r & 3)*1024} sc1")

def ln_signal(a):
    a.e("s_barrier")
    l = a.newlabel("K1_SIG")
    a.e("s_cmp_lg_u32 s20, 0")
    a.e(f"s_cbranch_scc1 {l}")
    a.e("s_lshr_b32 s32, s2, 4")
    a.e("s_lshl_b32 s32, s32, 4")
    a.e("v_mov_b32 v98, s32")
    a.e("v_mov_b32 v97, 1")
    a.e("s_mov_b64 exec, 1")
    a.e("global_atomic_add v98, v97, s[34:35] sc1")
    a.e("s_mov_b64 exec, -1")
    a.label(l)

def poll_xn(a):
    a.e("v_and_b32 v98, 3, v1")
    a.e("s_lshl_b32 s32, s56, 2")
    a.e("v_add_u32 v98, s32, v98")
    a.e("v_lshlrev_b32 v98, 4, v98")
    l = a.newlabel("K1_POLL")
    a.label(l)
    a.e("global_load_dword v97, v98, s[34:35] sc1")
    a.e("s_waitcnt vmcnt(0)")
    a.e("v_cmp_ne_u32 vcc, 4, v97")
    a.e("s_nop 4")
    a.e(f"s_cbranch_vccnz {l}")

def gen_aux(a):
    a.block("k1_aux")
    a.label("K1_AUX")
    if FUSE_LN:
        a.e("s_cmp_lg_u32 s74, 0")
        a.e("s_cbranch_scc1 K1_AUX2")
        a.e("s_waitcnt vmcnt(0)")
        ln_compute(a)
        a.e("s_waitcnt vmcnt(0)")
        ln_signal(a)
        a.label("K1_AUX2")
    a.e(f"s_load_dwordx2 s[40:41], s[0:1], {KA['wo']}")
    a.e(f"s_load_dwordx2 s[42:43], s[0:1], {KA['wd']}")
    a.e("s_sub_u32 s57, s54, 4")
    a.e("s_lshl_b32 s57, s57, 2")
    a.e("s_cmp_eq_u32 s55, 7")
    a.e("s_cselect_b32 s57, s57, 16")
    a.e("s_add_u32 s57, s57, s56")
    a.e("s_lshl_b32 s57, s57, 2")
    a.e("s_add_u32 s57, s57, s20")
    a.e(f"s_mul_i32 s58, s20, 40960")
    a.e("s_waitcnt lgkmcnt(0)")
    srd(a, "s40", "s41", 0x400000, 4)
    srd(a, "s42", "s43", 1376 * 1024, 8)
    a.e(f"s_add_u32 s16, s52, {WF}"); a.e("s_addc_u32 s17, s53, 0"); a.e("s_and_b32 s17, s17, 0xffff")
    a.e(f"s_mov_b32 s18, {8*172*4096}"); a.e("s_mov_b32 s19, 0x20000")
    a.e("v_lshrrev_b32 v9, 1, v1")
    a.e("v_and_b32 v18, 1, v1")
    a.e("v_lshlrev_b32 v18, 4, v18")
    for r7 in range(8):
        a.e(f"v_xor_b32 v{10+r7}, {r7}, v9")
        a.e(f"v_lshl_add_u32 v{10+r7}, v{10+r7}, 5, v18")
    a.e("v_and_b32 v2, 15, v1              ; i")
    a.e("v_lshrrev_b32 v3, 4, v1           ; g")
    a.e("v_lshrrev_b32 v4, 2, v2")
    a.e("v_lshl_add_u32 v5, v3, 2, v4      ; r0")
    a.e("v_and_b32 v6, 7, v5               ; f")
    a.e("v_lshlrev_b32 v5, 10, v5")
    a.e("v_and_b32 v7, 3, v2")
    a.e("v_lshl_add_u32 v5, v7, 3, v5")
    a.e("v_add_u32 v5, s58, v5")
    for b in range(8):
        a.e(f"v_xor_b32 v7, {b}, v6")
        a.e(f"v_lshl_add_u32 v{20+b}, v7, 5, v5")
    a.e("v_lshlrev_b32 v8, 4, v1           ; lane*16")
    if os.environ.get("NOAUX"): a.e("s_mov_b32 s57, 200")
    a.label("K1_AUXL")
    a.e("s_cmp_ge_u32 s57, 171")
    a.e("s_cbranch_scc1 K1_AUXE")
    a.e("s_cmp_lt_u32 s57, 128")
    for k in range(4): a.e(f"s_cselect_b32 s{12+k}, s{4+k}, s{8+k}")
    a.e("s_mov_b32 s15, 0x20000")
    a.e("s_and_b32 s59, s57, 127")
    a.e("s_lshl_b32 s59, s59, 15")
    a.e("s_mov_b32 m0, s58")
    a.e("s_nop 0")
    for r in range(32):
        a.e(f"buffer_load_dwordx4 v{10+(r&7)}, s[12:15], s59 offen lds")
        a.e("s_add_u32 m0, m0, 1024")
        a.e("s_add_u32 s59, s59, 1024")
    a.e("s_lshl_b32 s60, s57, 12           ; u*4096")
    a.e("s_waitcnt vmcnt(0)")
    for N in range(8):
        q = 64 + 16 * (N & 3)
        for mt in range(4):
            cidx = 4 * N + mt
            for e4 in range(2):
                a.e(f"ds_read_b64_tr_b16 v[{q+4*mt+2*e4}:{q+4*mt+2*e4+1}], v{20+(cidx&7)} offset:{(cidx>>3)*256 + e4*16384}")
        a.e("s_waitcnt lgkmcnt(0)")
        for mt in range(4):
            a.e(f"buffer_store_dwordx4 v[{q+4*mt}:{q+4*mt+3}], v8, s[16:19], s60 offen offset:{mt*1024} sc1")
        a.e(f"s_add_u32 s60, s60, {172*4096}")
    a.e("s_waitcnt vmcnt(0)")
    a.e("s_add_u32 s57, s57, 80")
    a.e("s_branch K1_AUXL")
    a.label("K1_AUXE")
    if common.DIAG:
        stamp(a, 4)
        stamp_flush(a, 1, 9)
    a.e("s_endpgm")

def gen_k1(a, name="proj_kernel", stflag=""):
    kernel_header(a, name)
    a.block("k1_pro")
    a.e("s_cmp_ge_u32 s2, 256")
    a.e("s_cbranch_scc1 K1_END")
    stamp(a, 0)
    a.e(f"s_load_dwordx4 s[36:39], s[0:1], {KA['x']}")
    a.e(f"s_load_dwordx4 s[40:43], s[0:1], {KA['wq']}")
    a.e(f"s_load_dwordx2 s[44:45], s[0:1], {KA['wuv']}")
    a.e(f"s_load_dwordx4 s[48:51], s[0:1], {KA['wg']}")
    a.e(f"s_load_dwordx2 s[52:53], s[0:1], {KA['ws']}")
    a.e(f"s_load_dwordx2 s[34:35], s[0:1], {KA['dbg']}")
    a.e("v_lshrrev_b32 v1, 6, v0")
    a.e("s_nop 0")
    a.e("v_readfirstlane_b32 s20, v1")
    a.e("v_and_b32 v1, 63, v0              ; lane")
    code_touch(a, name, "K1_END", 1, 250, 251, "s20")
    a.e("s_and_b32 s54, s2, 7              ; x")
    a.e("s_lshr_b32 s55, s2, 3             ; j")
    a.e("s_and_b32 s56, s55, 3             ; m")
    a.e("s_lshr_b32 s55, s55, 2            ; pi")
    a.e("s_waitcnt lgkmcnt(0)")
    if FUSE_LN:
        srd(a, "s36", "s37", 0x200000, 68)
        a.e("v_lshlrev_b32 v99, 4, v1")
        a.e("s_lshl_b32 s64, s20, 13")
        a.e("v_add_u32 v99, s64, v99")
        a.e("s_lshr_b32 s33, s2, 2")
        a.e("s_lshl_b32 s33, s33, 15")
        a.e("s_and_b32 s74, s2, 3")
        a.e("s_cmp_lg_u32 s74, 0")
        a.e("s_cbranch_scc1 K1_NOX")
        for r in range(8):
            if r == 4: a.e("s_add_u32 s32, s33, 0x1000")
            a.e(f"buffer_load_dwordx4 v[{100+4*r}:{103+4*r}], v99, s[68:71], {'s33' if r < 4 else 's32'} offen offset:{(r & 3)*1024}")
        a.label("K1_NOX")
    a.e("s_cmp_ge_u32 s54, 4")
    a.e("s_cbranch_scc1 K1_XN")
    a.e("s_lshl_b32 s57, s54, 3")
    a.e("s_add_u32 s57, s57, s55           ; p 0..31")
    a.e("s_mov_b32 s60, s38")
    a.e("s_mov_b32 s61, s39")
    a.e("s_cmp_lt_u32 s57, 16")
    a.e("s_cselect_b32 s21, 0, 1           ; type K=0 / V=1")
    a.e("s_cselect_b32 s62, s42, s44")
    a.e("s_cselect_b32 s63, s43, s45       ; W")
    a.e(f"s_mov_b32 s59, {VF}")
    a.e(f"s_cselect_b32 s58, {KF}, s59")
    a.e("s_and_b32 s57, s57, 15            ; panel")
    a.e("s_branch K1_QKV")
    a.label("K1_XN")
    a.e("s_cmp_eq_u32 s55, 7")
    a.e("s_cbranch_scc1 K1_AUX")
    a.e("s_sub_u32 s57, s54, 4")
    a.e("s_mul_i32 s57, s57, 7")
    a.e("s_add_u32 s57, s57, s55           ; q")
    a.e("s_cmp_ge_u32 s57, 27")
    a.e("s_cbranch_scc1 K1_AUX")
    a.e(f"s_add_u32 s60, s52, {XN}")
    a.e("s_addc_u32 s61, s53, 0")
    a.e("s_cmp_ge_u32 s57, 16")
    a.e("s_cbranch_scc1 K1_GU")
    a.e("s_mov_b32 s21, 2")
    a.e("s_mov_b32 s62, s40")
    a.e("s_mov_b32 s63, s41")
    a.e(f"s_mov_b32 s58, {QF}")
    a.label("K1_QKV")
    a.e("s_mov_b32 s22, 8192")
    a.e("s_lshl_b32 s59, s57, 9")
    a.e("s_lshl_b32 s64, s20, 7")
    a.e("s_add_u32 s59, s59, s64")
    a.e("s_add_u32 s8, s62, s59")
    a.e("s_addc_u32 s9, s63, 0")
    a.e("s_and_b32 s9, s9, 0xffff")
    a.e("s_sub_u32 s10, 0x400000, s59")
    a.e("s_mov_b32 s11, 0x20000")
    a.e("s_add_u32 s12, s8, 64")
    a.e("s_addc_u32 s13, s9, 0")
    a.e("s_sub_u32 s14, s10, 64")
    a.e("s_mov_b32 s15, 0x20000")
    a.e("s_lshl_b32 s25, s57, 1")
    a.e("s_lshr_b32 s64, s20, 1")
    a.e("s_add_u32 s25, s25, s64           ; head")
    a.e("s_lshl_b32 s25, s25, 19")
    a.e("s_and_b32 s64, s20, 1")
    a.e("s_lshl_b32 s64, s64, 12")
    a.e("s_add_u32 s25, s25, s64")
    a.e("s_lshl_b32 s64, s56, 17           ; 16m*8192")
    a.e("s_add_u32 s25, s25, s64")
    a.e("s_mov_b32 s65, 0x1000000")
    a.e("s_branch K1_COMMON")
    a.label("K1_GU")
    a.e("s_mov_b32 s21, 3")
    a.e("s_sub_u32 s57, s57, 16")
    a.e("s_lshl_b32 s57, s57, 2")
    a.e("s_add_u32 s57, s57, s20           ; fs")
    a.e("s_min_u32 s57, s57, 42")
    a.e("s_mov_b32 s22, 2752")
    a.e("s_lshl_b32 s59, s57, 6")
    a.e("s_add_u32 s8, s48, s59")
    a.e("s_addc_u32 s9, s49, 0")
    a.e("s_and_b32 s9, s9, 0xffff")
    a.e(f"s_sub_u32 s10, {512*2752}, s59")
    a.e("s_mov_b32 s11, 0x20000")
    a.e("s_add_u32 s12, s50, s59")
    a.e("s_addc_u32 s13, s51, 0")
    a.e("s_and_b32 s13, s13, 0xffff")
    a.e("s_mov_b32 s14, s10")
    a.e("s_mov_b32 s15, 0x20000")
    a.e(f"s_mov_b32 s58, {HF}")
    a.e(f"s_mul_i32 s25, s56, {32*43*1024}")
    a.e("s_lshl_b32 s64, s57, 10")
    a.e("s_add_u32 s25, s25, s64")
    a.e(f"s_mov_b32 s65, {128*43*1024}")
    a.label("K1_COMMON")
    a.e("s_lshl_b32 s64, s56, 19")
    a.e("s_add_u32 s4, s60, s64")
    a.e("s_addc_u32 s5, s61, 0")
    a.e("s_and_b32 s5, s5, 0xffff")
    a.e("s_mov_b32 s6, 0x80000")
    a.e("s_mov_b32 s7, 0x20000")
    a.e("s_add_u32 s16, s52, s58")
    a.e("s_addc_u32 s17, s53, 0")
    a.e("s_and_b32 s17, s17, 0xffff")
    a.e("s_mov_b32 s18, s65")
    a.e("s_mov_b32 s19, 0x20000")
    a.e("s_mov_b32 s27, 0x80000000")
    a.e("s_mov_b32 s29, 0x80000000")
    a.e("s_mov_b32 s30, 0x3e0293ee         ; 128^-0.5*log2(e)")
    a.e("s_mov_b32 s31, 0xbfb8aa3b         ; -log2(e)")
    a.e("v_lshrrev_b32 v9, 3, v1")
    a.e("s_lshl_b32 s64, s20, 3")
    a.e("v_add_u32 v9, s64, v9")
    a.e("v_lshlrev_b32 v2, 10, v9")
    a.e("s_and_b32 s64, s20, 1")
    a.e("s_lshl_b32 s64, s64, 2")
    a.e("v_lshrrev_b32 v9, 4, v1")
    a.e("v_add_u32 v9, s64, v9")
    a.e("v_and_b32 v10, 7, v1")
    a.e("v_xor_b32 v9, v9, v10")
    a.e("v_and_b32 v9, 7, v9")
    a.e("v_lshl_add_u32 v2, v9, 4, v2")
    a.e("v_and_b32 v9, 15, v1              ; t")
    a.e("v_lshrrev_b32 v10, 4, v1          ; g")
    a.e("v_lshrrev_b32 v11, 1, v9")
    a.e("v_xor_b32 v11, v11, v10")
    a.e("v_lshlrev_b32 v11, 4, v11")
    a.e("v_lshl_add_u32 v3, v9, 7, v11")
    a.e("v_xor_b32 v4, 64, v3")
    a.e("v_lshrrev_b32 v11, 2, v9          ; i>>2")
    a.e("v_lshl_add_u32 v11, v10, 3, v11")
    a.e("v_lshlrev_b32 v11, 6, v11")
    a.e("v_and_b32 v12, 3, v9")
    a.e("v_lshl_add_u32 v11, v12, 3, v11")
    a.e("v_and_b32 v12, 1, v10")
    a.e("v_lshl_add_u32 v5, v12, 5, v11")
    a.e("s_mul_i32 s64, s20, 24576")
    a.e("s_add_u32 s64, s64, 0x10000")
    a.e("v_add_u32 v5, s64, v5")
    a.e("v_xor_b32 v6, 32, v5")
    a.e("v_lshlrev_b32 v14, 4, v1")
    a.e("v_add_u32 v14, s64, v14")
    a.e("v_add_u32 v12, 0x10000, v3")
    a.e("v_add_u32 v13, 0x10000, v4")
    a.e("v_lshrrev_b32 v11, 2, v1")
    a.e("v_mul_lo_u32 v7, v11, s22")
    a.e("v_lshrrev_b32 v11, 1, v1")
    a.e("v_lshrrev_b32 v15, 5, v1")
    a.e("v_xor_b32 v11, v11, v15")
    a.e("v_and_b32 v11, 1, v11")
    a.e("v_lshl_add_u32 v7, v11, 5, v7")
    a.e("v_and_b32 v11, 1, v1")
    a.e("v_lshl_add_u32 v7, v11, 4, v7")
    a.e("s_lshl_b32 s66, s22, 4            ; 16 rows")
    a.e("s_mov_b32 s67, 0")
    def wdma(ks):
        slot = ks % NSL
        for half in range(2):
            for hf in range(2):
                srdn = "s[8:11]" if half == 0 else "s[12:15]"
                a.e(f"s_add_u32 m0, s64, {slot*4096 + half*2048 + hf*1024}")
                if hf == 0: a.e("s_mov_b32 s73, s67")
                else: a.e("s_add_u32 s73, s67, s66")
                a.e(f"buffer_load_dwordx4 v7, {srdn}, s73 offen{WFLAG} lds")
        a.e("s_add_u32 s67, s67, s66")
        a.e("s_add_u32 s67, s67, s66")
    a.e("s_lshl_b32 s26, s20, 10           ; m0 base = w*1024")
    a.e("s_mov_b32 s24, 0")
    def tdma():
        for slab in range(8):
            a.e("s_mov_b32 m0, s26" if slab == 0 else "s_add_u32 m0, m0, 3968")
            a.e("s_nop 0")
            a.e(f"buffer_load_dwordx4 v2, s[4:7], s24 offen offset:{slab*128} lds")
        a.e("s_add_u32 s24, s24, 0x8000")
        a.e("s_add_u32 s26, s26, 0x8000")
        a.e("s_and_b32 s26, s26, 0x1ffff")
    for ks in range(NSL): wdma(ks)
    if FUSE_LN:
        a.e("s_cmp_lt_u32 s21, 2")
        a.e("s_cbranch_scc0 K1_NOT0")
    tdma(); tdma()
    if FUSE_LN:
        a.label("K1_NOT0")
        a.e("s_cmp_lg_u32 s74, 0")
        a.e("s_cbranch_scc1 K1_NOLN")
        a.e("s_waitcnt vmcnt(32)")
        ln_compute(a)
        a.label("K1_NOLN")
    stamp(a, 8)
    a.e("v_lshrrev_b32 v11, 1, v10         ; g>>1")
    a.e("v_lshlrev_b32 v8, 10, v11")
    a.e("v_and_b32 v11, 1, v10")
    a.e("v_lshl_add_u32 v8, v11, 9, v8     ; + (g&1)*512")
    a.e("s_cmp_eq_u32 s21, 0")
    a.e("s_cbranch_scc0 K1_A1")
    a.e("v_lshrrev_b32 v11, 3, v9          ; K: r=16*(t>>3)+(t&7)")
    a.e("v_lshlrev_b32 v11, 4, v11")
    a.e("v_and_b32 v15, 7, v9")
    a.e("v_add_u32 v11, v11, v15")
    a.e("v_lshl_add_u32 v8, v11, 4, v8")
    a.e("s_branch K1_A3")
    a.label("K1_A1")
    a.e("s_cmp_eq_u32 s21, 3")
    a.e("s_cbranch_scc1 K1_A2")
    a.e("v_lshl_add_u32 v8, v9, 4, v8      ; Q,V: + t*16")
    a.e("s_branch K1_A3")
    a.label("K1_A2")
    a.e("v_lshlrev_b32 v8, 4, v1")
    a.label("K1_A3")
    queue = [("W", k) for k in range(NSL) for _ in range(4)] + [("T", 0)] * 16
    for ks in range(16):
        last = max(i for i, q in enumerate(queue) if q == ("W", ks))
        a.e(f"s_waitcnt vmcnt({len(queue) - 1 - last})")
        queue = queue[last + 1:]
        if ks == 0: stamp(a, 5)
        if ks == 8 and FUSE_LN:
            a.e("s_cmp_lg_u32 s74, 0")
            a.e("s_cbranch_scc1 K1_NOSIG")
            ln_signal(a)
            a.label("K1_NOSIG")
        slot = ks % NSL
        for c in range(4):
            for e4 in range(2):
                w = 16 * ks + 4 * c + 2 * e4
                a.e(f"ds_read_b64_tr_b16 a[{w}:{w+1}], v{5 + (c & 1)} offset:{slot*4096 + (c >> 1)*2048 + e4*256}")
        if ks + NSL < 16:
            a.e("s_waitcnt lgkmcnt(0)")
            wdma(ks + NSL)
            queue += [("W", ks + NSL)] * 4
    a.e("s_waitcnt lgkmcnt(0)")
    stamp(a, 1)
    if FUSE_LN:
        a.e("s_cmp_lt_u32 s21, 2")
        a.e("s_cbranch_scc1 K1_T12")
        a.e("s_cmp_lg_u32 s20, 0")
        a.e("s_cbranch_scc1 K1_NOPOLL")
        poll_xn(a)
        a.label("K1_NOPOLL")
        a.e("s_barrier")
        a.e("buffer_inv sc1")
        a.e("s_waitcnt vmcnt(0)")
        tdma()
        a.label("K1_T12")
    a.e("s_barrier")
    tdma()
    stamp(a, 2)
    for f in range(3):
        xb = XB + 4 * f
        a.e(f"ds_read_b128 v[{xb}:{xb+3}], {'v3' if f % 2 == 0 else 'v4'} offset:{(f >> 1)*4096}")
    a.e("s_mov_b32 s23, 16")
    for typ, code in (("K", 0), ("V", 1), ("Q", 2)):
        a.e(f"s_cmp_eq_u32 s21, {code}")
        a.e(f"s_cbranch_scc1 K1_LOOP_{typ}")
    a.e("s_branch K1_LOOP_G")
    for typ in "KVQG":
        a.block(f"k1_loop_{typ}")
        a.raw(".p2align 6")
        a.label(f"K1_LOOP_{typ}")
        e1 = k1_period(a, typ, stflag)
        a.e("s_sub_u32 s23, s23, 1")
        a.e("s_cmp_lg_u32 s23, 0")
        a.e(f"s_cbranch_scc1 K1_LOOP_{typ}")
        a.block(f"k1_tail_{typ}")
        a.e("s_nop 7")
        stamp(a, 3)
        for o in e1: a.e(o)
        if common.DIAG:
            a.e("s_waitcnt vmcnt(0)")
            stamp(a, 4)
            stamp_flush(a, 1, 9)
        a.e("s_endpgm")
    gen_aux(a)
    a.cur = None
    a.label("K1_END")
    a.e("s_endpgm")
    return kernel_desc(name, 512, 102, 256)

def check_k1(a):
    probs = []
    for typ in "KVQG":
        tr = a.blocks["k1_pro"] + a.blocks[f"k1_loop_{typ}"] * 3 + a.blocks[f"k1_tail_{typ}"]
        probs += check_trace(tr, "k1" + typ)
    probs += check_trace(a.blocks["k1_pro"][:40] + a.blocks["k1_aux"], "k1aux")
    return probs
```

```python
from common import *
import common, os
EXP = os.environ.get('K3EXP', '')
D = int(os.environ.get("K3D", "3"))
NS = 43
ACC = 160
VOA, VOH = 8, 12
XR = 24
REG = 17408
OSTFLAG = ""

def gen_k3(a, name="outp_kernel"):
    kernel_header(a, name)
    a.block("k3")
    a.e("s_cmp_ge_u32 s2, 256")
    a.e("s_cbranch_scc1 K3_END")
    stamp(a, 0)
    a.e(f"s_load_dwordx2 s[36:37], s[0:1], {KA['ws']}")
    a.e(f"s_load_dwordx2 s[42:43], s[0:1], {KA['x']}")
    a.e(f"s_load_dwordx2 s[44:45], s[0:1], {KA['out']}")
    a.e("v_lshrrev_b32 v1, 6, v0")
    a.e("s_nop 0")
    a.e("v_readfirstlane_b32 s20, v1       ; wave")
    a.e("v_and_b32 v1, 63, v0              ; lane")
    code_touch(a, name, "K3_END", 1, 23, 22, "s20")
    a.e("s_and_b32 s46, s2, 7")
    a.e("s_lshr_b32 s47, s2, 3")
    a.e("s_and_b32 s21, s47, 7             ; N tile")
    if "perm" in EXP: a.e("s_xor_b32 s21, s21, 1")
    a.e("s_lshr_b32 s47, s47, 3")
    a.e("s_lshl_b32 s46, s46, 2")
    a.e("s_add_u32 s22, s46, s47")
    if "sameW" in EXP: a.e("s_mov_b32 s21, 0")
    if "sameX" in EXP: a.e("s_mov_b32 s22, 0")
    a.e("v_lshlrev_b32 v2, 4, v1           ; lane*16")
    for tt in range(4):
        a.e(f"v_add_u32 v{VOA+tt}, {tt*131072}, v2")
        a.e(f"v_add_u32 v{VOH+tt}, {tt*44032}, v2")
    a.e(f"s_mul_i32 s23, s20, {REG}")
    a.e("s_waitcnt lgkmcnt(0)")
    a.e(f"s_add_u32 s4, s36, {CF}"); a.e("s_addc_u32 s5, s37, 0"); a.e("s_and_b32 s5, s5, 0xffff"); a.e("s_mov_b32 s6, 0x1000000"); a.e("s_mov_b32 s7, 0x20000")
    a.e(f"s_add_u32 s8, s36, {HF}"); a.e("s_addc_u32 s9, s37, 0"); a.e("s_and_b32 s9, s9, 0xffff"); a.e(f"s_mov_b32 s10, {128*43*1024}"); a.e("s_mov_b32 s11, 0x20000")
    a.e(f"s_mul_i32 s58, s21, {172*4096}")
    a.e(f"s_add_u32 s58, s58, {WF}")
    a.e("s_add_u32 s12, s36, s58"); a.e("s_addc_u32 s13, s37, 0"); a.e("s_and_b32 s13, s13, 0xffff"); a.e(f"s_mov_b32 s14, {171*4096}"); a.e("s_mov_b32 s15, 0x20000")
    srd(a, "s42", "s43", 0x200000, 48)
    srd(a, "s44", "s45", 0x200000, 52)
    a.e("v_lshrrev_b32 v3, 2, v0")
    a.e("v_lshlrev_b32 v21, 10, v3")
    a.e("v_and_b32 v3, 3, v0")
    a.e("v_lshl_add_u32 v21, v3, 5, v21")
    a.e("s_lshl_b32 s56, s22, 16")
    a.e("s_lshl_b32 s57, s21, 7")
    a.e("s_add_u32 s56, s56, s57")
    a.e("s_lshl_b32 s24, s22, 19           ; 4M*128*1024")
    a.e("s_lshl_b32 s58, s20, 15")
    a.e("s_add_u32 s24, s24, s58")
    a.e(f"s_mul_i32 s25, s22, {4*43*1024}")
    a.e(f"s_mul_i32 s58, s20, {11*1024}")
    a.e("s_add_u32 s25, s25, s58")
    a.e("s_lshl_b32 s26, s20, 17")
    a.e(f"s_mul_i32 s27, s20, {11*4096}")
    a.e(f"s_add_u32 s27, s27, {128*4096}")
    queue = []
    def issue_parts(u):
        isA = u < 32
        sX = "s24" if isA else "s25"; sW = "s26" if isA else "s27"
        srdX = "s[4:7]" if isA else "s[8:11]"
        vo = VOA if isA else VOH
        b0 = 32 * (u % D)
        wl = [f"buffer_load_dwordx4 a[{b0+4*mt}:{b0+4*mt+3}], v2, s[12:15], {sW} offen offset:{mt*1024}" for mt in range(4)]
        xl = [f"buffer_load_dwordx4 a[{b0+16+4*tt}:{b0+16+4*tt+3}], v{vo+tt}, {srdX}, {sX} offen" for tt in range(4)]
        adv = [f"s_add_u32 {sX}, {sX}, 1024", f"s_add_u32 {sW}, {sW}, 4096"]
        return wl, xl, adv
    for u in range(D):
        wl, xl, adv = issue_parts(u)
        for o in wl + xl + adv: a.e(o)
        queue += [u] * 8
    def wait_for(u):
        nonlocal queue
        last = max(i for i, q in enumerate(queue) if q == u)
        n = len(queue) - 1 - last
        queue = queue[last + 1:]
        return f"s_waitcnt vmcnt({n})"
    for u in range(NS):
        fill = {}
        a.e(wait_for(u))
        if u == 0:
            stamp(a, 1); stamp(a, 4, True)
        if u + D < NS:
            wl, xl, adv = issue_parts(u + D)
            for tt in range(4): fill.setdefault(4 * tt + 3, []).append(xl[tt])
            for mt in range(4): fill.setdefault(12 + mt, []).append(wl[mt])
            fill.setdefault(15, []).extend(adv)
            queue += [u + D] * 8
        if u == 24:
            fill.setdefault(5, []).extend([f"buffer_load_dwordx4 v[{XR}:{XR+3}], v21, s[48:51], s56 offen",
                                           f"buffer_load_dwordx4 v[{XR+4}:{XR+7}], v21, s[48:51], s56 offen offset:16"])
        n = 0
        b0 = 32 * (u % D)
        for tt in range(4):
            for mt in range(4):
                d = ACC + 4 * (4 * mt + tt)
                cin = "0" if u == 0 else f"v[{d}:{d+3}]"
                a.e(f"v_mfma_f32_16x16x32_bf16 v[{d}:{d+3}], a[{b0+4*mt}:{b0+4*mt+3}], a[{b0+16+4*tt}:{b0+16+4*tt+3}], {cin}")
                for o in fill.get(n, []): a.e(o)
                n += 1
    stamp(a, 2)
    stamp(a, 5, True)
    a.e("v_and_b32 v3, 15, v1")
    a.e("v_mul_u32_u24 v3, 272, v3")
    a.e("v_lshrrev_b32 v4, 4, v1")
    a.e("v_lshl_add_u32 v3, v4, 4, v3")
    a.e("v_add_u32 v3, s23, v3")
    a.e("s_nop 7")
    for tt in range(4):
        for mt in range(4):
            d = ACC + 4 * (4 * mt + tt)
            a.e(f"ds_write_b128 v3, v[{d}:{d+3}] offset:{tt*16*272 + mt*64}")
    a.e("v_lshrrev_b32 v3, 2, v0")
    a.e("v_mul_u32_u24 v3, 272, v3")
    a.e("v_and_b32 v4, 3, v0")
    a.e("v_lshl_add_u32 v3, v4, 6, v3")
    for w in range(4):
        if w: a.e(f"v_add_u32 v{3+w}, {w*REG}, v3")
    a.e("s_waitcnt lgkmcnt(0)")
    a.e("s_barrier")
    R = 64
    for w in range(4):
        for k in range(4):
            b = R + 16 * w + 4 * k
            a.e(f"ds_read_b128 v[{b}:{b+3}], v{3+w} offset:{k*16}")
    a.e("s_waitcnt vmcnt(0)")
    for k in range(8):
        a.e(f"v_lshlrev_b32 v{128+2*k}, 16, v{XR+k}")
        a.e(f"v_and_b32 v{128+2*k+1}, 0xffff0000, v{XR+k}")
    a.e("s_waitcnt lgkmcnt(0)")
    for k in range(16):
        a.e(f"v_add_f32 v{R+k}, v{R+k}, v{R+16+k}")
        a.e(f"v_add_f32 v{R+32+k}, v{R+32+k}, v{R+48+k}")
    for k in range(16):
        a.e(f"v_add_f32 v{R+k}, v{R+k}, v{R+32+k}")
    for k in range(16):
        a.e(f"v_add_f32 v{R+k}, v{R+k}, v{128+k}")
    for k in range(8):
        a.e(f"v_cvt_pk_bf16_f32 v{144+k}, v{R+2*k}, v{R+2*k+1}")
    a.e(f"buffer_store_dwordx4 v[144:147], v21, s[52:55], s56 offen{OSTFLAG}")
    a.e(f"buffer_store_dwordx4 v[148:151], v21, s[52:55], s56 offen offset:16{OSTFLAG}")
    if common.DIAG:
        a.e("s_waitcnt vmcnt(0)")
        stamp(a, 3)
        stamp_flush(a, 3, 6)
    a.e("s_endpgm")
    a.cur = None
    a.label("K3_END")
    a.e("s_endpgm")
    return kernel_desc(name, 512, 102, 256)

def check_k3(a):
    return check_trace(a.blocks["k3"], "k3")
```

```python
from common import *
import common
import os
CODEPF = os.environ.get('CODEPF', '1') == '1'
K0PF = os.environ.get('K0PF', '1')
PREFETCH = K0PF != '0'
def ln_rows(a, rows, vx, vt, sbase):
    n = rows
    F = lambda r, i: vt + 20 * r + i
    T = lambda r, i: vt + 20 * r + 8 + i
    for r in range(n):
        for i in range(4):
            a.e(f"v_lshlrev_b32 v{F(r,2*i)}, 16, v{vx+4*r+i}")
            a.e(f"v_and_b32 v{F(r,2*i+1)}, 0xffff0000, v{vx+4*r+i}")
    def reduce(src_is, dst):
        for sh in (8, 4, 2, 1):
            for r in range(n):
                a.e(f"s_nop 1")
                a.e(f"v_add_f32_dpp v{T(r,dst)}, v{T(r,dst)}, v{T(r,dst)} row_ror:{sh} row_mask:0xf bank_mask:0xf")
        a.e("s_nop 1")
        for r in range(n):
            for k in range(4):
                a.e(f"v_readlane_b32 s{sbase+4*r+k}, v{T(r,dst)}, {16*k}")
        a.e("s_nop 1")
        for r in range(n):
            a.e(f"v_mov_b32 v{T(r,dst)}, s{sbase+4*r}")
            a.e(f"v_add_f32 v{T(r,dst)}, s{sbase+4*r+1}, v{T(r,dst)}")
            a.e(f"v_add_f32 v{T(r,dst)}, s{sbase+4*r+2}, v{T(r,dst)}")
            a.e(f"v_add_f32 v{T(r,dst)}, s{sbase+4*r+3}, v{T(r,dst)}")
    for r in range(n):
        a.e(f"v_add_f32 v{T(r,0)}, v{F(r,0)}, v{F(r,1)}")
        for i in range(2, 8): a.e(f"v_add_f32 v{T(r,0)}, v{T(r,0)}, v{F(r,i)}")
    reduce(None, 0)
    for r in range(n):
        a.e(f"v_mul_f32 v{T(r,0)}, 0x3b000000, v{T(r,0)}")
    for r in range(n):
        a.e(f"v_sub_f32 v{T(r,2)}, v{F(r,0)}, v{T(r,0)}")
        a.e(f"v_mul_f32 v{T(r,1)}, v{T(r,2)}, v{T(r,2)}")
        for i in range(1, 8):
            a.e(f"v_sub_f32 v{T(r,2)}, v{F(r,i)}, v{T(r,0)}")
            a.e(f"v_fmac_f32 v{T(r,1)}, v{T(r,2)}, v{T(r,2)}")
    reduce(None, 1)
    for r in range(n):
        a.e(f"v_mul_f32 v{T(r,1)}, 0x3b000000, v{T(r,1)}")
        a.e(f"v_cvt_pk_bf16_f32 v{T(r,2)}, v{T(r,0)}, v{T(r,1)}")
        a.e(f"v_and_b32 v{T(r,1)}, 0xffff0000, v{T(r,2)}")
        a.e(f"v_lshlrev_b32 v{T(r,0)}, 16, v{T(r,2)}")
        a.e(f"v_add_f32 v{T(r,1)}, 0x3727c5ac, v{T(r,1)}")
        a.e(f"v_cvt_pk_bf16_f32 v{T(r,1)}, v{T(r,1)}, v{T(r,1)}")
        a.e(f"v_and_b32 v{T(r,1)}, 0xffff0000, v{T(r,1)}")
        a.e(f"v_sqrt_f32 v{T(r,1)}, v{T(r,1)}")
        a.e("s_nop 0")
        a.e(f"v_cvt_pk_bf16_f32 v{T(r,1)}, v{T(r,1)}, v{T(r,1)}")
        a.e(f"v_and_b32 v{T(r,1)}, 0xffff0000, v{T(r,1)}")
        a.e(f"v_rcp_f32 v{T(r,1)}, v{T(r,1)}")
        a.e("s_nop 0")
        for i in range(4):
            a.e(f"v_sub_f32 v{F(r,2*i)}, v{F(r,2*i)}, v{T(r,0)}")
            a.e(f"v_sub_f32 v{F(r,2*i+1)}, v{F(r,2*i+1)}, v{T(r,0)}")
            a.e(f"v_cvt_pk_bf16_f32 v{T(r,2)}, v{F(r,2*i)}, v{F(r,2*i+1)}")
            a.e(f"v_lshlrev_b32 v{F(r,2*i)}, 16, v{T(r,2)}")
            a.e(f"v_and_b32 v{F(r,2*i+1)}, 0xffff0000, v{T(r,2)}")
            a.e(f"v_mul_f32 v{F(r,2*i)}, v{F(r,2*i)}, v{T(r,1)}")
            a.e(f"v_mul_f32 v{F(r,2*i+1)}, v{F(r,2*i+1)}, v{T(r,1)}")
            a.e(f"v_cvt_pk_bf16_f32 v{vx+4*r+i}, v{F(r,2*i)}, v{F(r,2*i+1)}")

def gen_k0(a, name="ln_kernel"):
    kernel_header(a, name)
    a.block("k0")
    a.e("s_cmp_ge_u32 s2, 256")
    a.e("s_cbranch_scc1 K0_END")
    stamp(a, 0)
    a.e(f"s_load_dwordx2 s[4:5], s[0:1], {KA['x']}")
    a.e(f"s_load_dwordx2 s[6:7], s[0:1], {KA['ws']}")
    if PREFETCH:
        a.e(f"s_load_dwordx2 s[24:25], s[0:1], {KA['ckv']}")
        a.e(f"s_load_dwordx2 s[26:27], s[0:1], {KA['wuk']}")
        a.e(f"s_load_dwordx2 s[28:29], s[0:1], {KA['wuv']}")
        a.e(f"s_load_dwordx2 s[30:31], s[0:1], {KA['wq']}")
        a.e(f"s_load_dwordx4 s[32:35], s[0:1], {KA['wg']}")
    a.e("v_lshrrev_b32 v3, 6, v0")
    a.e("v_lshrrev_b32 v1, 6, v0")
    a.e("v_and_b32 v2, 63, v0")
    a.e("v_lshlrev_b32 v1, 11, v1")
    a.e("v_lshl_add_u32 v1, v2, 4, v1")
    a.e("s_lshl_b32 s3, s2, 13")
    a.e("s_waitcnt lgkmcnt(0)")
    srd(a, "s4", "s5", 0x200000, 8)
    srd(a, "s6", "s7", 0x200000, 12)
    a.e("buffer_load_dwordx4 v[4:7], v1, s[8:11], s3 offen")
    a.e("buffer_load_dwordx4 v[8:11], v1, s[8:11], s3 offen offset:1024")
    npf = 0
    if PREFETCH:
        a.e("s_lshl_b32 s40, s2, 2")
        a.e("v_readfirstlane_b32 s41, v3")
        a.e("s_add_u32 s40, s40, s41")
        a.e("v_lshlrev_b32 v60, 6, v2          ; lane*64")
        lst = ((24, 0x200000), (26, 0x400000), (28, 0x400000), (30, 0x400000), (32, 512*2752), (34, 512*2752))
        if K0PF == "c": lst = lst[:1]
        if K0PF == "h": lst = ((24, 0x200000), (26, 0x200000), (28, 0x200000), (30, 0x200000), (32, 256*2752), (34, 256*2752))
        if K0PF == "t": lst = ((24, 0x200000), (26, 0x300000), (28, 0x300000), (30, 0x300000), (32, 384*2752), (34, 384*2752))
        for (lo, size) in lst:
            a.e(f"s_mov_b32 s44, s{lo}"); a.e(f"s_and_b32 s45, s{lo+1}, 0xffff"); a.e(f"s_mov_b32 s46, {size}"); a.e("s_mov_b32 s47, 0x20000")
            if size > 0x200000:
                a.e("s_lshl_b32 s42, s40, 12")
                a.e(f"buffer_load_dword v{54+npf}, v60, s[44:47], s42 offen"); npf += 1
            else:
                a.e("s_lshl_b32 s42, s40, 11")
                a.e("v_and_b32 v62, 0x7ff, v60")
                a.e(f"buffer_load_dword v{54+npf}, v62, s[44:47], s42 offen"); npf += 1
    if CODEPF:
        a.e("s_getpc_b64 s[50:51]")
        a.label("K0_PC")
        a.e("s_sub_u32 s50, s50, K0_PC-ln_kernel")
        a.e("s_subb_u32 s51, s51, 0")
        a.e("s_lshl_b32 s52, s2, 2")
        a.e("v_readfirstlane_b32 s53, v3")
        a.e("s_add_u32 s52, s52, s53")
        a.e("s_lshl_b32 s52, s52, 12")
        a.e("s_cmp_ge_u32 s52, TEXT_END-ln_kernel")
        a.e("s_cbranch_scc1 K0_NOCODE")
        a.e("v_lshlrev_b32 v52, 6, v2")
        a.e("v_add_u32 v52, s52, v52")
        a.e("v_min_u32 v52, TEXT_END-ln_kernel-4, v52")
        a.e("global_load_dword v53, v52, s[50:51]")
        a.label("K0_NOCODE")
    a.e(f"s_waitcnt vmcnt({npf})")
    ln_rows(a, 2, 4, 16, 48)
    a.e("s_cmp_lt_u32 s2, 64")
    a.e("s_cbranch_scc0 K0_NOZ")
    a.e("v_cmp_gt_u32 vcc, 64, v0")
    a.e("s_and_saveexec_b64 s[56:57], vcc")
    a.e("s_cbranch_execz K0_NOZ2")
    a.e("s_lshl_b32 s58, s2, 8")
    a.e("v_lshl_add_u32 v50, v0, 2, s58")
    a.e("v_mov_b32 v51, 0")
    a.e("s_add_u32 s58, s6, 0x7000000")
    a.e("s_addc_u32 s59, s7, 0")
    a.e("global_store_dword v50, v51, s[58:59]")
    a.label("K0_NOZ2")
    a.e("s_mov_b64 exec, s[56:57]")
    a.label("K0_NOZ")
    a.e("buffer_store_dwordx4 v[4:7], v1, s[12:15], s3 offen")
    a.e("buffer_store_dwordx4 v[8:11], v1, s[12:15], s3 offen offset:1024")
    if common.DIAG:
        stamp(a, 1)
        stamp_flush(a, 0, 2)
        a.e("s_endpgm")
    a.label("K0_END")
    a.e("s_endpgm")
    return kernel_desc(name, 256 if common.DIAG else 64, 96 if common.DIAG else 64, 256 if common.DIAG else 64)
```

```python
from common import *
import common, os
EXP = os.environ.get('K2EXP', '')
QL, QS, KX, VX, QP = 0, 32, 64, 128, 192
OB = [96, 112, 160, 176]
SA, SB, PA, PB, TRI, NEG = 32, 48, 64, 72, 80, 96
LL, LS, LB = 112, 114, 116
OL, OS = 128, 192
VK, VV, VLANE, VT = 2, 3, 4, 5
CSTFLAG = ""
PRO_W0 = 30
PRO_W8 = 32
PREFETCH = False

def mf(d, a_, b_, c): return f"v_mfma_f32_32x32x16_bf16 v[{d}:{d+15}], {a_}, {b_}, {c}"
def A4(b): return f"a[{b}:{b+3}]"
def V4(b): return f"v[{b}:{b+3}]"

def qk(S, Q, K):
    return [mf(S, A4(K + 4*s), A4(Q + 4*s), "0" if s == 0 else f"v[{S}:{S+15}]") for s in range(8)]
def pv(P, V, O):
    if O == "B":
        return [f"v_mfma_f32_32x32x16_bf16 a[{OB[T]}:{OB[T]+15}], {A4(V + 4*(2*T + ks))}, {V4(P + 4*ks)}, a[{OB[T]}:{OB[T]+15}]" for ks in range(2) for T in range(4)]
    return [mf(O + 16*T, A4(V + 4*(2*T + ks)), V4(P + 4*ks), f"v[{O+16*T}:{O+16*T+15}]") for ks in range(2) for T in range(4)]

def sm_ops(S, P, L):
    ops = []
    for r in range(16):
        ops.append(dict(t=f"v_exp_f32 v{S+r}, v{S+r}", c=8, k="e", r=r, deps=[]))
    for r in range(16):
        ops.append(dict(t=f"v_add_f32 v{L+(r&1)}, v{L+(r&1)}, v{S+r}", c=4, k="a", r=r, deps=[r] + ([16 + r - 2] if r >= 2 else [])))
    for k in range(8):
        ops.append(dict(t=f"v_cvt_pk_bf16_f32 v{P+k}, v{S+2*k}, v{S+2*k+1}", c=4, k="c0" if k < 4 else "c1", r=k, deps=[2*k, 2*k+1]))
    return ops

def try_place(ops, start, end, c0_min, c1_min, used, b):
    used = dict(used); out = {}; pos = {}
    seq = 0
    for g in range(start, end + 1):
        room = (b(g) if callable(b) else b) - used.get(g % 32, 0)
        last_e = None
        while True:
            best = None
            for n, o in enumerate(ops):
                if n in pos: continue
                if o["k"] == "c0" and g < c0_min: continue
                if o["k"] == "c1" and g < c1_min: continue
                if any(d not in pos for d in o["deps"]): continue
                if last_e is not None and last_e in o["deps"]: continue
                if o["c"] > room: continue
                pr = {"c0": 0, "c1": 0, "a": 1, "e": 2}[o["k"]]
                key = (pr, o["r"])
                if best is None or key < best[0]: best = (key, n)
            if best is None: break
            n = best[1]; o = ops[n]
            pos[n] = g; out.setdefault(g, []).append(o["t"]); room -= o["c"]; used[g % 32] = used.get(g % 32, 0) + o["c"]
            last_e = n if o["k"] == "e" else None
    return (out, used) if len(pos) == len(ops) else None

HEAD = lambda o: (o["k"] == "e" and o["r"] < 10) or (o["k"] == "a" and o["r"] < 8) or o["k"] == "c0"
def subset(ops, keep):
    idx = [n for n, o in enumerate(ops) if keep(o)]
    m = {n: i for i, n in enumerate(idx)}
    return [dict(o, deps=[m[d] for d in o["deps"] if d in m]) for n, o in enumerate(ops) if n in m]
def place3(A, Bh, Bt, used):
    res = []
    u = dict(used)
    for b in range(8, 41):
        rt = try_place(subset(Bt, lambda o: not HEAD(o)), 0, 7, 0, 0, u, b)
        if rt is not None: break
    u = rt[1]; bt = b
    cands = []
    for base in (12, 16, 20, 24, 28, 32):
        cands.append((base, 0))
        for m in (6, 4, 3, 2): cands.append((base, m))
    for base, m in cands:
        b = (lambda g, base=base, m=m: base + (4 if m and g % m == 0 else 0))
        ra = try_place(A, 10, 31, 19, 23, u, b)
        if ra is None: continue
        rb = try_place(subset(Bh, HEAD), 18, 31, 27, 32, ra[1], b)
        if rb is None: continue
        return ra[0], rb[0], rt[0], (bt, base, m)
    raise AssertionError("no placement")

def kread(buf): return [f"ds_read_b128 {A4(buf+4*s)}, v{VK} offset:{s*1024}" for s in range(8)]
def vread(buf): return [f"ds_read_b128 {A4(buf+4*(2*T+ks))}, v{VV} offset:{(2*T+ks)*1024}" for ks in range(2) for T in range(4)]
KADV = [f"v_add_u32 v{VK}, s35, v{VK}", f"v_and_b32 v{VK}, 0xffff, v{VK}"]
VADV = [f"v_add_u32 v{VT}, s34, v{VV}", f"v_bfi_b32 v{VV}, s31, v{VT}, v{VV}"]
def dma(kind):
    if kind == "K":
        return ["s_mov_b32 m0, s27", "s_add_u32 s27, s27, 0x2000",
                f"buffer_load_dwordx4 v{VLANE}, s[4:7], s25 offen lds", f"buffer_load_dwordx4 v{VLANE}, s[4:7], s25 offen offset:1024 lds",
                "s_and_b32 s27, s27, 0xffff", "s_add_u32 s25, s25, 0x2000"]
    return ["s_mov_b32 m0, s28", "s_add_u32 s28, s28, 0x2000",
            f"buffer_load_dwordx4 v{VLANE}, s[8:11], s26 offen lds", f"buffer_load_dwordx4 v{VLANE}, s[8:11], s26 offen offset:1024 lds",
            "s_and_b32 s28, s28, 0xffff", "s_or_b32 s28, s28, 0x10000", "s_add_u32 s26, s26, 0x2000"]

def period(a, kind, masked):
    hasQK = kind != "FIN"; hasPV = kind != "PRO"
    if kind in ("PRO", "P1"):
        M = qk(SA, QL, KX) + qk(SB, QS, KX) + pv(PA, VX, OL) + pv(PB, VX, OS); lA, lBh, lBt = LL, LS, LS
    elif kind == "TR":
        M = qk(SA, QL, KX) + qk(SB, QP, KX) + pv(PA, VX, OL) + pv(PB, VX, OS); lA, lBh, lBt = LL, LB, LS
    else:
        M = qk(SA, QL, KX) + qk(SB, QP, KX) + pv(PA, VX, OL) + pv(PB, VX, "B"); lA, lBh, lBt = LL, LB, LB
    fill, pre = {}, {}
    def add(d, g, ops):
        d.setdefault(g, []).extend(ops if isinstance(ops, list) else [ops])
    nread = {}
    def reads(lst, gaps, adv):
        for n, op in enumerate(lst):
            g = gaps[n * len(gaps) // len(lst)]
            add(fill, g, op); nread[g] = nread.get(g, 0) + 1
        add(fill, gaps[-1], adv[0]); add(fill, gaps[-1] + 1 if gaps[-1] < 31 else 31, adv[1])
    if kind == "PRO":
        for n, kk in enumerate("KKKVKVKVKVKV"): add(fill, n, dma(kk))
        for s_ in range(8):
            add(fill, 12 + s_ // 2, f"buffer_load_dwordx4 {A4(QP+4*s_)}, v{VLANE}, s[12:15], {'s62' if s_ < 4 else 's63'} offen offset:{(s_ & 3)*1024}")
        add(pre, 8, "s_waitcnt vmcnt(16)")
        add(pre, 16, "s_waitcnt vmcnt(30)"); add(pre, 16, "s_barrier")
        reads(kread(KX), list(range(16, 24)), KADV)
    elif kind in ("P1", "TR", "P2"):
        vm = {"P1": 20, "TR": 16, "P2": 14}[kind]
        add(pre, 0, f"s_waitcnt vmcnt({vm}) lgkmcnt(0)"); add(pre, 0, "s_barrier")
        reads(vread(VX), list(range(0, 12)), VADV); add(pre, 16, "s_waitcnt lgkmcnt(0)")
        reads(kread(KX), list(range(16, 28)), KADV)
    else:
        add(pre, 0, "s_waitcnt vmcnt(14) lgkmcnt(0)"); add(pre, 0, "s_barrier")
        add(pre, 0, vread(VX))
        add(pre, 16, "s_waitcnt lgkmcnt(0)")
    if kind == "PRO":
        d = dma("K") + dma("V"); spread(fill, d, 17, 21)
    elif kind in ("P1", "TR"):
        d = dma("K") + dma("V"); spread(fill, d, 7, 9)
    elif kind == "P2":
        spread(fill, dma("K") + dma("V"), 7, 9); spread(fill, dma("K") + dma("V"), 27, 31)
    if kind == "TR" and PREFETCH:
        add(fill, 12, ["buffer_load_dword v12, v10, s[48:51], 0 offen", "buffer_load_dword v13, v11, s[52:55], 0 offen"])
    used = {}
    for g in range(32): used[g] = 4 * len(fill.get(g, [])) if kind != "PRO" else 4 * nread.get(g, 0)
    A = sm_ops(SA, PA, lA); Bh = sm_ops(SB, PB, lBh); Bt = sm_ops(SB, PB, lBt)
    pa, pb, pt, bud = place3(A, Bh, Bt, used)
    if common.VERB: print("period", kind, masked, "budget", bud)
    if kind != "PRO":
        for g, ops in sorted(pt.items()):
            if kind != "FIN": add(fill, g, ops)
            else: add(pre, 0, ops)
    if hasQK:
        for g, ops in pa.items(): add(fill, g, ops)
        for g, ops in pb.items(): add(fill, g, ops)
    if masked:
        add(fill, 28, "s_add_u32 s29, s29, s33"); add(fill, 28, "s_add_u32 s30, s30, s33")
    state = {"prev": None}
    def E(p):
        if kind in ("P1", "P2", "TR"):
            if "noexp" in EXP and p.startswith("v_exp"): return
            if "noadd" in EXP and p.startswith("v_add_f32"): return
            if "nocvt" in EXP and p.startswith("v_cvt"): return
            if "nods" in EXP and p.startswith("ds_read"): return
            if "nodma" in EXP and p.startswith("buffer_load_dwordx4"): return
            if "nobar" in EXP and p.startswith("s_barrier"): return
            if "nomfma" in EXP and p.startswith("v_mfma"): return
        ins = Ins(p)
        pv_ = state["prev"]
        if pv_ is not None and pv_.kind == "trans" and ins.kind == "valu" and set(pv_.wr) & set(ins.rd): a.e("s_nop 0")
        a.e(p); state["prev"] = ins
    for i, m in enumerate(M):
        for p in pre.get(i, []): E(p)
        present = (hasQK if i < 16 else hasPV)
        if present:
            if masked and i in (0, 8):
                S = SA if i == 0 else SB; rel = "s29" if i == 0 else "s30"; wv = "s20" if i == 0 else "s60"
                base = m.rsplit(",", 1)[0]
                l1, l2, lj = a.newlabel("K2T"), a.newlabel("K2N"), a.newlabel("K2J")
                a.e(f"s_cmp_lt_i32 {rel}, {wv}")
                a.raw(f"    s_cbranch_scc0 {l1}\n    {m}\n    s_branch {lj}\n{l1}:")
                a.raw(f"    s_cmp_eq_i32 {rel}, {wv}\n    s_cbranch_scc1 {l2}\n    {base}, v[{NEG}:{NEG+15}]\n    s_branch {lj}\n{l2}:")
                a.e(f"{base}, v[{TRI}:{TRI+15}]")
                a.label(lj)
                state["prev"] = None
            else:
                E(m)
        for p in fill.get(i, []): E(p)

def ctx_addr(a):
    a.e("v_and_b32 v12, 31, v1             ; q")
    a.e("v_lshrrev_b32 v13, 5, v1          ; hh")
    a.e("v_lshrrev_b32 v8, 4, v12")
    a.e("v_lshlrev_b32 v8, 17, v8          ; (q>>4)*131072")
    a.e("v_lshl_add_u32 v8, v13, 8, v8")
    a.e("v_and_b32 v9, 15, v12")
    a.e("v_lshl_add_u32 v8, v9, 4, v8")
    a.e("s_lshl_b32 s44, s38, 12           ; head*4*1024")

def tri_init(a, zero_reg):
    a.e("v_and_b32 v6, 31, v1")
    a.e("v_lshrrev_b32 v7, 5, v1")
    a.e("v_lshlrev_b32 v7, 2, v7")
    a.e("v_sub_u32 v6, v6, v7              ; q - 4h")
    a.e("v_mov_b32 v7, 0xf149f2ca          ; -1e30")
    for r in range(16):
        i, j = r >> 2, r & 3
        key = 16 * (i & 1) + 8 * (i >> 1) + j
        a.e(f"v_cmp_le_i32 vcc, {key}, v6")
        a.e("s_nop 1")
        a.e(f"v_cndmask_b32 v{TRI+r}, v7, v{zero_reg}, vcc")

def ctx_out(a, O, L, qt, combine=False, flagbit=None):
    if combine:
        a.e("s_waitcnt lgkmcnt(0)")
        a.e("s_barrier")
        for n in range(16):
            a.e(f"ds_read_b128 v[{32+4*n}:{32+4*n+3}], v6 offset:{n*1024}")
        a.e(f"ds_read_b32 v{LB}, v7 offset:16384")
    a.e(f"s_lshl_b32 s45, {qt}, 18       ; qtile*2*128*1024")
    a.e("s_add_u32 s45, s45, s44")
    a.e(f"v_add_f32 v{L}, v{L}, v{L+1}")
    if combine:
        a.e("s_waitcnt lgkmcnt(0)")
        a.e(f"v_add_f32 v{L}, v{L}, v{LB}")
    a.e(f"v_mov_b32 v10, v{L}")
    a.e("s_nop 1")
    a.e(f"v_permlane32_swap_b32 v{L}, v10")
    a.e("s_nop 1")
    a.e(f"v_add_f32 v{L}, v{L}, v10")
    if combine:
        for r in range(0, 64, 2): a.e(f"v_pk_add_f32 v[{O+r}:{O+r+1}], v[{O+r}:{O+r+1}], v[{32+r}:{32+r+1}]")
    skip = None
    if flagbit is not None:
        a.e(f"v_pk_add_f32 v[14:15], v[{O}:{O+1}], v[{O+2}:{O+3}]")
        for r in range(4, 64, 2): a.e(f"v_pk_add_f32 v[14:15], v[14:15], v[{O+r}:{O+r+1}]")
        a.e("v_add_f32 v14, v14, v15")
        a.e("s_mov_b32 s67, 0x21800000         ; 2^-60")
        a.e("s_mov_b32 s68, 0x5d800000         ; 2^60")
        a.e(f"v_cmp_nle_f32 s[70:71], s67, v{L}          ; !(2^-60 <= l)")
        a.e(f"v_cmp_nge_f32 s[72:73], s68, v{L}          ; !(2^60 >= l)")
        a.e("v_cmp_class_f32 vcc, v14, s69")
        a.e("s_nop 1")
        a.e("s_or_b64 s[70:71], s[70:71], s[72:73]")
        a.e("s_or_b64 s[70:71], s[70:71], vcc")
        skip = a.newlabel("K2_OK"); done = a.newlabel("K2_DONE")
        a.e("s_cmp_eq_u64 s[70:71], 0")
        a.e(f"s_cbranch_scc1 {skip}")
        a.e(f"s_or_b32 s66, s66, {flagbit}")
        a.e(f"s_branch {done}")
        a.label(skip)
    a.e(f"v_rcp_f32 v10, v{L}")
    a.e("s_nop 0")
    a.e("v_mov_b32 v11, v10")
    for T in range(4):
        for c in range(2):
            q = 16 + 4 * ((2 * T + c) % 4)
            for h, i in enumerate((c, c + 2)):
                b = O + 16 * T + 4 * i
                for j in (0, 2): a.e(f"v_pk_mul_f32 v[{b+j}:{b+j+1}], v[{b+j}:{b+j+1}], v[10:11]")
                a.e(f"v_cvt_pk_bf16_f32 v{q+2*h}, v{b}, v{b+1}")
                a.e(f"v_cvt_pk_bf16_f32 v{q+2*h+1}, v{b+2}, v{b+3}")
            a.e(f"buffer_store_dwordx4 v[{q}:{q+3}], v8, s[16:19], s45 offen offset:{T*1024 + c*512}{CSTFLAG}")
    if skip: a.label(done)

def slow_path(a):
    S, P, M_, Lr, SC, QS_ = 32, 64, 112, 114, 116, 192
    a.label("K2_SLOW")
    a.e("s_cmp_eq_u32 s66, 0")
    a.e("s_cbranch_scc1 K2_END")
    a.e("s_waitcnt vmcnt(0)")
    a.e("s_bitcmp1_b32 s66, 0")
    a.e("s_cbranch_scc0 K2_SLOW_L")
    a.e("s_and_b32 s66, s66, 2")
    for r in range(32): a.e(f"v_accvgpr_mov_b32 a{QS_+r}, a{QS+r}")
    a.e("s_sub_u32 s24, s22, 4")
    a.e("s_mov_b32 s46, s41")
    a.e("s_branch K2_SLOW_GO")
    a.label("K2_SLOW_L")
    a.e("s_mov_b32 s66, 0")
    for r in range(32): a.e(f"v_accvgpr_mov_b32 a{QS_+r}, a{QL+r}")
    a.e("s_sub_u32 s24, s23, 4")
    a.e("s_mov_b32 s46, s40")
    a.label("K2_SLOW_GO")
    a.e("s_add_u32 s24, s24, s20")
    for r in range(64): a.e(f"v_mov_b32 v{OL+r}, 0")
    a.e(f"v_mov_b32 v{Lr}, 0")
    a.e(f"v_mov_b32 v{Lr+1}, 0")
    tri_init(a, Lr)
    a.e(f"v_mov_b32 v{M_}, 0xff800000")
    a.e("s_mov_b32 s25, 0                  ; tile")
    a.label("K2_SLOW_LOOP")
    a.e("s_lshl_b32 s26, s25, 13")
    a.e("s_add_u32 s27, s26, 0x1000")
    for k in range(8):
        a.e(f"buffer_load_dwordx4 {A4(KX+4*k)}, v{VLANE}, s[4:7], {'s26' if k < 4 else 's27'} offen offset:{(k & 3)*1024}")
    for k in range(8):
        a.e(f"buffer_load_dwordx4 {A4(VX+4*k)}, v{VLANE}, s[8:11], {'s26' if k < 4 else 's27'} offen offset:{(k & 3)*1024}")
    a.e("s_waitcnt vmcnt(0)")
    m = qk(S, QS_, KX)
    l1, lj = a.newlabel("K2_ST"), a.newlabel("K2_SJ")
    a.e("s_cmp_eq_u32 s25, s24")
    a.raw(f"    s_cbranch_scc1 {l1}\n    {m[0]}\n    s_branch {lj}\n{l1}:")
    a.e(m[0].rsplit(",", 1)[0] + f", v[{TRI}:{TRI+15}]")
    a.label(lj)
    for x in m[1:]: a.e(x)
    a.e("s_nop 15")
    a.e(f"v_max3_f32 v{SC}, v{S}, v{S+1}, v{M_}")
    for r in range(2, 16, 2): a.e(f"v_max3_f32 v{SC}, v{S+r}, v{S+r+1}, v{SC}")
    a.e(f"v_mov_b32 v10, v{SC}")
    a.e("s_nop 1")
    a.e(f"v_permlane32_swap_b32 v{SC}, v10")
    a.e("s_nop 1")
    a.e(f"v_max_f32 v{SC}, v{SC}, v10")
    a.e(f"v_sub_f32 v10, v{M_}, v{SC}")
    a.e(f"v_mov_b32 v{M_}, v{SC}")
    a.e("v_exp_f32 v10, v10")
    for r in range(16): a.e(f"v_sub_f32 v{S+r}, v{S+r}, v{M_}")
    for r in range(16): a.e(f"v_exp_f32 v{S+r}, v{S+r}")
    a.e(f"v_mul_f32 v{Lr}, v{Lr}, v10")
    for r in range(16): a.e(f"v_add_f32 v{Lr}, v{Lr}, v{S+r}")
    for k in range(8): a.e(f"v_cvt_pk_bf16_f32 v{P+k}, v{S+2*k}, v{S+2*k+1}")
    for r in range(64): a.e(f"v_mul_f32 v{OL+r}, v{OL+r}, v10")
    a.e("s_nop 1")
    for x in pv(P, VX, OL): a.e(x)
    a.e("s_nop 15")
    a.e("s_add_u32 s25, s25, 1")
    a.e("s_cmp_le_u32 s25, s24")
    a.e("s_cbranch_scc1 K2_SLOW_LOOP")
    ctx_out(a, OL, Lr, "s46")
    a.e("s_branch K2_SLOW")

def gen_k2(a, name="attn_kernel"):
    kernel_header(a, name)
    a.block("k2_pre")
    a.e("s_cmp_ge_u32 s2, 256")
    a.e("s_cbranch_scc1 K2_END")
    stamp(a, 0)
    a.e(f"s_load_dwordx2 s[36:37], s[0:1], {KA['ws']}")
    a.e(f"s_load_dwordx2 s[56:57], s[0:1], {KA['wo']}")
    a.e(f"s_load_dwordx2 s[58:59], s[0:1], {KA['wd']}")
    a.e("v_lshrrev_b32 v1, 6, v0")
    a.e("s_nop 0")
    a.e("v_readfirstlane_b32 s20, v1       ; wave")
    a.e("v_and_b32 v1, 63, v0              ; lane")
    code_touch(a, name, "K2_END", 1, 14, 15, "s20")
    a.e("s_and_b32 s38, s2, 7")
    a.e("s_lshr_b32 s39, s2, 3")
    a.e("s_and_b32 s21, s39, 7             ; i")
    a.e("s_lshr_b32 s39, s39, 3")
    a.e("s_lshl_b32 s38, s38, 2")
    a.e("s_add_u32 s38, s38, s39           ; head")
    a.e("s_lshl_b32 s22, s21, 2")
    a.e("s_add_u32 s22, s22, 4             ; n1 = 4(i+1)")
    a.e("s_lshl_b32 s23, s21, 2")
    a.e("s_sub_u32 s23, 64, s23            ; nL = 4(16-i)")
    a.e("s_lshl_b32 s39, s38, 19           ; head*512K")
    a.e(f"v_lshlrev_b32 v{VLANE}, 4, v1")
    a.e("s_waitcnt lgkmcnt(0)")
    for srdn, reg in ((4, KF), (8, VF), (12, QF)):
        a.e(f"s_add_u32 s40, s39, {reg}")
        a.e(f"s_add_u32 s{srdn}, s36, s40")
        a.e(f"s_addc_u32 s{srdn+1}, s37, 0")
        a.e(f"s_and_b32 s{srdn+1}, s{srdn+1}, 0xffff")
        if srdn == 12: a.e(f"s_mov_b32 s{srdn+2}, 0x80000")
        else: a.e(f"s_lshl_b32 s{srdn+2}, s23, 13")
        a.e(f"s_mov_b32 s{srdn+3}, 0x20000")
    a.e(f"s_add_u32 s16, s36, {CF}")
    a.e("s_addc_u32 s17, s37, 0")
    a.e("s_and_b32 s17, s17, 0xffff")
    a.e("s_mov_b32 s18, 0x1000000")
    a.e("s_mov_b32 s19, 0x20000")
    srd(a, "s56", "s57", 0x400000, 48)
    srd(a, "s58", "s59", 1376 * 1024, 52)
    a.e("s_lshl_b32 s46, s2, 2")
    a.e("s_add_u32 s46, s46, s20")
    a.e("s_lshl_b32 s47, s46, 12")
    a.e("v_lshl_add_u32 v10, v1, 6, s47")
    a.e("v_and_b32 v11, 31, v1")
    a.e("s_lshl_b32 s47, s46, 11")
    a.e("v_lshl_add_u32 v11, v11, 6, s47")
    a.e("s_sub_u32 s40, 15, s21")
    a.e("s_lshl_b32 s40, s40, 2")
    a.e("s_add_u32 s40, s40, s20           ; qtile L")
    a.e("s_lshl_b32 s41, s21, 2")
    a.e("s_add_u32 s41, s41, s20           ; qtile S")
    a.e("s_lshl_b32 s42, s40, 13")
    a.e("s_lshl_b32 s43, s41, 13")
    a.e("s_add_u32 s44, s42, 0x1000")
    a.e("s_add_u32 s45, s43, 0x1000")
    a.e("s_xor_b32 s61, s40, 1")
    a.e("s_lshl_b32 s62, s61, 13")
    a.e("s_add_u32 s63, s62, 0x1000")
    a.e("s_lshl_b32 s27, s20, 11           ; K m0 base = w*2048")
    a.e("s_or_b32 s28, s27, 0x10000        ; V m0 base")
    a.e("s_mov_b32 s25, s27")
    a.e("s_mov_b32 s26, s27")
    a.e("s_mov_b32 s31, 0xffff")
    a.e("s_mov_b32 s34, 0x2000")
    a.e("s_mov_b32 s35, 0x2000")
    a.e("s_mov_b32 s60, s20")
    a.e("s_and_b32 s64, s20, 1")
    a.e("s_lshl_b32 s64, s64, 13           ; parity * 8192")
    def qload(base, lo, hi):
        for s_ in range(8):
            a.e(f"buffer_load_dwordx4 {A4(base+4*s_)}, v{VLANE}, s[12:15], {lo if s_ < 4 else hi} offen offset:{(s_ & 3)*1024}")
    def tile(kind):
        for o in dma(kind): a.e(o)
    tile("K"); qload(QL, "s42", "s44"); qload(QS, "s43", "s45")
    a.e(f"v_mov_b32 v{VK}, v{VLANE}")
    a.e(f"v_or_b32 v{VV}, 0x10000, v{VLANE}")
    for r in range(OL, OL + 128): a.e(f"v_mov_b32 v{r}, 0")
    for r in range(LL, LL + 6): a.e(f"v_mov_b32 v{r}, 0")
    for T in range(4):
        for r in range(16): a.e(f"v_accvgpr_write_b32 a{OB[T]+r}, 0")
    tri_init(a, LL)
    for r in range(16): a.e(f"v_mov_b32 v{NEG+r}, v7")
    a.e("s_mov_b32 s66, 0")
    a.e("s_mov_b32 s69, 0x207")
    a.e("s_sub_u32 s29, 4, s23")
    a.e("s_sub_u32 s30, 4, s22")
    a.e("s_mov_b32 s33, 1")
    a.e("s_waitcnt vmcnt(8)")
    a.e("s_barrier")
    for o in kread(KX): a.e(o)
    for o in KADV: a.e(o)
    a.e("s_waitcnt lgkmcnt(0)")
    stamp(a, 1)
    stamp(a, 4, True)
    a.block("k2_PRO"); period(a, "PRO", True)
    a.block("k2_c1")
    stamp(a, 6)
    a.e("s_sub_u32 s24, s22, 5")
    a.e("s_cmp_gt_i32 s24, 0")
    a.e("s_cbranch_scc0 K2_P1M_PRE")
    a.e("s_add_u32 s29, s29, s24")
    a.e("s_add_u32 s30, s30, s24")
    a.raw(".p2align 6")
    a.label("K2_P1U")
    a.block("k2_P1U"); period(a, "P1", False)
    a.e("s_sub_u32 s24, s24, 1")
    a.e("s_cmp_lg_u32 s24, 0")
    a.e("s_cbranch_scc1 K2_P1U")
    a.block("k2_c2")
    a.label("K2_P1M_PRE")
    a.e("s_sub_u32 s24, s22, 1")
    a.e("s_min_u32 s24, s24, 4")
    a.raw(".p2align 6")
    a.label("K2_P1M")
    a.block("k2_P1M")
    a.e("s_add_u32 s65, s64, 0x2000")
    a.e("s_cmp_eq_u32 s24, 2")
    a.e("s_cselect_b32 s35, s65, 0x2000")
    a.e("s_cmp_eq_u32 s24, 1")
    a.e("s_cselect_b32 s35, 0x4000, s35")
    period(a, "P1", True)
    a.e("s_sub_u32 s24, s24, 1")
    a.e("s_cmp_lg_u32 s24, 0")
    a.e("s_cbranch_scc1 K2_P1M")
    a.block("k2_c3")
    stamp(a, 7)
    a.e("s_and_b32 s65, s20, 1")
    a.e("s_add_u32 s29, s29, s65")
    a.e("s_mov_b32 s30, s29")
    a.e("s_xor_b32 s60, s20, 1")
    a.e("s_mov_b32 s33, 2")
    a.e("s_add_u32 s34, s64, 0x2000")
    a.block("k2_TR"); period(a, "TR", True)
    a.block("k2_c4")
    a.e("s_mov_b32 s34, 0x4000")
    ctx_addr(a)
    ctx_out(a, OS, LS, "s41", flagbit=1)
    stamp(a, 8)
    a.e("s_sub_u32 s24, s23, s22")
    a.e("s_lshr_b32 s24, s24, 1")
    a.e("s_sub_u32 s24, s24, 3")
    a.e("s_cmp_gt_i32 s24, 0")
    a.e("s_cbranch_scc0 K2_P2M_PRE")
    a.e("s_lshl_b32 s65, s24, 1")
    a.e("s_add_u32 s29, s29, s65")
    a.e("s_add_u32 s30, s30, s65")
    a.raw(".p2align 6")
    a.label("K2_P2U")
    a.block("k2_P2U"); period(a, "P2", False)
    a.e("s_sub_u32 s24, s24, 1")
    a.e("s_cmp_lg_u32 s24, 0")
    a.e("s_cbranch_scc1 K2_P2U")
    a.block("k2_c5")
    a.label("K2_P2M_PRE")
    a.e("s_sub_u32 s24, s23, s22")
    a.e("s_lshr_b32 s24, s24, 1")
    a.e("s_sub_u32 s24, s24, 1")
    a.e("s_min_u32 s24, s24, 2")
    a.raw(".p2align 6")
    a.label("K2_P2M")
    a.block("k2_P2M"); period(a, "P2", True)
    a.e("s_sub_u32 s24, s24, 1")
    a.e("s_cmp_lg_u32 s24, 0")
    a.e("s_cbranch_scc1 K2_P2M")
    a.block("k2_FIN"); period(a, "FIN", False)
    a.block("k2_epi")
    stamp(a, 2)
    stamp(a, 5, True)
    a.e("s_barrier")
    a.e(f"s_mul_i32 s65, s20, 16640")
    a.e(f"v_add_u32 v6, s65, v{VLANE}")
    a.e(f"v_add_f32 v{LB}, v{LB}, v{LB+1}")
    a.e("v_lshlrev_b32 v7, 2, v1")
    a.e("v_add_u32 v7, s65, v7")
    a.e("s_nop 5")
    for T in range(4):
        for k in range(4):
            a.e(f"ds_write_b128 v6, a[{OB[T]+4*k}:{OB[T]+4*k+3}] offset:{(4*T+k)*1024}")
    a.e(f"ds_write_b32 v7, v{LB} offset:16384")
    a.e("s_xor_b32 s65, s20, 1")
    a.e(f"s_mul_i32 s65, s65, 16640")
    a.e(f"v_add_u32 v6, s65, v{VLANE}")
    a.e("v_lshlrev_b32 v7, 2, v1")
    a.e("v_add_u32 v7, s65, v7")
    ctx_out(a, OL, LL, "s40", combine=True, flagbit=2)
    if common.DIAG:
        a.e("s_waitcnt vmcnt(0)")
        stamp(a, 3)
        stamp_flush(a, 2, 9)
    a.block("k2_slow")
    slow_path(a)
    a.cur = None
    a.label("K2_END")
    a.e("s_endpgm")
    return kernel_desc(name, 512, 102, 256)

def check_k2(a):
    B = a.blocks
    tr = B["k2_pre"] + B["k2_PRO"] + B["k2_c1"] + B["k2_P1U"] * 2 + B["k2_c2"] + B["k2_P1M"] * 2 + B["k2_c3"] + B["k2_TR"] + B["k2_c4"] + B["k2_P2U"] * 2 + B["k2_c5"] + B["k2_P2M"] * 2 + B["k2_FIN"] + B["k2_epi"]
    p = check_trace(tr, "k2a")
    tr = B["k2_pre"] + B["k2_PRO"] + B["k2_c1"] + B["k2_c2"] + B["k2_P1M"] * 3 + B["k2_c3"] + B["k2_TR"] + B["k2_c4"] + B["k2_c5"] + B["k2_P2M"] + B["k2_FIN"] + B["k2_epi"]
    return p + check_trace(tr, "k2b") + check_trace(B["k2_epi"] + B["k2_slow"] + B["k2_slow"], "k2s")
```

```python
from common import *
import common, os
EXP = os.environ.get('K2EXP', '')
QL, QS, KX, VX, QP = 0, 32, 64, 128, 192
OB = [96, 112, 160, 176]
SA, SB, PA, PB, TRI, NEG = 32, 48, 64, 72, 80, 96
LL, LS, LB = 112, 114, 116
OL, OS = 128, 192
VK, VV, VLANE, VT = 2, 3, 4, 5
CSTFLAG = ""
FUSE3 = os.environ.get("FUSE3", "1") == "1"
PRO_W0 = 30
PRO_W8 = 32
PREFETCH = False

def mf(d, a_, b_, c): return f"v_mfma_f32_32x32x16_bf16 v[{d}:{d+15}], {a_}, {b_}, {c}"
def A4(b): return f"a[{b}:{b+3}]"
def V4(b): return f"v[{b}:{b+3}]"

def qk(S, Q, K):
    return [mf(S, A4(K + 4*s), A4(Q + 4*s), "0" if s == 0 else f"v[{S}:{S+15}]") for s in range(8)]
def pv(P, V, O):
    if O == "B":
        return [f"v_mfma_f32_32x32x16_bf16 a[{OB[T]}:{OB[T]+15}], {A4(V + 4*(2*T + ks))}, {V4(P + 4*ks)}, a[{OB[T]}:{OB[T]+15}]" for ks in range(2) for T in range(4)]
    return [mf(O + 16*T, A4(V + 4*(2*T + ks)), V4(P + 4*ks), f"v[{O+16*T}:{O+16*T+15}]") for ks in range(2) for T in range(4)]

def sm_ops(S, P, L):
    ops = []
    for r in range(16):
        ops.append(dict(t=f"v_exp_f32 v{S+r}, v{S+r}", c=8, k="e", r=r, deps=[]))
    for r in range(16):
        ops.append(dict(t=f"v_add_f32 v{L+(r&1)}, v{L+(r&1)}, v{S+r}", c=4, k="a", r=r, deps=[r] + ([16 + r - 2] if r >= 2 else [])))
    for k in range(8):
        ops.append(dict(t=f"v_cvt_pk_bf16_f32 v{P+k}, v{S+2*k}, v{S+2*k+1}", c=4, k="c0" if k < 4 else "c1", r=k, deps=[2*k, 2*k+1]))
    return ops

def try_place(ops, start, end, c0_min, c1_min, used, b):
    used = dict(used); out = {}; pos = {}
    seq = 0
    for g in range(start, end + 1):
        room = (b(g) if callable(b) else b) - used.get(g % 32, 0)
        last_e = None
        while True:
            best = None
            for n, o in enumerate(ops):
                if n in pos: continue
                if o["k"] == "c0" and g < c0_min: continue
                if o["k"] == "c1" and g < c1_min: continue
                if any(d not in pos for d in o["deps"]): continue
                if last_e is not None and last_e in o["deps"]: continue
                if o["c"] > room: continue
                pr = {"c0": 0, "c1": 0, "a": 1, "e": 2}[o["k"]]
                key = (pr, o["r"])
                if best is None or key < best[0]: best = (key, n)
            if best is None: break
            n = best[1]; o = ops[n]
            pos[n] = g; out.setdefault(g, []).append(o["t"]); room -= o["c"]; used[g % 32] = used.get(g % 32, 0) + o["c"]
            last_e = n if o["k"] == "e" else None
    return (out, used) if len(pos) == len(ops) else None

HEAD = lambda o: (o["k"] == "e" and o["r"] < 10) or (o["k"] == "a" and o["r"] < 8) or o["k"] == "c0"
def subset(ops, keep):
    idx = [n for n, o in enumerate(ops) if keep(o)]
    m = {n: i for i, n in enumerate(idx)}
    return [dict(o, deps=[m[d] for d in o["deps"] if d in m]) for n, o in enumerate(ops) if n in m]
def place3(A, Bh, Bt, used):
    res = []
    u = dict(used)
    for b in range(8, 41):
        rt = try_place(subset(Bt, lambda o: not HEAD(o)), 0, 7, 0, 0, u, b)
        if rt is not None: break
    u = rt[1]; bt = b
    cands = []
    for base in (12, 16, 20, 24, 28, 32):
        cands.append((base, 0))
        for m in (6, 4, 3, 2): cands.append((base, m))
    for base, m in cands:
        b = (lambda g, base=base, m=m: base + (4 if m and g % m == 0 else 0))
        ra = try_place(A, 10, 31, 19, 23, u, b)
        if ra is None: continue
        rb = try_place(subset(Bh, HEAD), 18, 31, 27, 32, ra[1], b)
        if rb is None: continue
        return ra[0], rb[0], rt[0], (bt, base, m)
    raise AssertionError("no placement")

def kread(buf): return [f"ds_read_b128 {A4(buf+4*s)}, v{VK} offset:{s*1024}" for s in range(8)]
def vread(buf): return [f"ds_read_b128 {A4(buf+4*(2*T+ks))}, v{VV} offset:{(2*T+ks)*1024}" for ks in range(2) for T in range(4)]
KADV = [f"v_add_u32 v{VK}, s35, v{VK}", f"v_and_b32 v{VK}, 0xffff, v{VK}"]
VADV = [f"v_add_u32 v{VT}, s34, v{VV}", f"v_bfi_b32 v{VV}, s31, v{VT}, v{VV}"]
def dma(kind):
    if kind == "K":
        return ["s_mov_b32 m0, s27", "s_add_u32 s27, s27, 0x2000",
                f"buffer_load_dwordx4 v{VLANE}, s[4:7], s25 offen lds", f"buffer_load_dwordx4 v{VLANE}, s[4:7], s25 offen offset:1024 lds",
                "s_and_b32 s27, s27, 0xffff", "s_add_u32 s25, s25, 0x2000"]
    return ["s_mov_b32 m0, s28", "s_add_u32 s28, s28, 0x2000",
            f"buffer_load_dwordx4 v{VLANE}, s[8:11], s26 offen lds", f"buffer_load_dwordx4 v{VLANE}, s[8:11], s26 offen offset:1024 lds",
            "s_and_b32 s28, s28, 0xffff", "s_or_b32 s28, s28, 0x10000", "s_add_u32 s26, s26, 0x2000"]

def period(a, kind, masked):
    hasQK = kind != "FIN"; hasPV = kind != "PRO"
    if kind in ("PRO", "P1"):
        M = qk(SA, QL, KX) + qk(SB, QS, KX) + pv(PA, VX, OL) + pv(PB, VX, OS); lA, lBh, lBt = LL, LS, LS
    elif kind == "TR":
        M = qk(SA, QL, KX) + qk(SB, QP, KX) + pv(PA, VX, OL) + pv(PB, VX, OS); lA, lBh, lBt = LL, LB, LS
    else:
        M = qk(SA, QL, KX) + qk(SB, QP, KX) + pv(PA, VX, OL) + pv(PB, VX, "B"); lA, lBh, lBt = LL, LB, LB
    fill, pre = {}, {}
    def add(d, g, ops):
        d.setdefault(g, []).extend(ops if isinstance(ops, list) else [ops])
    nread = {}
    def reads(lst, gaps, adv):
        for n, op in enumerate(lst):
            g = gaps[n * len(gaps) // len(lst)]
            add(fill, g, op); nread[g] = nread.get(g, 0) + 1
        add(fill, gaps[-1], adv[0]); add(fill, gaps[-1] + 1 if gaps[-1] < 31 else 31, adv[1])
    if kind == "PRO":
        for n, kk in enumerate("KKKVKVKVKVKV"): add(fill, n, dma(kk))
        for s_ in range(8):
            add(fill, 12 + s_ // 2, f"buffer_load_dwordx4 {A4(QP+4*s_)}, v{VLANE}, s[12:15], {'s62' if s_ < 4 else 's63'} offen offset:{(s_ & 3)*1024}")
        add(pre, 8, "s_waitcnt vmcnt(16)")
        add(pre, 16, "s_waitcnt vmcnt(30)"); add(pre, 16, "s_barrier")
        reads(kread(KX), list(range(16, 24)), KADV)
    elif kind in ("P1", "TR", "P2"):
        vm = {"P1": 20, "TR": 16, "P2": 14}[kind]
        add(pre, 0, f"s_waitcnt vmcnt({vm}) lgkmcnt(0)"); add(pre, 0, "s_barrier")
        reads(vread(VX), list(range(0, 12)), VADV); add(pre, 16, "s_waitcnt lgkmcnt(0)")
        reads(kread(KX), list(range(16, 28)), KADV)
    else:
        add(pre, 0, "s_waitcnt vmcnt(14) lgkmcnt(0)"); add(pre, 0, "s_barrier")
        add(pre, 0, vread(VX))
        add(pre, 16, "s_waitcnt lgkmcnt(0)")
    if kind == "PRO":
        d = dma("K") + dma("V"); spread(fill, d, 17, 21)
    elif kind in ("P1", "TR"):
        d = dma("K") + dma("V"); spread(fill, d, 7, 9)
    elif kind == "P2":
        spread(fill, dma("K") + dma("V"), 7, 9); spread(fill, dma("K") + dma("V"), 27, 31)
    if kind == "TR" and PREFETCH:
        add(fill, 12, ["buffer_load_dword v12, v10, s[48:51], 0 offen", "buffer_load_dword v13, v11, s[52:55], 0 offen"])
    used = {}
    for g in range(32): used[g] = 4 * len(fill.get(g, [])) if kind != "PRO" else 4 * nread.get(g, 0)
    A = sm_ops(SA, PA, lA); Bh = sm_ops(SB, PB, lBh); Bt = sm_ops(SB, PB, lBt)
    pa, pb, pt, bud = place3(A, Bh, Bt, used)
    if common.VERB: print("period", kind, masked, "budget", bud)
    if kind != "PRO":
        for g, ops in sorted(pt.items()):
            if kind != "FIN": add(fill, g, ops)
            else: add(pre, 0, ops)
    if hasQK:
        for g, ops in pa.items(): add(fill, g, ops)
        for g, ops in pb.items(): add(fill, g, ops)
    if masked:
        add(fill, 28, "s_add_u32 s29, s29, s33"); add(fill, 28, "s_add_u32 s30, s30, s33")
    state = {"prev": None}
    def E(p):
        if kind in ("P1", "P2", "TR"):
            if "noexp" in EXP and p.startswith("v_exp"): return
            if "noadd" in EXP and p.startswith("v_add_f32"): return
            if "nocvt" in EXP and p.startswith("v_cvt"): return
            if "nods" in EXP and p.startswith("ds_read"): return
            if "nodma" in EXP and p.startswith("buffer_load_dwordx4"): return
            if "nobar" in EXP and p.startswith("s_barrier"): return
            if "nomfma" in EXP and p.startswith("v_mfma"): return
        ins = Ins(p)
        pv_ = state["prev"]
        if pv_ is not None and pv_.kind == "trans" and ins.kind == "valu" and set(pv_.wr) & set(ins.rd): a.e("s_nop 0")
        a.e(p); state["prev"] = ins
    for i, m in enumerate(M):
        for p in pre.get(i, []): E(p)
        present = (hasQK if i < 16 else hasPV)
        if present:
            if masked and i in (0, 8):
                S = SA if i == 0 else SB; rel = "s29" if i == 0 else "s30"; wv = "s20" if i == 0 else "s60"
                base = m.rsplit(",", 1)[0]
                l1, l2, lj = a.newlabel("K2T"), a.newlabel("K2N"), a.newlabel("K2J")
                a.e(f"s_cmp_lt_i32 {rel}, {wv}")
                a.raw(f"    s_cbranch_scc0 {l1}\n    {m}\n    s_branch {lj}\n{l1}:")
                a.raw(f"    s_cmp_eq_i32 {rel}, {wv}\n    s_cbranch_scc1 {l2}\n    {base}, v[{NEG}:{NEG+15}]\n    s_branch {lj}\n{l2}:")
                a.e(f"{base}, v[{TRI}:{TRI+15}]")
                a.label(lj)
                state["prev"] = None
            else:
                E(m)
        for p in fill.get(i, []): E(p)

def ctx_addr(a):
    a.e("v_and_b32 v12, 31, v1             ; q")
    a.e("v_lshrrev_b32 v13, 5, v1          ; hh")
    a.e("v_lshrrev_b32 v8, 4, v12")
    a.e("v_lshlrev_b32 v8, 17, v8          ; (q>>4)*131072")
    a.e("v_lshl_add_u32 v8, v13, 8, v8")
    a.e("v_and_b32 v9, 15, v12")
    a.e("v_lshl_add_u32 v8, v9, 4, v8")
    a.e("s_lshl_b32 s44, s38, 12           ; head*4*1024")

def tri_init(a, zero_reg):
    a.e("v_and_b32 v6, 31, v1")
    a.e("v_lshrrev_b32 v7, 5, v1")
    a.e("v_lshlrev_b32 v7, 2, v7")
    a.e("v_sub_u32 v6, v6, v7              ; q - 4h")
    a.e("v_mov_b32 v7, 0xf149f2ca          ; -1e30")
    for r in range(16):
        i, j = r >> 2, r & 3
        key = 16 * (i & 1) + 8 * (i >> 1) + j
        a.e(f"v_cmp_le_i32 vcc, {key}, v6")
        a.e("s_nop 1")
        a.e(f"v_cndmask_b32 v{TRI+r}, v7, v{zero_reg}, vcc")

def ctx_out(a, O, L, qt, combine=False, flagbit=None):
    if combine:
        a.e("s_waitcnt lgkmcnt(0)")
        a.e("s_barrier")
        for n in range(16):
            a.e(f"ds_read_b128 v[{32+4*n}:{32+4*n+3}], v6 offset:{n*1024}")
        a.e(f"ds_read_b32 v{LB}, v7 offset:16384")
    a.e(f"s_lshl_b32 s45, {qt}, 18       ; qtile*2*128*1024")
    a.e("s_add_u32 s45, s45, s44")
    a.e(f"v_add_f32 v{L}, v{L}, v{L+1}")
    if combine:
        a.e("s_waitcnt lgkmcnt(0)")
        a.e(f"v_add_f32 v{L}, v{L}, v{LB}")
    a.e(f"v_mov_b32 v10, v{L}")
    a.e("s_nop 1")
    a.e(f"v_permlane32_swap_b32 v{L}, v10")
    a.e("s_nop 1")
    a.e(f"v_add_f32 v{L}, v{L}, v10")
    if combine:
        for r in range(0, 64, 2): a.e(f"v_pk_add_f32 v[{O+r}:{O+r+1}], v[{O+r}:{O+r+1}], v[{32+r}:{32+r+1}]")
    skip = None
    if flagbit is not None:
        a.e(f"v_pk_add_f32 v[14:15], v[{O}:{O+1}], v[{O+2}:{O+3}]")
        for r in range(4, 64, 2): a.e(f"v_pk_add_f32 v[14:15], v[14:15], v[{O+r}:{O+r+1}]")
        a.e("v_add_f32 v14, v14, v15")
        a.e("s_mov_b32 s67, 0x21800000         ; 2^-60")
        a.e("s_mov_b32 s68, 0x5d800000         ; 2^60")
        a.e(f"v_cmp_nle_f32 s[70:71], s67, v{L}          ; !(2^-60 <= l)")
        a.e(f"v_cmp_nge_f32 s[72:73], s68, v{L}          ; !(2^60 >= l)")
        a.e("v_cmp_class_f32 vcc, v14, s69")
        a.e("s_nop 1")
        a.e("s_or_b64 s[70:71], s[70:71], s[72:73]")
        a.e("s_or_b64 s[70:71], s[70:71], vcc")
        skip = a.newlabel("K2_OK"); done = a.newlabel("K2_DONE")
        a.e("s_cmp_eq_u64 s[70:71], 0")
        a.e(f"s_cbranch_scc1 {skip}")
        a.e(f"s_or_b32 s66, s66, {flagbit}")
        a.e(f"s_branch {done}")
        a.label(skip)
    a.e(f"v_rcp_f32 v10, v{L}")
    a.e("s_nop 0")
    a.e("v_mov_b32 v11, v10")
    for T in range(4):
        for c in range(2):
            q = 16 + 4 * ((2 * T + c) % 4)
            for h, i in enumerate((c, c + 2)):
                b = O + 16 * T + 4 * i
                for j in (0, 2): a.e(f"v_pk_mul_f32 v[{b+j}:{b+j+1}], v[{b+j}:{b+j+1}], v[10:11]")
                a.e(f"v_cvt_pk_bf16_f32 v{q+2*h}, v{b}, v{b+1}")
                a.e(f"v_cvt_pk_bf16_f32 v{q+2*h+1}, v{b+2}, v{b+3}")
            a.e(f"buffer_store_dwordx4 v[{q}:{q+3}], v8, s[16:19], s45 offen offset:{T*1024 + c*512}{CSTFLAG}")
    if skip: a.label(done)

def slow_path(a):
    S, P, M_, Lr, SC, QS_ = 32, 64, 112, 114, 116, 192
    a.label("K2_SLOW")
    a.e("s_cmp_eq_u32 s66, 0")
    a.e("s_cbranch_scc1 " + ("K2_TO_K3" if FUSE3 else "K2_END"))
    a.e("s_waitcnt vmcnt(0)")
    a.e("s_bitcmp1_b32 s66, 0")
    a.e("s_cbranch_scc0 K2_SLOW_L")
    a.e("s_and_b32 s66, s66, 2")
    for r in range(32): a.e(f"v_accvgpr_mov_b32 a{QS_+r}, a{QS+r}")
    a.e("s_sub_u32 s24, s22, 4")
    a.e("s_mov_b32 s46, s41")
    a.e("s_branch K2_SLOW_GO")
    a.label("K2_SLOW_L")
    a.e("s_mov_b32 s66, 0")
    for r in range(32): a.e(f"v_accvgpr_mov_b32 a{QS_+r}, a{QL+r}")
    a.e("s_sub_u32 s24, s23, 4")
    a.e("s_mov_b32 s46, s40")
    a.label("K2_SLOW_GO")
    a.e("s_add_u32 s24, s24, s20")
    for r in range(64): a.e(f"v_mov_b32 v{OL+r}, 0")
    a.e(f"v_mov_b32 v{Lr}, 0")
    a.e(f"v_mov_b32 v{Lr+1}, 0")
    tri_init(a, Lr)
    a.e(f"v_mov_b32 v{M_}, 0xff800000")
    a.e("s_mov_b32 s25, 0                  ; tile")
    a.label("K2_SLOW_LOOP")
    a.e("s_lshl_b32 s26, s25, 13")
    a.e("s_add_u32 s27, s26, 0x1000")
    for k in range(8):
        a.e(f"buffer_load_dwordx4 {A4(KX+4*k)}, v{VLANE}, s[4:7], {'s26' if k < 4 else 's27'} offen offset:{(k & 3)*1024}")
    for k in range(8):
        a.e(f"buffer_load_dwordx4 {A4(VX+4*k)}, v{VLANE}, s[8:11], {'s26' if k < 4 else 's27'} offen offset:{(k & 3)*1024}")
    a.e("s_waitcnt vmcnt(0)")
    m = qk(S, QS_, KX)
    l1, lj = a.newlabel("K2_ST"), a.newlabel("K2_SJ")
    a.e("s_cmp_eq_u32 s25, s24")
    a.raw(f"    s_cbranch_scc1 {l1}\n    {m[0]}\n    s_branch {lj}\n{l1}:")
    a.e(m[0].rsplit(",", 1)[0] + f", v[{TRI}:{TRI+15}]")
    a.label(lj)
    for x in m[1:]: a.e(x)
    a.e("s_nop 15")
    a.e(f"v_max3_f32 v{SC}, v{S}, v{S+1}, v{M_}")
    for r in range(2, 16, 2): a.e(f"v_max3_f32 v{SC}, v{S+r}, v{S+r+1}, v{SC}")
    a.e(f"v_mov_b32 v10, v{SC}")
    a.e("s_nop 1")
    a.e(f"v_permlane32_swap_b32 v{SC}, v10")
    a.e("s_nop 1")
    a.e(f"v_max_f32 v{SC}, v{SC}, v10")
    a.e(f"v_sub_f32 v10, v{M_}, v{SC}")
    a.e(f"v_mov_b32 v{M_}, v{SC}")
    a.e("v_exp_f32 v10, v10")
    for r in range(16): a.e(f"v_sub_f32 v{S+r}, v{S+r}, v{M_}")
    for r in range(16): a.e(f"v_exp_f32 v{S+r}, v{S+r}")
    a.e(f"v_mul_f32 v{Lr}, v{Lr}, v10")
    for r in range(16): a.e(f"v_add_f32 v{Lr}, v{Lr}, v{S+r}")
    for k in range(8): a.e(f"v_cvt_pk_bf16_f32 v{P+k}, v{S+2*k}, v{S+2*k+1}")
    for r in range(64): a.e(f"v_mul_f32 v{OL+r}, v{OL+r}, v10")
    a.e("s_nop 1")
    for x in pv(P, VX, OL): a.e(x)
    a.e("s_nop 15")
    a.e("s_add_u32 s25, s25, 1")
    a.e("s_cmp_le_u32 s25, s24")
    a.e("s_cbranch_scc1 K2_SLOW_LOOP")
    ctx_out(a, OL, Lr, "s46")
    a.e("s_branch K2_SLOW")

def gen_k2(a, name="attn_kernel"):
    kernel_header(a, name)
    a.block("k2_pre")
    a.e("s_cmp_ge_u32 s2, 256")
    a.e("s_cbranch_scc1 K2_END")
    stamp(a, 0)
    a.e(f"s_load_dwordx2 s[36:37], s[0:1], {KA['ws']}")
    a.e(f"s_load_dwordx2 s[56:57], s[0:1], {KA['wo']}")
    a.e(f"s_load_dwordx2 s[58:59], s[0:1], {KA['wd']}")
    a.e("v_lshrrev_b32 v1, 6, v0")
    a.e("s_nop 0")
    a.e("v_readfirstlane_b32 s20, v1       ; wave")
    a.e("v_and_b32 v1, 63, v0              ; lane")
    code_touch(a, name, "K2_END", 1, 14, 15, "s20")
    a.e("s_and_b32 s38, s2, 7")
    a.e("s_lshr_b32 s39, s2, 3")
    a.e("s_and_b32 s21, s39, 7             ; i")
    a.e("s_lshr_b32 s39, s39, 3")
    a.e("s_lshl_b32 s38, s38, 2")
    a.e("s_add_u32 s38, s38, s39           ; head")
    a.e("s_lshl_b32 s22, s21, 2")
    a.e("s_add_u32 s22, s22, 4             ; n1 = 4(i+1)")
    a.e("s_lshl_b32 s23, s21, 2")
    a.e("s_sub_u32 s23, 64, s23            ; nL = 4(16-i)")
    a.e("s_lshl_b32 s39, s38, 19           ; head*512K")
    a.e(f"v_lshlrev_b32 v{VLANE}, 4, v1")
    a.e("s_waitcnt lgkmcnt(0)")
    for srdn, reg in ((4, KF), (8, VF), (12, QF)):
        a.e(f"s_add_u32 s40, s39, {reg}")
        a.e(f"s_add_u32 s{srdn}, s36, s40")
        a.e(f"s_addc_u32 s{srdn+1}, s37, 0")
        a.e(f"s_and_b32 s{srdn+1}, s{srdn+1}, 0xffff")
        if srdn == 12: a.e(f"s_mov_b32 s{srdn+2}, 0x80000")
        else: a.e(f"s_lshl_b32 s{srdn+2}, s23, 13")
        a.e(f"s_mov_b32 s{srdn+3}, 0x20000")
    a.e(f"s_add_u32 s16, s36, {CF}")
    a.e("s_addc_u32 s17, s37, 0")
    a.e("s_and_b32 s17, s17, 0xffff")
    a.e("s_mov_b32 s18, 0x1000000")
    a.e("s_mov_b32 s19, 0x20000")
    srd(a, "s56", "s57", 0x400000, 48)
    srd(a, "s58", "s59", 1376 * 1024, 52)
    a.e("s_lshl_b32 s46, s2, 2")
    a.e("s_add_u32 s46, s46, s20")
    a.e("s_lshl_b32 s47, s46, 12")
    a.e("v_lshl_add_u32 v10, v1, 6, s47")
    a.e("v_and_b32 v11, 31, v1")
    a.e("s_lshl_b32 s47, s46, 11")
    a.e("v_lshl_add_u32 v11, v11, 6, s47")
    a.e("s_sub_u32 s40, 15, s21")
    a.e("s_lshl_b32 s40, s40, 2")
    a.e("s_add_u32 s40, s40, s20           ; qtile L")
    a.e("s_lshl_b32 s41, s21, 2")
    a.e("s_add_u32 s41, s41, s20           ; qtile S")
    a.e("s_lshl_b32 s42, s40, 13")
    a.e("s_lshl_b32 s43, s41, 13")
    a.e("s_add_u32 s44, s42, 0x1000")
    a.e("s_add_u32 s45, s43, 0x1000")
    a.e("s_xor_b32 s61, s40, 1")
    a.e("s_lshl_b32 s62, s61, 13")
    a.e("s_add_u32 s63, s62, 0x1000")
    a.e("s_lshl_b32 s27, s20, 11           ; K m0 base = w*2048")
    a.e("s_or_b32 s28, s27, 0x10000        ; V m0 base")
    a.e("s_mov_b32 s25, s27")
    a.e("s_mov_b32 s26, s27")
    a.e("s_mov_b32 s31, 0xffff")
    a.e("s_mov_b32 s34, 0x2000")
    a.e("s_mov_b32 s35, 0x2000")
    a.e("s_mov_b32 s60, s20")
    a.e("s_and_b32 s64, s20, 1")
    a.e("s_lshl_b32 s64, s64, 13           ; parity * 8192")
    def qload(base, lo, hi):
        for s_ in range(8):
            a.e(f"buffer_load_dwordx4 {A4(base+4*s_)}, v{VLANE}, s[12:15], {lo if s_ < 4 else hi} offen offset:{(s_ & 3)*1024}")
    def tile(kind):
        for o in dma(kind): a.e(o)
    tile("K"); qload(QL, "s42", "s44"); qload(QS, "s43", "s45")
    a.e(f"v_mov_b32 v{VK}, v{VLANE}")
    a.e(f"v_or_b32 v{VV}, 0x10000, v{VLANE}")
    for r in range(OL, OL + 128): a.e(f"v_mov_b32 v{r}, 0")
    for r in range(LL, LL + 6): a.e(f"v_mov_b32 v{r}, 0")
    for T in range(4):
        for r in range(16): a.e(f"v_accvgpr_write_b32 a{OB[T]+r}, 0")
    tri_init(a, LL)
    for r in range(16): a.e(f"v_mov_b32 v{NEG+r}, v7")
    a.e("s_mov_b32 s66, 0")
    a.e("s_mov_b32 s69, 0x207")
    a.e("s_sub_u32 s29, 4, s23")
    a.e("s_sub_u32 s30, 4, s22")
    a.e("s_mov_b32 s33, 1")
    a.e("s_waitcnt vmcnt(8)")
    a.e("s_barrier")
    for o in kread(KX): a.e(o)
    for o in KADV: a.e(o)
    a.e("s_waitcnt lgkmcnt(0)")
    stamp(a, 1)
    stamp(a, 4, True)
    a.block("k2_PRO"); period(a, "PRO", True)
    a.block("k2_c1")
    stamp(a, 6)
    a.e("s_sub_u32 s24, s22, 5")
    a.e("s_cmp_gt_i32 s24, 0")
    a.e("s_cbranch_scc0 K2_P1M_PRE")
    a.e("s_add_u32 s29, s29, s24")
    a.e("s_add_u32 s30, s30, s24")
    a.raw(".p2align 6")
    a.label("K2_P1U")
    a.block("k2_P1U"); period(a, "P1", False)
    a.e("s_sub_u32 s24, s24, 1")
    a.e("s_cmp_lg_u32 s24, 0")
    a.e("s_cbranch_scc1 K2_P1U")
    a.block("k2_c2")
    a.label("K2_P1M_PRE")
    a.e("s_sub_u32 s24, s22, 1")
    a.e("s_min_u32 s24, s24, 4")
    a.raw(".p2align 6")
    a.label("K2_P1M")
    a.block("k2_P1M")
    a.e("s_add_u32 s65, s64, 0x2000")
    a.e("s_cmp_eq_u32 s24, 2")
    a.e("s_cselect_b32 s35, s65, 0x2000")
    a.e("s_cmp_eq_u32 s24, 1")
    a.e("s_cselect_b32 s35, 0x4000, s35")
    period(a, "P1", True)
    a.e("s_sub_u32 s24, s24, 1")
    a.e("s_cmp_lg_u32 s24, 0")
    a.e("s_cbranch_scc1 K2_P1M")
    a.block("k2_c3")
    stamp(a, 7)
    a.e("s_and_b32 s65, s20, 1")
    a.e("s_add_u32 s29, s29, s65")
    a.e("s_mov_b32 s30, s29")
    a.e("s_xor_b32 s60, s20, 1")
    a.e("s_mov_b32 s33, 2")
    a.e("s_add_u32 s34, s64, 0x2000")
    a.block("k2_TR"); period(a, "TR", True)
    a.block("k2_c4")
    a.e("s_mov_b32 s34, 0x4000")
    ctx_addr(a)
    ctx_out(a, OS, LS, "s41", flagbit=1)
    stamp(a, 8)
    a.e("s_sub_u32 s24, s23, s22")
    a.e("s_lshr_b32 s24, s24, 1")
    a.e("s_sub_u32 s24, s24, 3")
    a.e("s_cmp_gt_i32 s24, 0")
    a.e("s_cbranch_scc0 K2_P2M_PRE")
    a.e("s_lshl_b32 s65, s24, 1")
    a.e("s_add_u32 s29, s29, s65")
    a.e("s_add_u32 s30, s30, s65")
    a.raw(".p2align 6")
    a.label("K2_P2U")
    a.block("k2_P2U"); period(a, "P2", False)
    a.e("s_sub_u32 s24, s24, 1")
    a.e("s_cmp_lg_u32 s24, 0")
    a.e("s_cbranch_scc1 K2_P2U")
    a.block("k2_c5")
    a.label("K2_P2M_PRE")
    a.e("s_sub_u32 s24, s23, s22")
    a.e("s_lshr_b32 s24, s24, 1")
    a.e("s_sub_u32 s24, s24, 1")
    a.e("s_min_u32 s24, s24, 2")
    a.raw(".p2align 6")
    a.label("K2_P2M")
    a.block("k2_P2M"); period(a, "P2", True)
    a.e("s_sub_u32 s24, s24, 1")
    a.e("s_cmp_lg_u32 s24, 0")
    a.e("s_cbranch_scc1 K2_P2M")
    a.block("k2_FIN"); period(a, "FIN", False)
    a.block("k2_epi")
    stamp(a, 2)
    stamp(a, 5, True)
    a.e("s_barrier")
    a.e(f"s_mul_i32 s65, s20, 16640")
    a.e(f"v_add_u32 v6, s65, v{VLANE}")
    a.e(f"v_add_f32 v{LB}, v{LB}, v{LB+1}")
    a.e("v_lshlrev_b32 v7, 2, v1")
    a.e("v_add_u32 v7, s65, v7")
    a.e("s_nop 5")
    for T in range(4):
        for k in range(4):
            a.e(f"ds_write_b128 v6, a[{OB[T]+4*k}:{OB[T]+4*k+3}] offset:{(4*T+k)*1024}")
    a.e(f"ds_write_b32 v7, v{LB} offset:16384")
    a.e("s_xor_b32 s65, s20, 1")
    a.e(f"s_mul_i32 s65, s65, 16640")
    a.e(f"v_add_u32 v6, s65, v{VLANE}")
    a.e("v_lshlrev_b32 v7, 2, v1")
    a.e("v_add_u32 v7, s65, v7")
    ctx_out(a, OL, LL, "s40", combine=True, flagbit=2)
    if common.DIAG:
        a.e("s_waitcnt vmcnt(0)")
        stamp(a, 3)
        stamp_flush(a, 2, 9)
    a.block("k2_slow")
    slow_path(a)
    if FUSE3:
        a.cur = None
        a.label("K2_TO_K3")
        a.e("s_lshr_b32 s92, s38, 3")
        a.e("s_lshl_b32 s90, s21, 2")
        a.e("s_add_u32 s90, s90, s92")
        a.e("s_lshl_b32 s90, s90, 7")
        a.e("s_sub_u32 s91, 15, s21")
        a.e("s_lshl_b32 s91, s91, 2")
        a.e("s_add_u32 s91, s91, s92")
        a.e("s_lshl_b32 s91, s91, 7")
        a.e("s_barrier")
        import k3s
        k3s.gen_k3(a, fused=True)
    a.cur = None
    a.label("K2_END")
    a.e("s_endpgm")
    return kernel_desc(name, 512, 102, 256)

def check_k2(a):
    B = a.blocks
    tr = B["k2_pre"] + B["k2_PRO"] + B["k2_c1"] + B["k2_P1U"] * 2 + B["k2_c2"] + B["k2_P1M"] * 2 + B["k2_c3"] + B["k2_TR"] + B["k2_c4"] + B["k2_P2U"] * 2 + B["k2_c5"] + B["k2_P2M"] * 2 + B["k2_FIN"] + B["k2_epi"]
    p = check_trace(tr, "k2a")
    tr = B["k2_pre"] + B["k2_PRO"] + B["k2_c1"] + B["k2_c2"] + B["k2_P1M"] * 3 + B["k2_c3"] + B["k2_TR"] + B["k2_c4"] + B["k2_c5"] + B["k2_P2M"] + B["k2_FIN"] + B["k2_epi"]
    if FUSE3: p += check_trace(B["k3"], "k3f")
    return p + check_trace(tr, "k2b") + check_trace(B["k2_epi"] + B["k2_slow"] + B["k2_slow"], "k2s")
```

```python
from common import *
import common, os
NS, PD, NST = 43, int(os.environ.get("K3PD", "7")), 8
ACC = 160
FB = [64, 96]
XR = 24
FLAGS = 0x7000000
SLAB = QF if os.environ.get('K3SLAB', 'n') == 'q' else 0x7100000
OSTFLAG = ""
DEPS = FLAGS + 8192
def gen_k3(a, name="outp_kernel", fused=False):
    if not fused:
        kernel_header(a, name)
        a.block("k3")
        a.e("s_cmp_ge_u32 s2, 256")
        a.e("s_cbranch_scc1 K3_END")
        stamp(a, 0)
    else:
        a.block("k3")
        a.label("K3F")
        stamp(a, 0)
    a.e(f"s_load_dwordx2 s[36:37], s[0:1], {KA['ws']}")
    a.e(f"s_load_dwordx2 s[42:43], s[0:1], {KA['x']}")
    a.e(f"s_load_dwordx2 s[44:45], s[0:1], {KA['out']}")
    a.e("v_lshrrev_b32 v1, 6, v0")
    a.e("s_nop 0")
    a.e("v_readfirstlane_b32 s20, v1       ; wave")
    a.e("v_and_b32 v1, 63, v0              ; lane")
    if os.environ.get('K3MAP', 'B') == 'B':
        a.e("s_and_b32 s46, s2, 7")
        a.e("s_lshr_b32 s47, s2, 3             ; j")
        a.e("s_and_b32 s23, s46, 3             ; split s")
        a.e("s_and_b32 s21, s47, 3             ; N128")
        a.e("s_lshr_b32 s47, s47, 2")
        a.e("s_lshr_b32 s46, s46, 2")
        a.e("s_lshl_b32 s46, s46, 3")
        a.e("s_add_u32 s22, s46, s47           ; M128")
    else:
        a.e("s_and_b32 s46, s2, 7              ; x")
        a.e("s_lshr_b32 s47, s2, 3             ; j")
        a.e("s_and_b32 s23, s47, 3             ; split s")
        a.e("s_lshr_b32 s21, s47, 2")
        a.e("s_and_b32 s21, s21, 3             ; N128")
        a.e("s_lshr_b32 s47, s47, 4")
        a.e("s_lshl_b32 s46, s46, 1")
        a.e("s_add_u32 s22, s46, s47           ; M128")
    a.e("s_lshr_b32 s30, s20, 1            ; r")
    a.e("s_and_b32 s31, s20, 1             ; c")
    a.e("v_lshlrev_b32 v2, 4, v1           ; lane*16")
    a.e("v_add_u32 v8, 131072, v2")
    a.e("v_add_u32 v9, 44032, v2")
    a.e("s_lshl_b32 s46, s30, 12")
    a.e("v_add_u32 v10, s46, v2")
    a.e("v_add_u32 v11, 0x10000, v10")
    a.e("s_lshl_b32 s46, s31, 12")
    a.e("s_add_u32 s46, s46, 8192")
    a.e("v_add_u32 v12, s46, v2")
    a.e("v_add_u32 v13, 0x10000, v12")
    a.e("s_lshl_b32 s29, s20, 11")
    a.e("s_waitcnt lgkmcnt(0)")
    a.e(f"s_add_u32 s4, s36, {CF}"); a.e("s_addc_u32 s5, s37, 0"); a.e("s_and_b32 s5, s5, 0xffff"); a.e("s_mov_b32 s6, 0x1000000"); a.e("s_mov_b32 s7, 0x20000")
    a.e(f"s_add_u32 s8, s36, {HF}"); a.e("s_addc_u32 s9, s37, 0"); a.e("s_and_b32 s9, s9, 0xffff"); a.e(f"s_mov_b32 s10, {128*43*1024}"); a.e("s_mov_b32 s11, 0x20000")
    a.e("s_lshl_b32 s58, s21, 1")
    a.e("s_add_u32 s58, s58, s30")
    a.e(f"s_mul_i32 s58, s58, {172*4096}")
    a.e(f"s_add_u32 s58, s58, {WF}")
    a.e("s_add_u32 s12, s36, s58"); a.e("s_addc_u32 s13, s37, 0"); a.e("s_and_b32 s13, s13, 0xffff"); a.e(f"s_mov_b32 s14, {171*4096}"); a.e("s_mov_b32 s15, 0x20000")
    srd(a, "s42", "s43", 0x200000, 48)
    srd(a, "s44", "s45", 0x200000, 52)
    a.e(f"s_add_u32 s64, s36, {SLAB}"); a.e("s_addc_u32 s65, s37, 0"); a.e("s_and_b32 s65, s65, 0xffff"); a.e("s_mov_b32 s66, 0x1000000"); a.e("s_mov_b32 s67, 0x20000")
    a.e("s_lshl_b32 s58, s22, 3")
    a.e("s_lshl_b32 s59, s20, 1")
    a.e("s_add_u32 s58, s58, s59")
    a.e("s_lshl_b32 s24, s58, 17")
    a.e("s_lshl_b32 s59, s23, 15")
    a.e("s_add_u32 s24, s24, s59")
    a.e("s_mul_i32 s25, s58, 44032")
    a.e(f"s_mul_i32 s59, s23, {11*1024}")
    a.e("s_add_u32 s25, s25, s59")
    a.e("s_lshl_b32 s59, s31, 11")
    a.e("s_lshl_b32 s26, s23, 17")
    a.e("s_add_u32 s26, s26, s59")
    a.e(f"s_mul_i32 s27, s23, {11*4096}")
    a.e(f"s_add_u32 s27, s27, {128*4096}")
    a.e("s_add_u32 s27, s27, s59")
    a.e("v_and_b32 v3, 15, v1")
    a.e("v_lshlrev_b32 v21, 10, v3")
    a.e("v_lshrrev_b32 v3, 4, v1")
    a.e("v_lshl_add_u32 v21, v3, 3, v21    ; t*1024 + g*8")
    a.e("s_lshl_b32 s56, s22, 7")
    a.e("s_lshl_b32 s57, s23, 5")
    a.e("s_add_u32 s56, s56, s57")
    a.e("s_lshl_b32 s57, s31, 4")
    a.e("s_add_u32 s56, s56, s57           ; row0 = 128M + 32s + 16*(w&1)")
    a.e("s_lshl_b32 s56, s56, 10")
    a.e("s_lshl_b32 s57, s21, 8")
    a.e("s_add_u32 s56, s56, s57")
    a.e("s_lshl_b32 s57, s30, 7")
    a.e("s_add_u32 s56, s56, s57           ; + (128N + 64*(w>>1))*2")
    queue = []
    def dmas(u):
        isA = (u >= 11) if fused else (u < 32)
        sX = "s24" if isA else "s25"; sW = "s26" if isA else "s27"
        srdX = "s[4:7]" if isA else "s[8:11]"; v1_ = "v8" if isA else "v9"
        st = (u % NST) * 16384
        xf = " sc1" if (fused and isA) else ""
        return [[f"s_add_u32 m0, s29, {st}", "s_nop 0", f"buffer_load_dwordx4 v2, {srdX}, {sX} offen{xf} lds"],
                ["s_add_u32 m0, m0, 1024", "s_nop 0", f"buffer_load_dwordx4 {v1_}, {srdX}, {sX} offen{xf} lds"],
                [f"s_add_u32 m0, s29, {st + 8192}", f"s_add_u32 {sX}, {sX}, 1024", f"buffer_load_dwordx4 v2, s[12:15], {sW} offen lds"],
                [f"buffer_load_dwordx4 v2, s[12:15], {sW} offen offset:1024 lds", f"s_add_u32 {sW}, {sW}, 4096"]]
    def reads(u):
        st = u % NST; hi = st >= 4; off = (st & 3) * 16384; b = FB[u & 1]
        return [f"ds_read_b128 v[{b+4*k}:{b+4*k+3}], {'v11' if hi else 'v10'} offset:{off + k*1024}" for k in range(4)] + \
               [f"ds_read_b128 v[{b+16+4*k}:{b+16+4*k+3}], {'v13' if hi else 'v12'} offset:{off + k*1024}" for k in range(4)]
    def wait_for(u):
        nonlocal queue
        last = max(i for i, q in enumerate(queue) if q == u)
        n = len(queue) - 1 - last
        queue = queue[last + 1:]
        return f"s_waitcnt vmcnt({n})"
    for u in range(PD):
        for bnd in dmas(u):
            for o in bnd: a.e(o)
        queue += [u] * 4
    if fused:
        a.e(f"s_waitcnt vmcnt({4*PD})")
        a.e("s_barrier")
        a.e(f"s_add_u32 s68, s36, {DEPS}"); a.e("s_addc_u32 s69, s37, 0")
        a.e("s_cmp_lg_u32 s20, 0"); a.e("s_cbranch_scc1 K3_SIGD")
        a.e("v_mov_b32 v40, s90"); a.e("v_mov_b32 v43, s91"); a.e("v_mov_b32 v41, 1")
        a.e("s_mov_b64 exec, 1")
        a.e("global_atomic_add v40, v41, s[68:69] sc1")
        a.e("global_atomic_add v43, v41, s[68:69] sc1")
        a.e("s_mov_b64 exec, -1")
        a.label("K3_SIGD")
    a.e(wait_for(0)); a.e("s_barrier")
    stamp(a, 1)
    for o in reads(0): a.e(o)
    for u in range(NS):
        fill = {}
        if u + 1 < NS: a.e(wait_for(u + 1))
        a.e("s_waitcnt lgkmcnt(0)")
        if fused and u + PD == 11:
            a.e("s_cmp_lg_u32 s20, 0"); a.e("s_cbranch_scc1 K3_DW")
            a.e("s_lshl_b32 s61, s22, 2"); a.e("s_add_u32 s61, s61, s23"); a.e("s_lshl_b32 s61, s61, 7")
            a.e("v_mov_b32 v40, s61")
            a.e("s_mov_b32 s70, 0x80000")
            a.e("s_mov_b64 exec, 1")
            a.label("K3_DL")
            a.e("global_load_dword v42, v40, s[68:69] sc1")
            a.e("s_sub_u32 s70, s70, 1")
            a.e("s_cbranch_scc1 K3_DX")
            a.e("s_waitcnt vmcnt(0)")
            a.e("v_cmp_gt_u32 vcc, 8, v42")
            a.e("s_nop 4")
            a.e("s_cbranch_vccnz K3_DL")
            a.label("K3_DX")
            a.e("s_waitcnt vmcnt(0)")
            a.e("s_mov_b64 exec, -1")
            a.label("K3_DW")
        if not os.environ.get("K3NOBAR"): a.e("s_barrier")
        if u + 1 < NS and not os.environ.get("K3NORD"):
            for n, o in enumerate(reads(u + 1)): fill.setdefault(n, []).append(o)
        if u + PD < NS:
            for n, bnd in enumerate(dmas(u + PD)): fill.setdefault(8 + 2 * n, []).extend(bnd)
            queue += [u + PD] * 4
        if u == 24:
            fill.setdefault(15, []).extend([f"buffer_load_dwordx2 v[{XR+2*mt}:{XR+2*mt+1}], v21, s[48:51], s56 offen offset:{mt*32}" for mt in range(4)])
        b = FB[u & 1]; n = 0
        for tt in range(4):
            for mt in range(4):
                d = ACC + 4 * (4 * mt + tt)
                cin = "0" if u == 0 else f"v[{d}:{d+3}]"
                a.e(f"v_mfma_f32_16x16x32_bf16 v[{d}:{d+3}], v[{b+16+4*mt}:{b+16+4*mt+3}], v[{b+4*tt}:{b+4*tt+3}], {cin}")
                for o in fill.get(n, []): a.e(o)
                n += 1
    stamp(a, 2)
    a.e("s_barrier")
    a.e("s_lshl_b32 s60, s22, 2")
    a.e("s_add_u32 s60, s60, s21           ; T")
    a.e("s_lshl_b32 s46, s31, 13           ; c*8192")
    a.e("v_add_u32 v14, s46, v2")
    a.e("s_lshl_b32 s47, s31, 12           ; c*4096")
    for oo in range(2):
        lo, lj = a.newlabel("K3_OWN"), a.newlabel("K3_PUB")
        a.e("s_lshl_b32 s61, s30, 1")
        if oo: a.e("s_add_u32 s61, s61, 1")
        a.e("s_lshl_b32 s62, s60, 2")
        a.e("s_add_u32 s62, s62, s61")
        a.e("s_lshl_b32 s62, s62, 2")
        a.e("s_add_u32 s62, s62, s23")
        a.e("s_lshl_b32 s62, s62, 13")
        a.e("s_add_u32 s62, s62, s47")
        a.e("s_cmp_eq_u32 s61, s23")
        a.e(f"s_cbranch_scc1 {lo}")
        for t2 in range(2):
            for mp in range(2):
                q = 32 + 4 * (2 * t2 + mp)
                for h in range(2):
                    d = ACC + 4 * (4 * (2 * mp + h) + 2 * oo + t2)
                    a.e(f"v_cvt_pk_bf16_f32 v{q+2*h}, v{d}, v{d+1}")
                    a.e(f"v_cvt_pk_bf16_f32 v{q+2*h+1}, v{d+2}, v{d+3}")
                a.e(f"buffer_store_dwordx4 v[{q}:{q+3}], v2, s[64:67], s62 offen offset:{(2*t2+mp)*1024} sc1")
        a.raw(f"    s_branch {lj}\n{lo}:")
        for t2 in range(2):
            for mt in range(4):
                d = ACC + 4 * (4 * mt + 2 * oo + t2)
                a.e(f"ds_write_b128 v14, v[{d}:{d+3}] offset:{(t2*4+mt)*1024}")
        a.label(lj)
        a.e("s_nop 1")
    a.e("s_waitcnt vmcnt(0) lgkmcnt(0)")
    stamp(a, 6)
    a.e("s_barrier")
    a.e("s_lshl_b32 s63, s60, 7")
    a.e("v_mov_b32 v40, s63"); a.e("v_mov_b32 v41, 1")
    a.e(f"s_add_u32 s68, s36, {FLAGS}"); a.e("s_addc_u32 s69, s37, 0")
    a.e("s_cmp_lg_u32 s20, 0"); a.e("s_cbranch_scc1 K3_PW")
    a.e("s_mov_b64 exec, 1")
    a.e("global_atomic_add v40, v41, s[68:69] sc1")
    a.e("s_mov_b32 s70, 0x80000")
    a.label("K3_PL")
    a.e("global_load_dword v42, v40, s[68:69] sc1")
    a.e("s_sub_u32 s70, s70, 1")
    a.e("s_cbranch_scc1 K3_PX")
    a.e("s_waitcnt vmcnt(0)")
    a.e("v_cmp_gt_u32 vcc, 4, v42")
    a.e("s_nop 4")
    a.e("s_cbranch_vccnz K3_PL")
    a.label("K3_PX")
    a.e("s_waitcnt vmcnt(0)")
    a.e("s_mov_b64 exec, -1")
    a.label("K3_PW")
    a.e("s_barrier")
    stamp(a, 7)
    a.e("s_lshl_b32 s46, s20, 12")
    a.e("v_add_u32 v14, s46, v2")
    for mt in range(4): a.e(f"ds_read_b128 v[{64+4*mt}:{64+4*mt+3}], v14 offset:{mt*1024}")
    a.e("s_lshl_b32 s47, s20, 11           ; (c'*2+tt'')*2048")
    for k in range(1, 4):
        a.e(f"s_add_u32 s61, s23, {k}")
        a.e("s_and_b32 s61, s61, 3")
        a.e("s_lshl_b32 s62, s60, 2")
        a.e("s_add_u32 s62, s62, s23")
        a.e("s_lshl_b32 s62, s62, 2")
        a.e("s_add_u32 s62, s62, s61")
        a.e("s_lshl_b32 s62, s62, 13")
        a.e("s_add_u32 s62, s62, s47")
        for mp in range(2):
            a.e(f"buffer_load_dwordx4 v[{96+8*(k-1)+4*mp}:{96+8*(k-1)+4*mp+3}], v2, s[64:67], s62 offen offset:{mp*1024} sc1")
    for k in range(8):
        a.e(f"v_lshlrev_b32 v{128+2*k}, 16, v{XR+k}")
        a.e(f"v_and_b32 v{128+2*k+1}, 0xffff0000, v{XR+k}")
    a.e("s_waitcnt lgkmcnt(0)")
    for k in range(16): a.e(f"v_add_f32 v{64+k}, v{64+k}, v{128+k}")
    a.e("s_waitcnt vmcnt(0)")
    stamp(a, 8)
    for src in range(3):
        for k in range(8):
            r = 96 + 8 * src + k
            a.e(f"v_lshlrev_b32 v128, 16, v{r}")
            a.e(f"v_and_b32 v129, 0xffff0000, v{r}")
            a.e(f"v_add_f32 v{64+2*k}, v{64+2*k}, v128")
            a.e(f"v_add_f32 v{64+2*k+1}, v{64+2*k+1}, v129")
    for k in range(8): a.e(f"v_cvt_pk_bf16_f32 v{144+k}, v{64+2*k}, v{64+2*k+1}")
    for mt in range(4):
        a.e(f"buffer_store_dwordx2 v[{144+2*mt}:{144+2*mt+1}], v21, s[52:55], s56 offen offset:{mt*32}{OSTFLAG}")
    if common.DIAG:
        a.e("s_waitcnt vmcnt(0)")
        stamp(a, 3)
        stamp_flush(a, 3, 9)
    a.e("s_endpgm")
    a.cur = None
    if fused: return None
    a.label("K3_END")
    a.e("s_endpgm")
    return kernel_desc(name, 256, 102, 256)

def check_k3(a):
    return check_trace(a.blocks["k3"], "k3")
```

```python
from common import *
import common, os
EXP = os.environ.get('K2EXP', '')
QL, QS, KX, VX, QP = 0, 32, 64, 128, 192
OB = [96, 112, 160, 176]
SA, SB, PA, PB, TRI, NEG = 32, 48, 64, 72, 80, 96
LL, LS, LB = 112, 114, 116
OL, OS = 128, 192
VK, VV, VLANE, VT = 2, 3, 4, 5
CSTFLAG = ""
FUSE3 = os.environ.get("FUSE3", "1") == "1"
PRO_W0 = 30
PRO_W8 = 32
PREFETCH = False

def mf(d, a_, b_, c): return f"v_mfma_f32_32x32x16_bf16 v[{d}:{d+15}], {a_}, {b_}, {c}"
def A4(b): return f"a[{b}:{b+3}]"
def V4(b): return f"v[{b}:{b+3}]"

def qk(S, Q, K):
    return [mf(S, A4(K + 4*s), A4(Q + 4*s), "0" if s == 0 else f"v[{S}:{S+15}]") for s in range(8)]
def pv(P, V, O):
    if O == "B":
        return [f"v_mfma_f32_32x32x16_bf16 a[{OB[T]}:{OB[T]+15}], {A4(V + 4*(2*T + ks))}, {V4(P + 4*ks)}, a[{OB[T]}:{OB[T]+15}]" for ks in range(2) for T in range(4)]
    return [mf(O + 16*T, A4(V + 4*(2*T + ks)), V4(P + 4*ks), f"v[{O+16*T}:{O+16*T+15}]") for ks in range(2) for T in range(4)]

def sm_ops(S, P, L):
    ops = []
    for r in range(16):
        ops.append(dict(t=f"v_exp_f32 v{S+r}, v{S+r}", c=8, k="e", r=r, deps=[]))
    for r in range(16):
        ops.append(dict(t=f"v_add_f32 v{L+(r&1)}, v{L+(r&1)}, v{S+r}", c=4, k="a", r=r, deps=[r] + ([16 + r - 2] if r >= 2 else [])))
    for k in range(8):
        ops.append(dict(t=f"v_cvt_pk_bf16_f32 v{P+k}, v{S+2*k}, v{S+2*k+1}", c=4, k="c0" if k < 4 else "c1", r=k, deps=[2*k, 2*k+1]))
    return ops

def try_place(ops, start, end, c0_min, c1_min, used, b):
    used = dict(used); out = {}; pos = {}
    seq = 0
    for g in range(start, end + 1):
        room = (b(g) if callable(b) else b) - used.get(g % 32, 0)
        last_e = None
        while True:
            best = None
            for n, o in enumerate(ops):
                if n in pos: continue
                if o["k"] == "c0" and g < c0_min: continue
                if o["k"] == "c1" and g < c1_min: continue
                if any(d not in pos for d in o["deps"]): continue
                if last_e is not None and last_e in o["deps"]: continue
                if o["c"] > room: continue
                pr = {"c0": 0, "c1": 0, "a": 1, "e": 2}[o["k"]]
                key = (pr, o["r"])
                if best is None or key < best[0]: best = (key, n)
            if best is None: break
            n = best[1]; o = ops[n]
            pos[n] = g; out.setdefault(g, []).append(o["t"]); room -= o["c"]; used[g % 32] = used.get(g % 32, 0) + o["c"]
            last_e = n if o["k"] == "e" else None
    return (out, used) if len(pos) == len(ops) else None

HEAD = lambda o: (o["k"] == "e" and o["r"] < 10) or (o["k"] == "a" and o["r"] < 8) or o["k"] == "c0"
def subset(ops, keep):
    idx = [n for n, o in enumerate(ops) if keep(o)]
    m = {n: i for i, n in enumerate(idx)}
    return [dict(o, deps=[m[d] for d in o["deps"] if d in m]) for n, o in enumerate(ops) if n in m]
def place3(A, Bh, Bt, used):
    res = []
    u = dict(used)
    for b in range(8, 41):
        rt = try_place(subset(Bt, lambda o: not HEAD(o)), 0, 7, 0, 0, u, b)
        if rt is not None: break
    u = rt[1]; bt = b
    cands = []
    for base in (12, 16, 20, 24, 28, 32):
        cands.append((base, 0))
        for m in (6, 4, 3, 2): cands.append((base, m))
    for base, m in cands:
        b = (lambda g, base=base, m=m: base + (4 if m and g % m == 0 else 0))
        ra = try_place(A, 10, 31, 19, 23, u, b)
        if ra is None: continue
        rb = try_place(subset(Bh, HEAD), 18, 31, 27, 32, ra[1], b)
        if rb is None: continue
        return ra[0], rb[0], rt[0], (bt, base, m)
    raise AssertionError("no placement")

def kread(buf): return [f"ds_read_b128 {A4(buf+4*s)}, v{VK} offset:{s*1024}" for s in range(8)]
def vread(buf): return [f"ds_read_b128 {A4(buf+4*(2*T+ks))}, v{VV} offset:{(2*T+ks)*1024}" for ks in range(2) for T in range(4)]
KADV = [f"v_add_u32 v{VK}, s35, v{VK}", f"v_and_b32 v{VK}, 0xffff, v{VK}"]
VADV = [f"v_add_u32 v{VT}, s34, v{VV}", f"v_bfi_b32 v{VV}, s31, v{VT}, v{VV}"]
def dma(kind):
    if kind == "K":
        return ["s_mov_b32 m0, s27", "s_add_u32 s27, s27, 0x2000",
                f"buffer_load_dwordx4 v{VLANE}, s[4:7], s25 offen lds", f"buffer_load_dwordx4 v{VLANE}, s[4:7], s25 offen offset:1024 lds",
                "s_and_b32 s27, s27, 0xffff", "s_add_u32 s25, s25, 0x2000"]
    return ["s_mov_b32 m0, s28", "s_add_u32 s28, s28, 0x2000",
            f"buffer_load_dwordx4 v{VLANE}, s[8:11], s26 offen lds", f"buffer_load_dwordx4 v{VLANE}, s[8:11], s26 offen offset:1024 lds",
            "s_and_b32 s28, s28, 0xffff", "s_or_b32 s28, s28, 0x10000", "s_add_u32 s26, s26, 0x2000"]

def period(a, kind, masked):
    hasQK = kind != "FIN"; hasPV = kind != "PRO"
    if kind in ("PRO", "P1"):
        M = qk(SA, QL, KX) + qk(SB, QS, KX) + pv(PA, VX, OL) + pv(PB, VX, OS); lA, lBh, lBt = LL, LS, LS
    elif kind == "TR":
        M = qk(SA, QL, KX) + qk(SB, QP, KX) + pv(PA, VX, OL) + pv(PB, VX, OS); lA, lBh, lBt = LL, LB, LS
    else:
        M = qk(SA, QL, KX) + qk(SB, QP, KX) + pv(PA, VX, OL) + pv(PB, VX, "B"); lA, lBh, lBt = LL, LB, LB
    if kind == "FIN": M = M[:16] + M[24:32] + M[16:24]
    fill, pre = {}, {}
    def add(d, g, ops):
        d.setdefault(g, []).extend(ops if isinstance(ops, list) else [ops])
    nread = {}
    def reads(lst, gaps, adv):
        for n, op in enumerate(lst):
            g = gaps[n * len(gaps) // len(lst)]
            add(fill, g, op); nread[g] = nread.get(g, 0) + 1
        add(fill, gaps[-1], adv[0]); add(fill, gaps[-1] + 1 if gaps[-1] < 31 else 31, adv[1])
    if kind == "PRO":
        for n, kk in enumerate("KKKVKVKVKVKV"): add(fill, n, dma(kk))
        for s_ in range(8):
            add(fill, 12 + s_ // 2, f"buffer_load_dwordx4 {A4(QP+4*s_)}, v{VLANE}, s[12:15], {'s62' if s_ < 4 else 's63'} offen offset:{(s_ & 3)*1024}")
        add(pre, 8, "s_waitcnt vmcnt(16)")
        add(pre, 16, "s_waitcnt vmcnt(30)"); add(pre, 16, "s_barrier")
        reads(kread(KX), list(range(16, 24)), KADV)
    elif kind in ("P1", "TR", "P2"):
        vm = {"P1": 20, "TR": 16, "P2": 14}[kind]
        if kind == "P2" and masked:
            lw = a.newlabel("K2_W")
            add(pre, 0, ["s_cmp_eq_u32 s24, 1", "s_cselect_b32 s65, 1, 0", "s_cmp_lg_u32 s21, 7", "s_cselect_b32 s65, s65, 0",
                         "s_cmp_eq_u32 s65, 0", f"RAW:    s_cbranch_scc1 {lw}\n    s_waitcnt vmcnt(6)\n{lw}:"])
        add(pre, 0, f"s_waitcnt vmcnt({vm}) lgkmcnt(0)"); add(pre, 0, "s_barrier")
        reads(vread(VX), list(range(0, 12)), VADV); add(pre, 16, "s_waitcnt lgkmcnt(0)")
        reads(kread(KX), list(range(16, 28)), KADV)
    else:
        lw = a.newlabel("K2_W")
        add(pre, 0, ["s_cmp_eq_u32 s21, 7", "s_cselect_b32 s65, 1, 0", "s_andn2_b32 s65, s65, s66",
                     "s_cmp_eq_u32 s65, 1", f"RAW:    s_cbranch_scc1 {lw}\n    s_waitcnt vmcnt(0)\n{lw}:"])
        add(pre, 0, "s_waitcnt vmcnt(6) lgkmcnt(0)"); add(pre, 0, "s_barrier")
        add(pre, 0, vread(VX))
        add(pre, 16, "s_waitcnt lgkmcnt(0)")
        add(pre, 0, ["s_lshl_b32 s65, s20, 14", f"v_add_u32 v6, s65, v{VLANE}", "s_lshl_b32 s65, s20, 8", "s_add_u32 s65, s65, 0x20000",
                     "v_lshlrev_b32 v7, 2, v1", "v_add_u32 v7, s65, v7"])
        wr = [f"ds_write_b128 v6, a[{OB[T]+4*k}:{OB[T]+4*k+3}] offset:{(4*T+k)*1024}" for T in range(4) for k in range(4)]
        for T in range(4):
            for k in range(4): add(fill, 27 + T if T < 3 else 31, wr[4 * T + k]) if False else None
        add(fill, 28, ["s_nop 1"] + wr[0:4]); add(fill, 29, wr[4:8]); add(fill, 30, wr[8:12]); add(fill, 31, ["s_nop 7"] + wr[12:16])
        add(fill, 27, [f"v_add_f32 v{LB}, v{LB}, v{LB+1}", f"ds_write_b32 v7, v{LB}"])
    if kind == "PRO":
        d = dma("K") + dma("V"); spread(fill, d, 17, 21)
    elif kind in ("P1", "TR"):
        d = dma("K") + dma("V"); spread(fill, d, 7, 9)
    elif kind == "P2":
        if not masked:
            spread(fill, dma("K") + dma("V"), 7, 9); spread(fill, dma("K") + dma("V"), 27, 31)
        else:
            spread(fill, ["SKIP:"] * 13, 7, 9); spread(fill, ["SKIP:"] * 13, 27, 31)
            add(fill, 8, "s_nop 5")
    if kind == "TR" and PREFETCH:
        add(fill, 12, ["buffer_load_dword v12, v10, s[48:51], 0 offen", "buffer_load_dword v13, v11, s[52:55], 0 offen"])
    used = {}
    for g in range(32): used[g] = 4 * len(fill.get(g, [])) if kind != "PRO" else 4 * nread.get(g, 0)
    A = sm_ops(SA, PA, lA); Bh = sm_ops(SB, PB, lBh); Bt = sm_ops(SB, PB, lBt)
    pa, pb, pt, bud = place3(A, Bh, Bt, used)
    if common.VERB: print("period", kind, masked, "budget", bud)
    if kind != "PRO":
        for g, ops in sorted(pt.items()):
            if kind != "FIN": add(fill, g, ops)
            else: add(pre, 0, ops)
    if hasQK:
        for g, ops in pa.items(): add(fill, g, ops)
        for g, ops in pb.items(): add(fill, g, ops)
    if masked:
        add(fill, 28, "s_add_u32 s29, s29, s33"); add(fill, 28, "s_add_u32 s30, s30, s33")
    state = {"prev": None}
    def E(p):
        if p == "SKIP:": return
        if p.startswith("RAW:"):
            a.raw(p[4:]); state["prev"] = None; return
        if kind in ("P1", "P2", "TR"):
            if "noexp" in EXP and p.startswith("v_exp"): return
            if "noadd" in EXP and p.startswith("v_add_f32"): return
            if "nocvt" in EXP and p.startswith("v_cvt"): return
            if "nods" in EXP and p.startswith("ds_read"): return
            if "nodma" in EXP and p.startswith("buffer_load_dwordx4"): return
            if "nobar" in EXP and p.startswith("s_barrier"): return
            if "nomfma" in EXP and p.startswith("v_mfma"): return
        ins = Ins(p)
        pv_ = state["prev"]
        if pv_ is not None and pv_.kind == "trans" and ins.kind == "valu" and set(pv_.wr) & set(ins.rd): a.e("s_nop 0")
        a.e(p); state["prev"] = ins
    for i, m in enumerate(M):
        for p in pre.get(i, []): E(p)
        present = (hasQK if i < 16 else hasPV)
        if present:
            if masked and i in (0, 8):
                S = SA if i == 0 else SB; rel = "s29" if i == 0 else "s30"; wv = "s20" if i == 0 else "s60"
                base = m.rsplit(",", 1)[0]
                l1, l2, lj = a.newlabel("K2T"), a.newlabel("K2N"), a.newlabel("K2J")
                a.e(f"s_cmp_lt_i32 {rel}, {wv}")
                a.raw(f"    s_cbranch_scc0 {l1}\n    {m}\n    s_branch {lj}\n{l1}:")
                a.raw(f"    s_cmp_eq_i32 {rel}, {wv}\n    s_cbranch_scc1 {l2}\n    {base}, v[{NEG}:{NEG+15}]\n    s_branch {lj}\n{l2}:")
                a.e(f"{base}, v[{TRI}:{TRI+15}]")
                a.label(lj)
                state["prev"] = None
            else:
                E(m)
        for p in fill.get(i, []): E(p)

def ctx_addr(a):
    a.e("v_and_b32 v12, 31, v1             ; q")
    a.e("v_lshrrev_b32 v13, 5, v1          ; hh")
    a.e("v_lshrrev_b32 v8, 4, v12")
    a.e("v_lshlrev_b32 v8, 17, v8          ; (q>>4)*131072")
    a.e("v_lshl_add_u32 v8, v13, 8, v8")
    a.e("v_and_b32 v9, 15, v12")
    a.e("v_lshl_add_u32 v8, v9, 4, v8")
    a.e("s_lshl_b32 s44, s38, 12           ; head*4*1024")

def tri_init(a, zero_reg):
    a.e("v_and_b32 v6, 31, v1")
    a.e("v_lshrrev_b32 v7, 5, v1")
    a.e("v_lshlrev_b32 v7, 2, v7")
    a.e("v_sub_u32 v6, v6, v7              ; q - 4h")
    a.e("v_mov_b32 v7, 0xf149f2ca          ; -1e30")
    for r in range(16):
        i, j = r >> 2, r & 3
        key = 16 * (i & 1) + 8 * (i >> 1) + j
        a.e(f"v_cmp_le_i32 vcc, {key}, v6")
        a.e("s_nop 1")
        a.e(f"v_cndmask_b32 v{TRI+r}, v7, v{zero_reg}, vcc")

def ctx_out(a, O, L, qt, combine=False, flagbit=None):
    if combine:
        a.e("s_waitcnt lgkmcnt(0)")
        a.e("s_barrier")
        for n in range(16):
            a.e(f"ds_read_b128 v[{32+4*n}:{32+4*n+3}], v6 offset:{n*1024}")
        a.e(f"ds_read_b32 v{LB}, v7")
    a.e(f"s_lshl_b32 s45, {qt}, 18       ; qtile*2*128*1024")
    a.e("s_add_u32 s45, s45, s44")
    a.e(f"v_add_f32 v{L}, v{L}, v{L+1}")
    if combine:
        a.e("s_waitcnt lgkmcnt(0)")
        a.e(f"v_add_f32 v{L}, v{L}, v{LB}")
    a.e(f"v_mov_b32 v10, v{L}")
    a.e("s_nop 1")
    a.e(f"v_permlane32_swap_b32 v{L}, v10")
    a.e("s_nop 1")
    a.e(f"v_add_f32 v{L}, v{L}, v10")
    if combine:
        for r in range(0, 64, 2): a.e(f"v_pk_add_f32 v[{O+r}:{O+r+1}], v[{O+r}:{O+r+1}], v[{32+r}:{32+r+1}]")
    skip = None
    if flagbit is not None:
        a.e(f"v_pk_add_f32 v[14:15], v[{O}:{O+1}], v[{O+2}:{O+3}]")
        for r in range(4, 64, 2): a.e(f"v_pk_add_f32 v[14:15], v[14:15], v[{O+r}:{O+r+1}]")
        a.e("v_add_f32 v14, v14, v15")
        a.e("s_mov_b32 s67, 0x21800000         ; 2^-60")
        a.e("s_mov_b32 s68, 0x5d800000         ; 2^60")
        a.e(f"v_cmp_nle_f32 s[70:71], s67, v{L}          ; !(2^-60 <= l)")
        a.e(f"v_cmp_nge_f32 s[72:73], s68, v{L}          ; !(2^60 >= l)")
        a.e("v_cmp_class_f32 vcc, v14, s69")
        a.e("s_nop 1")
        a.e("s_or_b64 s[70:71], s[70:71], s[72:73]")
        a.e("s_or_b64 s[70:71], s[70:71], vcc")
        skip = a.newlabel("K2_OK"); done = a.newlabel("K2_DONE")
        a.e("s_cmp_eq_u64 s[70:71], 0")
        a.e(f"s_cbranch_scc1 {skip}")
        a.e(f"s_or_b32 s66, s66, {flagbit}")
        a.e(f"s_branch {done}")
        a.label(skip)
    a.e(f"v_rcp_f32 v10, v{L}")
    a.e("s_nop 0")
    a.e("v_mov_b32 v11, v10")
    for T in range(4):
        for c in range(2):
            q = 16 + 4 * ((2 * T + c) % 4)
            for h, i in enumerate((c, c + 2)):
                b = O + 16 * T + 4 * i
                for j in (0, 2): a.e(f"v_pk_mul_f32 v[{b+j}:{b+j+1}], v[{b+j}:{b+j+1}], v[10:11]")
                a.e(f"v_cvt_pk_bf16_f32 v{q+2*h}, v{b}, v{b+1}")
                a.e(f"v_cvt_pk_bf16_f32 v{q+2*h+1}, v{b+2}, v{b+3}")
            a.e(f"buffer_store_dwordx4 v[{q}:{q+3}], v8, s[16:19], s45 offen offset:{T*1024 + c*512}{CSTFLAG}")
    if skip: a.label(done)

def slow_path(a):
    S, P, M_, Lr, SC, QS_ = 32, 64, 112, 114, 116, 192
    a.label("K2_SLOW")
    a.e("s_cmp_eq_u32 s66, 0")
    a.e("s_cbranch_scc1 " + ("K2_TO_K3" if FUSE3 else "K2_END"))
    a.e("s_waitcnt vmcnt(0)")
    a.e("s_bitcmp1_b32 s66, 0")
    a.e("s_cbranch_scc0 K2_SLOW_L")
    a.e("s_and_b32 s66, s66, 2")
    for r in range(32): a.e(f"v_accvgpr_mov_b32 a{QS_+r}, a{QS+r}")
    a.e("s_sub_u32 s24, s22, 4")
    a.e("s_mov_b32 s46, s41")
    a.e("s_branch K2_SLOW_GO")
    a.label("K2_SLOW_L")
    a.e("s_mov_b32 s66, 0")
    for r in range(32): a.e(f"v_accvgpr_mov_b32 a{QS_+r}, a{QL+r}")
    a.e("s_sub_u32 s24, s23, 4")
    a.e("s_mov_b32 s46, s40")
    a.label("K2_SLOW_GO")
    a.e("s_add_u32 s24, s24, s20")
    for r in range(64): a.e(f"v_mov_b32 v{OL+r}, 0")
    a.e(f"v_mov_b32 v{Lr}, 0")
    a.e(f"v_mov_b32 v{Lr+1}, 0")
    tri_init(a, Lr)
    a.e(f"v_mov_b32 v{M_}, 0xff800000")
    a.e("s_mov_b32 s25, 0                  ; tile")
    a.label("K2_SLOW_LOOP")
    a.e("s_lshl_b32 s26, s25, 13")
    a.e("s_add_u32 s27, s26, 0x1000")
    for k in range(8):
        a.e(f"buffer_load_dwordx4 {A4(KX+4*k)}, v{VLANE}, s[4:7], {'s26' if k < 4 else 's27'} offen offset:{(k & 3)*1024}")
    for k in range(8):
        a.e(f"buffer_load_dwordx4 {A4(VX+4*k)}, v{VLANE}, s[8:11], {'s26' if k < 4 else 's27'} offen offset:{(k & 3)*1024}")
    a.e("s_waitcnt vmcnt(0)")
    m = qk(S, QS_, KX)
    l1, lj = a.newlabel("K2_ST"), a.newlabel("K2_SJ")
    a.e("s_cmp_eq_u32 s25, s24")
    a.raw(f"    s_cbranch_scc1 {l1}\n    {m[0]}\n    s_branch {lj}\n{l1}:")
    a.e(m[0].rsplit(",", 1)[0] + f", v[{TRI}:{TRI+15}]")
    a.label(lj)
    for x in m[1:]: a.e(x)
    a.e("s_nop 15")
    a.e(f"v_max3_f32 v{SC}, v{S}, v{S+1}, v{M_}")
    for r in range(2, 16, 2): a.e(f"v_max3_f32 v{SC}, v{S+r}, v{S+r+1}, v{SC}")
    a.e(f"v_mov_b32 v10, v{SC}")
    a.e("s_nop 1")
    a.e(f"v_permlane32_swap_b32 v{SC}, v10")
    a.e("s_nop 1")
    a.e(f"v_max_f32 v{SC}, v{SC}, v10")
    a.e(f"v_sub_f32 v10, v{M_}, v{SC}")
    a.e(f"v_mov_b32 v{M_}, v{SC}")
    a.e("v_exp_f32 v10, v10")
    for r in range(16): a.e(f"v_sub_f32 v{S+r}, v{S+r}, v{M_}")
    for r in range(16): a.e(f"v_exp_f32 v{S+r}, v{S+r}")
    a.e(f"v_mul_f32 v{Lr}, v{Lr}, v10")
    for r in range(16): a.e(f"v_add_f32 v{Lr}, v{Lr}, v{S+r}")
    for k in range(8): a.e(f"v_cvt_pk_bf16_f32 v{P+k}, v{S+2*k}, v{S+2*k+1}")
    for r in range(64): a.e(f"v_mul_f32 v{OL+r}, v{OL+r}, v10")
    a.e("s_nop 1")
    for x in pv(P, VX, OL): a.e(x)
    a.e("s_nop 15")
    a.e("s_add_u32 s25, s25, 1")
    a.e("s_cmp_le_u32 s25, s24")
    a.e("s_cbranch_scc1 K2_SLOW_LOOP")
    ctx_out(a, OL, Lr, "s46")
    a.e("s_branch K2_SLOW")

def gen_k2(a, name="attn_kernel"):
    kernel_header(a, name)
    a.block("k2_pre")
    a.e("s_cmp_ge_u32 s2, 256")
    a.e("s_cbranch_scc1 K2_END")
    stamp(a, 0)
    a.e(f"s_load_dwordx2 s[36:37], s[0:1], {KA['ws']}")
    a.e("v_lshrrev_b32 v1, 6, v0")
    a.e("s_nop 0")
    a.e("v_readfirstlane_b32 s20, v1       ; wave")
    a.e("v_and_b32 v1, 63, v0              ; lane")
    code_touch(a, name, "K2_END", 1, 14, 15, "s20")
    a.e("s_and_b32 s38, s2, 7")
    a.e("s_lshr_b32 s39, s2, 3")
    a.e("s_and_b32 s21, s39, 7             ; i")
    a.e("s_lshr_b32 s39, s39, 3")
    a.e("s_lshl_b32 s38, s38, 2")
    a.e("s_add_u32 s38, s38, s39           ; head")
    a.e("s_lshl_b32 s22, s21, 2")
    a.e("s_add_u32 s22, s22, 4             ; n1 = 4(i+1)")
    a.e("s_lshl_b32 s23, s21, 2")
    a.e("s_sub_u32 s23, 64, s23            ; nL = 4(16-i)")
    a.e("s_lshl_b32 s39, s38, 19           ; head*512K")
    a.e(f"v_lshlrev_b32 v{VLANE}, 4, v1")
    a.e("s_waitcnt lgkmcnt(0)")
    for srdn, reg in ((4, KF), (8, VF), (12, QF)):
        a.e(f"s_add_u32 s40, s39, {reg}")
        a.e(f"s_add_u32 s{srdn}, s36, s40")
        a.e(f"s_addc_u32 s{srdn+1}, s37, 0")
        a.e(f"s_and_b32 s{srdn+1}, s{srdn+1}, 0xffff")
        if srdn == 12: a.e(f"s_mov_b32 s{srdn+2}, 0x80000")
        else: a.e(f"s_lshl_b32 s{srdn+2}, s23, 13")
        a.e(f"s_mov_b32 s{srdn+3}, 0x20000")
    a.e(f"s_add_u32 s16, s36, {CF}")
    a.e("s_addc_u32 s17, s37, 0")
    a.e("s_and_b32 s17, s17, 0xffff")
    a.e("s_mov_b32 s18, 0x1000000")
    a.e("s_mov_b32 s19, 0x20000")
    a.e("s_sub_u32 s40, 15, s21")
    a.e("s_lshl_b32 s40, s40, 2")
    a.e("s_add_u32 s40, s40, s20           ; qtile L")
    a.e("s_lshl_b32 s41, s21, 2")
    a.e("s_add_u32 s41, s41, s20           ; qtile S")
    a.e("s_lshl_b32 s42, s40, 13")
    a.e("s_lshl_b32 s43, s41, 13")
    a.e("s_add_u32 s44, s42, 0x1000")
    a.e("s_add_u32 s45, s43, 0x1000")
    a.e("s_xor_b32 s61, s40, 1")
    a.e("s_lshl_b32 s62, s61, 13")
    a.e("s_add_u32 s63, s62, 0x1000")
    a.e("s_lshl_b32 s27, s20, 11           ; K m0 base = w*2048")
    a.e("s_or_b32 s28, s27, 0x10000        ; V m0 base")
    a.e("s_mov_b32 s25, s27")
    a.e("s_mov_b32 s26, s27")
    a.e("s_mov_b32 s31, 0xffff")
    a.e("s_mov_b32 s34, 0x2000")
    a.e("s_mov_b32 s35, 0x2000")
    a.e("s_mov_b32 s60, s20")
    a.e("s_and_b32 s64, s20, 1")
    a.e("s_lshl_b32 s64, s64, 13           ; parity * 8192")
    def qload(base, lo, hi):
        for s_ in range(8):
            a.e(f"buffer_load_dwordx4 {A4(base+4*s_)}, v{VLANE}, s[12:15], {lo if s_ < 4 else hi} offen offset:{(s_ & 3)*1024}")
    def tile(kind):
        for o in dma(kind): a.e(o)
    tile("K"); qload(QL, "s42", "s44"); qload(QS, "s43", "s45")
    a.e(f"v_mov_b32 v{VK}, v{VLANE}")
    a.e(f"v_or_b32 v{VV}, 0x10000, v{VLANE}")
    for r in range(OL, OL + 128): a.e(f"v_mov_b32 v{r}, 0")
    for r in range(LL, LL + 6): a.e(f"v_mov_b32 v{r}, 0")
    for T in range(4):
        for r in range(16): a.e(f"v_accvgpr_write_b32 a{OB[T]+r}, 0")
    tri_init(a, LL)
    for r in range(16): a.e(f"v_mov_b32 v{NEG+r}, v7")
    a.e("s_mov_b32 s66, 0")
    a.e("s_mov_b32 s69, 0x207")
    a.e("s_sub_u32 s29, 4, s23")
    a.e("s_sub_u32 s30, 4, s22")
    a.e("s_mov_b32 s33, 1")
    a.e("s_waitcnt vmcnt(8)")
    a.e("s_barrier")
    for o in kread(KX): a.e(o)
    for o in KADV: a.e(o)
    a.e("s_waitcnt lgkmcnt(0)")
    stamp(a, 1)
    stamp(a, 4, True)
    a.block("k2_PRO"); period(a, "PRO", True)
    a.block("k2_c1")
    stamp(a, 6)
    a.e("s_sub_u32 s24, s22, 5")
    a.e("s_cmp_gt_i32 s24, 0")
    a.e("s_cbranch_scc0 K2_P1M_PRE")
    a.e("s_add_u32 s29, s29, s24")
    a.e("s_add_u32 s30, s30, s24")
    a.raw(".p2align 6")
    a.label("K2_P1U")
    a.block("k2_P1U"); period(a, "P1", False)
    a.e("s_sub_u32 s24, s24, 1")
    a.e("s_cmp_lg_u32 s24, 0")
    a.e("s_cbranch_scc1 K2_P1U")
    a.block("k2_c2")
    a.label("K2_P1M_PRE")
    a.e("s_sub_u32 s24, s22, 1")
    a.e("s_min_u32 s24, s24, 4")
    a.raw(".p2align 6")
    a.label("K2_P1M")
    a.block("k2_P1M")
    a.e("s_add_u32 s65, s64, 0x2000")
    a.e("s_cmp_eq_u32 s24, 2")
    a.e("s_cselect_b32 s35, s65, 0x2000")
    a.e("s_cmp_eq_u32 s24, 1")
    a.e("s_cselect_b32 s35, 0x4000, s35")
    period(a, "P1", True)
    a.e("s_sub_u32 s24, s24, 1")
    a.e("s_cmp_lg_u32 s24, 0")
    a.e("s_cbranch_scc1 K2_P1M")
    a.block("k2_c3")
    stamp(a, 7)
    a.e("s_and_b32 s65, s20, 1")
    a.e("s_add_u32 s29, s29, s65")
    a.e("s_mov_b32 s30, s29")
    a.e("s_xor_b32 s60, s20, 1")
    a.e("s_mov_b32 s33, 2")
    a.e("s_add_u32 s34, s64, 0x2000")
    a.block("k2_TR"); period(a, "TR", True)
    a.block("k2_c4")
    a.e("s_mov_b32 s34, 0x4000")
    ctx_addr(a)
    ctx_out(a, OS, LS, "s41", flagbit=1)
    stamp(a, 8)
    a.e("s_sub_u32 s24, s23, s22")
    a.e("s_lshr_b32 s24, s24, 1")
    a.e("s_sub_u32 s24, s24, 3")
    a.e("s_cmp_gt_i32 s24, 0")
    a.e("s_cbranch_scc0 K2_P2M_PRE")
    a.e("s_lshl_b32 s65, s24, 1")
    a.e("s_add_u32 s29, s29, s65")
    a.e("s_add_u32 s30, s30, s65")
    a.raw(".p2align 6")
    a.label("K2_P2U")
    a.block("k2_P2U"); period(a, "P2", False)
    a.e("s_sub_u32 s24, s24, 1")
    a.e("s_cmp_lg_u32 s24, 0")
    a.e("s_cbranch_scc1 K2_P2U")
    a.block("k2_c5")
    a.label("K2_P2M_PRE")
    a.e("s_sub_u32 s24, s23, s22")
    a.e("s_lshr_b32 s24, s24, 1")
    a.e("s_sub_u32 s24, s24, 1")
    a.e("s_min_u32 s24, s24, 2")
    a.raw(".p2align 6")
    a.label("K2_P2M")
    a.block("k2_P2M"); period(a, "P2", True)
    a.e("s_sub_u32 s24, s24, 1")
    a.e("s_cmp_lg_u32 s24, 0")
    a.e("s_cbranch_scc1 K2_P2M")
    a.block("k2_FIN"); period(a, "FIN", False)
    a.block("k2_epi")
    stamp(a, 2)
    stamp(a, 5, True)
    a.e("s_xor_b32 s65, s20, 1")
    a.e("s_lshl_b32 s64, s65, 14")
    a.e(f"v_add_u32 v6, s64, v{VLANE}")
    a.e("s_lshl_b32 s65, s65, 8")
    a.e("s_add_u32 s65, s65, 0x20000")
    a.e("v_lshlrev_b32 v7, 2, v1")
    a.e("v_add_u32 v7, s65, v7")
    ctx_out(a, OL, LL, "s40", combine=True, flagbit=2)
    if common.DIAG:
        a.e("s_waitcnt vmcnt(0)")
        stamp(a, 3)
        stamp_flush(a, 2, 9)
    a.block("k2_slow")
    slow_path(a)
    if FUSE3:
        a.cur = None
        a.label("K2_TO_K3")
        a.e("s_lshr_b32 s92, s38, 3")
        a.e("s_lshl_b32 s90, s21, 2")
        a.e("s_add_u32 s90, s90, s92")
        a.e("s_lshl_b32 s90, s90, 7")
        a.e("s_sub_u32 s91, 15, s21")
        a.e("s_lshl_b32 s91, s91, 2")
        a.e("s_add_u32 s91, s91, s92")
        a.e("s_lshl_b32 s91, s91, 7")
        a.e("s_barrier")
        import k3s
        k3s.gen_k3(a, fused=True)
    a.cur = None
    a.label("K2_END")
    a.e("s_endpgm")
    return kernel_desc(name, 512, 102, 256)

def check_k2(a):
    B = a.blocks
    tr = B["k2_pre"] + B["k2_PRO"] + B["k2_c1"] + B["k2_P1U"] * 2 + B["k2_c2"] + B["k2_P1M"] * 2 + B["k2_c3"] + B["k2_TR"] + B["k2_c4"] + B["k2_P2U"] * 2 + B["k2_c5"] + B["k2_P2M"] * 2 + B["k2_FIN"] + B["k2_epi"]
    p = check_trace(tr, "k2a")
    tr = B["k2_pre"] + B["k2_PRO"] + B["k2_c1"] + B["k2_c2"] + B["k2_P1M"] * 3 + B["k2_c3"] + B["k2_TR"] + B["k2_c4"] + B["k2_c5"] + B["k2_P2M"] + B["k2_FIN"] + B["k2_epi"]
    if FUSE3: p += check_trace(B["k3"], "k3f")
    return p + check_trace(tr, "k2b") + check_trace(B["k2_epi"] + B["k2_slow"] + B["k2_slow"], "k2s")
```

```python
from common import *
import common, os
from k0 import ln_rows
ST_FLAG = ""
NSL = 6
FUSE_LN = os.environ.get('FUSE', '0') == '1'
WFLAG = os.environ.get('WFLAG', '')
XB = 16
ACC = [48, 64]
TMP = 80

POISON = int(os.environ.get('K3POISON', os.environ.get('K3POLL', '0')))

def cvt(dst, s0, s1): return f"v_cvt_pk_bf16_f32 v{dst}, v{s0}, v{s1}"
def make_epi(typ, stflag, acc, tt, soff):
    def st(q, soff, off): return f"buffer_store_dwordx4 v[{q}:{q+3}], v8, s[16:19], {soff} offen offset:{off}{stflag}"
    ops = []
    if typ in "KQ":
        for pr in range(2):
            q = TMP + 8 * tt + 4 * pr
            if typ == "Q":
                for c in (2 * pr, 2 * pr + 1):
                    for j in range(4): ops.append(f"v_mul_f32 v{acc(tt,c)+j}, s30, v{acc(tt,c)+j}")
            for h, c in enumerate((2 * pr, 2 * pr + 1)):
                ops.append(cvt(q + 2 * h, acc(tt, c), acc(tt, c) + 1))
                ops.append(cvt(q + 2 * h + 1, acc(tt, c) + 2, acc(tt, c) + 3))
            off = pr * 2048 + tt * (128 if typ == "K" else 256)
            ops.append(st(q, soff, off))
    elif typ == "V":
        for c in range(4):
            q = TMP + 4 * c
            ops.append(cvt(q + 2 * tt, acc(tt, c), acc(tt, c) + 1))
            ops.append(cvt(q + 2 * tt + 1, acc(tt, c) + 2, acc(tt, c) + 3))
            if tt == 1:
                ops.append(st(q, soff, (c & 1) * 256 + (c >> 1) * 2048))
    else:
        T = TMP + 16
        groups = [[(c, j) for j in range(4)] for c in range(2)]
        for grp in groups:
            for n, (c, j) in enumerate(grp): ops.append(f"v_mul_f32 v{T+n}, s31, v{acc(tt,c)+j}")
            for n, (c, j) in enumerate(grp): ops.append(f"v_exp_f32 v{T+n}, v{T+n}")
            for n, (c, j) in enumerate(grp): ops.append(f"v_add_f32 v{T+n}, 1.0, v{T+n}")
            for n, (c, j) in enumerate(grp): ops.append(f"v_rcp_f32 v{T+n}, v{T+n}")
            for n, (c, j) in enumerate(grp): ops.append(f"v_mul_f32 v{acc(tt,c)+j}, v{acc(tt,c)+j}, v{acc(tt,c+2)+j}")
            for n, (c, j) in enumerate(grp): ops.append(f"v_mul_f32 v{acc(tt,c)+j}, v{acc(tt,c)+j}, v{T+n}")
            c = grp[0][0]
            q = TMP + 4 * tt
            ops.append(cvt(q + 2 * c, acc(tt, c), acc(tt, c) + 1))
            ops.append(cvt(q + 2 * c + 1, acc(tt, c) + 2, acc(tt, c) + 3))
        ops.append(st(TMP + 4 * tt, soff, 0))
    return ops

def k1_period(a, typ, stflag):
    fill = {}
    def acc(tt, c): return ACC[tt] + 4 * c
    mf = []
    for tt in range(2):
        for ks in range(16):
            f = tt * 16 + ks
            xb = XB + 4 * (f % 4)
            for c in range(4):
                w = 16 * ks + 4 * c
                d = acc(tt, c)
                cin = "0" if ks == 0 else f"v[{d}:{d+3}]"
                if typ == "V":
                    mf.append(f"v_mfma_f32_16x16x32_bf16 v[{d}:{d+3}], v[{xb}:{xb+3}], a[{w}:{w+3}], {cin}")
                else:
                    mf.append(f"v_mfma_f32_16x16x32_bf16 v[{d}:{d+3}], a[{w}:{w+3}], v[{xb}:{xb+3}], {cin}")
    pre = {}
    for f in range(3, 35):
        ff = f % 32
        tt, ks = ff // 16, ff % 16
        xb = XB + 4 * (f % 4)
        base = "v3" if ks % 2 == 0 else "v4"
        off = (ks >> 1) * 4096 + tt * 2048
        idx = 4 * (f - 3)
        rd = f"ds_read_b128 v[{xb}:{xb+3}], {base} offset:{off}"
        if f == 32:
            fill.setdefault(idx - 3, []).append("v_add_u32 v3, 0x8000, v3")
            fill.setdefault(idx - 2, []).append("v_and_b32 v3, 0x1ffff, v3")
            fill.setdefault(idx - 1, []).append("v_xor_b32 v4, 64, v3")
        fill.setdefault(idx, []).append(rd)
    for f in range(32):
        pre.setdefault(4 * f, []).append("s_waitcnt lgkmcnt(2)")
    epi = lambda tt, soff: make_epi(typ, stflag, acc, tt, soff)
    e1 = epi(1, "s27" if typ != "G" else "s29")
    e0 = epi(0, "s25")
    spread(fill, e1, 3, 58)
    dma = []
    for slab in range(8):
        m0 = "s_mov_b32 m0, s26" if slab == 0 else "s_add_u32 m0, m0, 3968"
        dma.append((m0, f"buffer_load_dwordx4 v2, s[4:7], s24 offen offset:{slab*128} lds"))
    spread(fill, e0, 67, 104)
    for n, (m0, ld) in enumerate(dma):
        g = 106 + 2 * n
        fill.setdefault(g, []).append(m0)
        fill.setdefault(g + 1, []).append(ld)
    book = ["s_add_u32 s24, s24, 0x8000", "s_add_u32 s26, s26, 0x8000", "s_and_b32 s26, s26, 0x1ffff"]
    if typ == "G":
        book += ["s_add_u32 s29, s25, 44032", "s_add_u32 s25, s25, 88064"]
    else:
        book += ["s_mov_b32 s27, s25", "s_add_u32 s25, s25, 8192"]
    fill.setdefault(124, []).extend(book[:3]); fill.setdefault(125, []).extend(book[3:])
    nst1 = sum(1 for o in e1 if o.startswith("buffer_store")); nst0 = sum(1 for o in e0 if o.startswith("buffer_store"))
    N = nst1 + nst0 + 8 + nst1
    pre.setdefault(64, []).insert(0, f"s_waitcnt vmcnt({N})")
    pre[64].insert(1, "s_barrier")
    for i, m in enumerate(mf):
        for p in pre.get(i, []): a.e(p)
        a.e(m)
        for p in fill.get(i, []): a.e(p)
    return e1

def ln_compute(a):
    for k in range(4): ln_rows(a, 2, 100 + 8 * k, 132, 44)
    a.e(f"s_add_u32 s68, s52, {XN}")
    a.e("s_addc_u32 s69, s53, 0")
    a.e("s_and_b32 s69, s69, 0xffff")
    a.e("s_add_u32 s32, s33, 0x1000")
    for r in range(8):
        a.e(f"buffer_store_dwordx4 v[{100+4*r}:{103+4*r}], v99, s[68:71], {'s33' if r < 4 else 's32'} offen offset:{(r & 3)*1024} sc1")

def ln_signal(a):
    a.e("s_barrier")
    l = a.newlabel("K1_SIG")
    a.e("s_cmp_lg_u32 s20, 0")
    a.e(f"s_cbranch_scc1 {l}")
    a.e("s_lshr_b32 s32, s2, 4")
    a.e("s_lshl_b32 s32, s32, 4")
    a.e("v_mov_b32 v98, s32")
    a.e("v_mov_b32 v97, 1")
    a.e("s_mov_b64 exec, 1")
    a.e("global_atomic_add v98, v97, s[34:35] sc1")
    a.e("s_mov_b64 exec, -1")
    a.label(l)

def poll_xn(a):
    a.e("v_and_b32 v98, 3, v1")
    a.e("s_lshl_b32 s32, s56, 2")
    a.e("v_add_u32 v98, s32, v98")
    a.e("v_lshlrev_b32 v98, 4, v98")
    l = a.newlabel("K1_POLL")
    a.label(l)
    a.e("global_load_dword v97, v98, s[34:35] sc1")
    a.e("s_waitcnt vmcnt(0)")
    a.e("v_cmp_ne_u32 vcc, 4, v97")
    a.e("s_nop 4")
    a.e(f"s_cbranch_vccnz {l}")

def gen_aux(a):
    a.block("k1_aux")
    a.label("K1_AUX")
    if FUSE_LN:
        a.e("s_cmp_lg_u32 s74, 0")
        a.e("s_cbranch_scc1 K1_AUX2")
        a.e("s_waitcnt vmcnt(0)")
        ln_compute(a)
        a.e("s_waitcnt vmcnt(0)")
        ln_signal(a)
        a.label("K1_AUX2")
    a.e(f"s_load_dwordx2 s[40:41], s[0:1], {KA['wo']}")
    a.e(f"s_load_dwordx2 s[42:43], s[0:1], {KA['wd']}")
    a.e("s_sub_u32 s57, s54, 4")
    a.e("s_lshl_b32 s57, s57, 2")
    a.e("s_cmp_eq_u32 s55, 7")
    a.e("s_cselect_b32 s57, s57, 16")
    a.e("s_add_u32 s57, s57, s56")
    a.e("s_lshl_b32 s57, s57, 2")
    a.e("s_add_u32 s57, s57, s20")
    if POISON: a.e("s_mov_b32 s80, s57")
    a.e(f"s_mul_i32 s58, s20, 40960")
    a.e("s_waitcnt lgkmcnt(0)")
    srd(a, "s40", "s41", 0x400000, 4)
    srd(a, "s42", "s43", 1376 * 1024, 8)
    a.e(f"s_add_u32 s16, s52, {WF}"); a.e("s_addc_u32 s17, s53, 0"); a.e("s_and_b32 s17, s17, 0xffff")
    a.e(f"s_mov_b32 s18, {8*172*4096}"); a.e("s_mov_b32 s19, 0x20000")
    a.e("v_lshrrev_b32 v9, 1, v1")
    a.e("v_and_b32 v18, 1, v1")
    a.e("v_lshlrev_b32 v18, 4, v18")
    for r7 in range(8):
        a.e(f"v_xor_b32 v{10+r7}, {r7}, v9")
        a.e(f"v_lshl_add_u32 v{10+r7}, v{10+r7}, 5, v18")
    a.e("v_and_b32 v2, 15, v1              ; i")
    a.e("v_lshrrev_b32 v3, 4, v1           ; g")
    a.e("v_lshrrev_b32 v4, 2, v2")
    a.e("v_lshl_add_u32 v5, v3, 2, v4      ; r0")
    a.e("v_and_b32 v6, 7, v5               ; f")
    a.e("v_lshlrev_b32 v5, 10, v5")
    a.e("v_and_b32 v7, 3, v2")
    a.e("v_lshl_add_u32 v5, v7, 3, v5")
    a.e("v_add_u32 v5, s58, v5")
    for b in range(8):
        a.e(f"v_xor_b32 v7, {b}, v6")
        a.e(f"v_lshl_add_u32 v{20+b}, v7, 5, v5")
    a.e("v_lshlrev_b32 v8, 4, v1           ; lane*16")
    if os.environ.get("NOAUX"): a.e("s_mov_b32 s57, 200")
    a.label("K1_AUXL")
    a.e("s_cmp_ge_u32 s57, 171")
    a.e("s_cbranch_scc1 K1_AUXE")
    a.e("s_cmp_lt_u32 s57, 128")
    for k in range(4): a.e(f"s_cselect_b32 s{12+k}, s{4+k}, s{8+k}")
    a.e("s_mov_b32 s15, 0x20000")
    a.e("s_and_b32 s59, s57, 127")
    a.e("s_lshl_b32 s59, s59, 15")
    a.e("s_mov_b32 m0, s58")
    a.e("s_nop 0")
    for r in range(32):
        a.e(f"buffer_load_dwordx4 v{10+(r&7)}, s[12:15], s59 offen lds")
        a.e("s_add_u32 m0, m0, 1024")
        a.e("s_add_u32 s59, s59, 1024")
    a.e("s_lshl_b32 s60, s57, 12           ; u*4096")
    a.e("s_waitcnt vmcnt(0)")
    for N in range(8):
        q = 64 + 16 * (N & 3)
        for mt in range(4):
            cidx = 4 * N + mt
            for e4 in range(2):
                a.e(f"ds_read_b64_tr_b16 v[{q+4*mt+2*e4}:{q+4*mt+2*e4+1}], v{20+(cidx&7)} offset:{(cidx>>3)*256 + e4*16384}")
        a.e("s_waitcnt lgkmcnt(0)")
        for mt in range(4):
            a.e(f"buffer_store_dwordx4 v[{q+4*mt}:{q+4*mt+3}], v8, s[16:19], s60 offen offset:{mt*1024} sc1")
        a.e(f"s_add_u32 s60, s60, {172*4096}")
    a.e("s_waitcnt vmcnt(0)")
    a.e("s_add_u32 s57, s57, 80")
    a.e("s_branch K1_AUXL")
    a.label("K1_AUXE")
    if POISON:
        a.e(f"s_add_u32 s84, s52, {0x7100000}"); a.e("s_addc_u32 s85, s53, 0"); a.e("s_and_b32 s85, s85, 0xffff")
        a.e("s_mov_b32 s86, 0x800000"); a.e("s_mov_b32 s87, 0x20000")
        a.e("s_waitcnt vmcnt(0)")
        for r in range(4): a.e(f"v_mov_b32 v{32+r}, -1")
        a.e("v_lshlrev_b32 v8, 4, v1")
        a.label("K1_PZ")
        a.e("s_lshl_b32 s81, s80, 13")
        for r in range(8):
            a.e(f"buffer_store_dwordx4 v[32:35], v8, s[84:87], s81 offen offset:{(r & 3)*1024} sc1")
            if r == 3: a.e("s_add_u32 s81, s81, 4096")
        a.e("s_add_u32 s80, s80, 80")
        a.e("s_cmp_lt_u32 s80, 1024")
        a.e("s_cbranch_scc1 K1_PZ")
    if common.DIAG:
        stamp(a, 4)
        stamp_flush(a, 1, 9)
    a.e("s_endpgm")

def gen_k1(a, name="proj_kernel", stflag=""):
    kernel_header(a, name)
    a.block("k1_pro")
    a.e("s_cmp_ge_u32 s2, 256")
    a.e("s_cbranch_scc1 K1_END")
    stamp(a, 0)
    a.e(f"s_load_dwordx4 s[36:39], s[0:1], {KA['x']}")
    a.e(f"s_load_dwordx4 s[40:43], s[0:1], {KA['wq']}")
    a.e(f"s_load_dwordx2 s[44:45], s[0:1], {KA['wuv']}")
    a.e(f"s_load_dwordx4 s[48:51], s[0:1], {KA['wg']}")
    a.e(f"s_load_dwordx2 s[52:53], s[0:1], {KA['ws']}")
    a.e(f"s_load_dwordx2 s[34:35], s[0:1], {KA['dbg']}")
    a.e("v_lshrrev_b32 v1, 6, v0")
    a.e("s_nop 0")
    a.e("v_readfirstlane_b32 s20, v1")
    a.e("v_and_b32 v1, 63, v0              ; lane")
    code_touch(a, name, "K1_END", 1, 250, 251, "s20")
    a.e("s_and_b32 s54, s2, 7              ; x")
    a.e("s_lshr_b32 s55, s2, 3             ; j")
    a.e("s_and_b32 s56, s55, 3             ; m")
    a.e("s_lshr_b32 s55, s55, 2            ; pi")
    a.e("s_waitcnt lgkmcnt(0)")
    if FUSE_LN:
        srd(a, "s36", "s37", 0x200000, 68)
        a.e("v_lshlrev_b32 v99, 4, v1")
        a.e("s_lshl_b32 s64, s20, 13")
        a.e("v_add_u32 v99, s64, v99")
        a.e("s_lshr_b32 s33, s2, 2")
        a.e("s_lshl_b32 s33, s33, 15")
        a.e("s_and_b32 s74, s2, 3")
        a.e("s_cmp_lg_u32 s74, 0")
        a.e("s_cbranch_scc1 K1_NOX")
        for r in range(8):
            if r == 4: a.e("s_add_u32 s32, s33, 0x1000")
            a.e(f"buffer_load_dwordx4 v[{100+4*r}:{103+4*r}], v99, s[68:71], {'s33' if r < 4 else 's32'} offen offset:{(r & 3)*1024}")
        a.label("K1_NOX")
    a.e("s_cmp_ge_u32 s54, 4")
    a.e("s_cbranch_scc1 K1_XN")
    a.e("s_lshl_b32 s57, s54, 3")
    a.e("s_add_u32 s57, s57, s55           ; p 0..31")
    a.e("s_mov_b32 s60, s38")
    a.e("s_mov_b32 s61, s39")
    a.e("s_cmp_lt_u32 s57, 16")
    a.e("s_cselect_b32 s21, 0, 1           ; type K=0 / V=1")
    a.e("s_cselect_b32 s62, s42, s44")
    a.e("s_cselect_b32 s63, s43, s45       ; W")
    a.e(f"s_mov_b32 s59, {VF}")
    a.e(f"s_cselect_b32 s58, {KF}, s59")
    a.e("s_and_b32 s57, s57, 15            ; panel")
    a.e("s_branch K1_QKV")
    a.label("K1_XN")
    a.e("s_cmp_eq_u32 s55, 7")
    a.e("s_cbranch_scc1 K1_AUX")
    a.e("s_sub_u32 s57, s54, 4")
    a.e("s_mul_i32 s57, s57, 7")
    a.e("s_add_u32 s57, s57, s55           ; q")
    a.e("s_cmp_ge_u32 s57, 27")
    a.e("s_cbranch_scc1 K1_AUX")
    a.e(f"s_add_u32 s60, s52, {XN}")
    a.e("s_addc_u32 s61, s53, 0")
    a.e("s_cmp_ge_u32 s57, 16")
    a.e("s_cbranch_scc1 K1_GU")
    a.e("s_mov_b32 s21, 2")
    a.e("s_mov_b32 s62, s40")
    a.e("s_mov_b32 s63, s41")
    a.e(f"s_mov_b32 s58, {QF}")
    a.label("K1_QKV")
    a.e("s_mov_b32 s22, 8192")
    a.e("s_lshl_b32 s59, s57, 9")
    a.e("s_lshl_b32 s64, s20, 7")
    a.e("s_add_u32 s59, s59, s64")
    a.e("s_add_u32 s8, s62, s59")
    a.e("s_addc_u32 s9, s63, 0")
    a.e("s_and_b32 s9, s9, 0xffff")
    a.e("s_sub_u32 s10, 0x400000, s59")
    a.e("s_mov_b32 s11, 0x20000")
    a.e("s_add_u32 s12, s8, 64")
    a.e("s_addc_u32 s13, s9, 0")
    a.e("s_sub_u32 s14, s10, 64")
    a.e("s_mov_b32 s15, 0x20000")
    a.e("s_lshl_b32 s25, s57, 1")
    a.e("s_lshr_b32 s64, s20, 1")
    a.e("s_add_u32 s25, s25, s64           ; head")
    a.e("s_lshl_b32 s25, s25, 19")
    a.e("s_and_b32 s64, s20, 1")
    a.e("s_lshl_b32 s64, s64, 12")
    a.e("s_add_u32 s25, s25, s64")
    a.e("s_lshl_b32 s64, s56, 17           ; 16m*8192")
    a.e("s_add_u32 s25, s25, s64")
    a.e("s_mov_b32 s65, 0x1000000")
    a.e("s_branch K1_COMMON")
    a.label("K1_GU")
    a.e("s_mov_b32 s21, 3")
    a.e("s_sub_u32 s57, s57, 16")
    a.e("s_lshl_b32 s57, s57, 2")
    a.e("s_add_u32 s57, s57, s20           ; fs")
    a.e("s_min_u32 s57, s57, 42")
    a.e("s_mov_b32 s22, 2752")
    a.e("s_lshl_b32 s59, s57, 6")
    a.e("s_add_u32 s8, s48, s59")
    a.e("s_addc_u32 s9, s49, 0")
    a.e("s_and_b32 s9, s9, 0xffff")
    a.e(f"s_sub_u32 s10, {512*2752}, s59")
    a.e("s_mov_b32 s11, 0x20000")
    a.e("s_add_u32 s12, s50, s59")
    a.e("s_addc_u32 s13, s51, 0")
    a.e("s_and_b32 s13, s13, 0xffff")
    a.e("s_mov_b32 s14, s10")
    a.e("s_mov_b32 s15, 0x20000")
    a.e(f"s_mov_b32 s58, {HF}")
    a.e(f"s_mul_i32 s25, s56, {32*43*1024}")
    a.e("s_lshl_b32 s64, s57, 10")
    a.e("s_add_u32 s25, s25, s64")
    a.e(f"s_mov_b32 s65, {128*43*1024}")
    a.label("K1_COMMON")
    a.e("s_lshl_b32 s64, s56, 19")
    a.e("s_add_u32 s4, s60, s64")
    a.e("s_addc_u32 s5, s61, 0")
    a.e("s_and_b32 s5, s5, 0xffff")
    a.e("s_mov_b32 s6, 0x80000")
    a.e("s_mov_b32 s7, 0x20000")
    a.e("s_add_u32 s16, s52, s58")
    a.e("s_addc_u32 s17, s53, 0")
    a.e("s_and_b32 s17, s17, 0xffff")
    a.e("s_mov_b32 s18, s65")
    a.e("s_mov_b32 s19, 0x20000")
    a.e("s_mov_b32 s27, 0x80000000")
    a.e("s_mov_b32 s29, 0x80000000")
    a.e("s_mov_b32 s30, 0x3e0293ee         ; 128^-0.5*log2(e)")
    a.e("s_mov_b32 s31, 0xbfb8aa3b         ; -log2(e)")
    a.e("v_lshrrev_b32 v9, 3, v1")
    a.e("s_lshl_b32 s64, s20, 3")
    a.e("v_add_u32 v9, s64, v9")
    a.e("v_lshlrev_b32 v2, 10, v9")
    a.e("s_and_b32 s64, s20, 1")
    a.e("s_lshl_b32 s64, s64, 2")
    a.e("v_lshrrev_b32 v9, 4, v1")
    a.e("v_add_u32 v9, s64, v9")
    a.e("v_and_b32 v10, 7, v1")
    a.e("v_xor_b32 v9, v9, v10")
    a.e("v_and_b32 v9, 7, v9")
    a.e("v_lshl_add_u32 v2, v9, 4, v2")
    a.e("v_and_b32 v9, 15, v1              ; t")
    a.e("v_lshrrev_b32 v10, 4, v1          ; g")
    a.e("v_lshrrev_b32 v11, 1, v9")
    a.e("v_xor_b32 v11, v11, v10")
    a.e("v_lshlrev_b32 v11, 4, v11")
    a.e("v_lshl_add_u32 v3, v9, 7, v11")
    a.e("v_xor_b32 v4, 64, v3")
    a.e("v_lshrrev_b32 v11, 2, v9          ; i>>2")
    a.e("v_lshl_add_u32 v11, v10, 3, v11")
    a.e("v_lshlrev_b32 v11, 6, v11")
    a.e("v_and_b32 v12, 3, v9")
    a.e("v_lshl_add_u32 v11, v12, 3, v11")
    a.e("v_and_b32 v12, 1, v10")
    a.e("v_lshl_add_u32 v5, v12, 5, v11")
    a.e("s_mul_i32 s64, s20, 24576")
    a.e("s_add_u32 s64, s64, 0x10000")
    a.e("v_add_u32 v5, s64, v5")
    a.e("v_xor_b32 v6, 32, v5")
    a.e("v_lshlrev_b32 v14, 4, v1")
    a.e("v_add_u32 v14, s64, v14")
    a.e("v_add_u32 v12, 0x10000, v3")
    a.e("v_add_u32 v13, 0x10000, v4")
    a.e("v_lshrrev_b32 v11, 2, v1")
    a.e("v_mul_lo_u32 v7, v11, s22")
    a.e("v_lshrrev_b32 v11, 1, v1")
    a.e("v_lshrrev_b32 v15, 5, v1")
    a.e("v_xor_b32 v11, v11, v15")
    a.e("v_and_b32 v11, 1, v11")
    a.e("v_lshl_add_u32 v7, v11, 5, v7")
    a.e("v_and_b32 v11, 1, v1")
    a.e("v_lshl_add_u32 v7, v11, 4, v7")
    a.e("s_lshl_b32 s66, s22, 4            ; 16 rows")
    a.e("s_mov_b32 s67, 0")
    def wdma(ks):
        slot = ks % NSL
        for half in range(2):
            for hf in range(2):
                srdn = "s[8:11]" if half == 0 else "s[12:15]"
                a.e(f"s_add_u32 m0, s64, {slot*4096 + half*2048 + hf*1024}")
                if hf == 0: a.e("s_mov_b32 s73, s67")
                else: a.e("s_add_u32 s73, s67, s66")
                a.e(f"buffer_load_dwordx4 v7, {srdn}, s73 offen{WFLAG} lds")
        a.e("s_add_u32 s67, s67, s66")
        a.e("s_add_u32 s67, s67, s66")
    a.e("s_lshl_b32 s26, s20, 10           ; m0 base = w*1024")
    a.e("s_mov_b32 s24, 0")
    def tdma():
        for slab in range(8):
            a.e("s_mov_b32 m0, s26" if slab == 0 else "s_add_u32 m0, m0, 3968")
            a.e("s_nop 0")
            a.e(f"buffer_load_dwordx4 v2, s[4:7], s24 offen offset:{slab*128} lds")
        a.e("s_add_u32 s24, s24, 0x8000")
        a.e("s_add_u32 s26, s26, 0x8000")
        a.e("s_and_b32 s26, s26, 0x1ffff")
    for ks in range(NSL): wdma(ks)
    if FUSE_LN:
        a.e("s_cmp_lt_u32 s21, 2")
        a.e("s_cbranch_scc0 K1_NOT0")
    tdma(); tdma()
    if FUSE_LN:
        a.label("K1_NOT0")
        a.e("s_cmp_lg_u32 s74, 0")
        a.e("s_cbranch_scc1 K1_NOLN")
        a.e("s_waitcnt vmcnt(32)")
        ln_compute(a)
        a.label("K1_NOLN")
    stamp(a, 8)
    a.e("v_lshrrev_b32 v11, 1, v10         ; g>>1")
    a.e("v_lshlrev_b32 v8, 10, v11")
    a.e("v_and_b32 v11, 1, v10")
    a.e("v_lshl_add_u32 v8, v11, 9, v8     ; + (g&1)*512")
    a.e("s_cmp_eq_u32 s21, 0")
    a.e("s_cbranch_scc0 K1_A1")
    a.e("v_lshrrev_b32 v11, 3, v9          ; K: r=16*(t>>3)+(t&7)")
    a.e("v_lshlrev_b32 v11, 4, v11")
    a.e("v_and_b32 v15, 7, v9")
    a.e("v_add_u32 v11, v11, v15")
    a.e("v_lshl_add_u32 v8, v11, 4, v8")
    a.e("s_branch K1_A3")
    a.label("K1_A1")
    a.e("s_cmp_eq_u32 s21, 3")
    a.e("s_cbranch_scc1 K1_A2")
    a.e("v_lshl_add_u32 v8, v9, 4, v8      ; Q,V: + t*16")
    a.e("s_branch K1_A3")
    a.label("K1_A2")
    a.e("v_lshlrev_b32 v8, 4, v1")
    a.label("K1_A3")
    queue = [("W", k) for k in range(NSL) for _ in range(4)] + [("T", 0)] * 16
    for ks in range(16):
        last = max(i for i, q in enumerate(queue) if q == ("W", ks))
        a.e(f"s_waitcnt vmcnt({len(queue) - 1 - last})")
        queue = queue[last + 1:]
        if ks == 0: stamp(a, 5)
        if ks == 8 and FUSE_LN:
            a.e("s_cmp_lg_u32 s74, 0")
            a.e("s_cbranch_scc1 K1_NOSIG")
            ln_signal(a)
            a.label("K1_NOSIG")
        slot = ks % NSL
        for c in range(4):
            for e4 in range(2):
                w = 16 * ks + 4 * c + 2 * e4
                a.e(f"ds_read_b64_tr_b16 a[{w}:{w+1}], v{5 + (c & 1)} offset:{slot*4096 + (c >> 1)*2048 + e4*256}")
        if ks + NSL < 16:
            a.e("s_waitcnt lgkmcnt(0)")
            wdma(ks + NSL)
            queue += [("W", ks + NSL)] * 4
    a.e("s_waitcnt lgkmcnt(0)")
    stamp(a, 1)
    if FUSE_LN:
        a.e("s_cmp_lt_u32 s21, 2")
        a.e("s_cbranch_scc1 K1_T12")
        a.e("s_cmp_lg_u32 s20, 0")
        a.e("s_cbranch_scc1 K1_NOPOLL")
        poll_xn(a)
        a.label("K1_NOPOLL")
        a.e("s_barrier")
        a.e("buffer_inv sc1")
        a.e("s_waitcnt vmcnt(0)")
        tdma()
        a.label("K1_T12")
    a.e("s_barrier")
    tdma()
    stamp(a, 2)
    for f in range(3):
        xb = XB + 4 * f
        a.e(f"ds_read_b128 v[{xb}:{xb+3}], {'v3' if f % 2 == 0 else 'v4'} offset:{(f >> 1)*4096}")
    a.e("s_mov_b32 s23, 16")
    for typ, code in (("K", 0), ("V", 1), ("Q", 2)):
        a.e(f"s_cmp_eq_u32 s21, {code}")
        a.e(f"s_cbranch_scc1 K1_LOOP_{typ}")
    a.e("s_branch K1_LOOP_G")
    for typ in "KVQG":
        a.block(f"k1_loop_{typ}")
        a.raw(".p2align 6")
        a.label(f"K1_LOOP_{typ}")
        e1 = k1_period(a, typ, stflag)
        a.e("s_sub_u32 s23, s23, 1")
        a.e("s_cmp_lg_u32 s23, 0")
        a.e(f"s_cbranch_scc1 K1_LOOP_{typ}")
        a.block(f"k1_tail_{typ}")
        a.e("s_nop 7")
        stamp(a, 3)
        for o in e1: a.e(o)
        if common.DIAG:
            a.e("s_waitcnt vmcnt(0)")
            stamp(a, 4)
            stamp_flush(a, 1, 9)
        a.e("s_endpgm")
    gen_aux(a)
    a.cur = None
    a.label("K1_END")
    a.e("s_endpgm")
    return kernel_desc(name, 512, 102, 256)

def check_k1(a):
    probs = []
    for typ in "KVQG":
        tr = a.blocks["k1_pro"] + a.blocks[f"k1_loop_{typ}"] * 3 + a.blocks[f"k1_tail_{typ}"]
        probs += check_trace(tr, "k1" + typ)
    probs += check_trace(a.blocks["k1_pro"][:40] + a.blocks["k1_aux"], "k1aux")
    return probs
```

```python
from common import *
import common, os
NS, PD, NST = 43, int(os.environ.get("K3PD", "7")), 8
ACC = 160
FB = [64, 96]
XR = 24
FLAGS = 0x7000000
SLAB = QF if os.environ.get('K3SLAB', 'n') == 'q' else 0x7100000
OSTFLAG = ""
DEPS = FLAGS + 8192
POLL = int(os.environ.get('K3POLL', '0'))
assert SLAB == 0x7100000

def gen_k3(a, name="outp_kernel", fused=False):
    if not fused:
        kernel_header(a, name)
        a.block("k3")
        a.e("s_cmp_ge_u32 s2, 256")
        a.e("s_cbranch_scc1 K3_END")
        stamp(a, 0)
    else:
        a.block("k3")
        a.label("K3F")
        stamp(a, 0)
    a.e(f"s_load_dwordx2 s[36:37], s[0:1], {KA['ws']}")
    a.e(f"s_load_dwordx2 s[42:43], s[0:1], {KA['x']}")
    a.e(f"s_load_dwordx2 s[44:45], s[0:1], {KA['out']}")
    a.e("v_lshrrev_b32 v1, 6, v0")
    a.e("s_nop 0")
    a.e("v_readfirstlane_b32 s20, v1       ; wave")
    a.e("v_and_b32 v1, 63, v0              ; lane")
    if os.environ.get('K3MAP', 'B') == 'B':
        a.e("s_and_b32 s46, s2, 7")
        a.e("s_lshr_b32 s47, s2, 3             ; j")
        a.e("s_and_b32 s23, s46, 3             ; split s")
        a.e("s_and_b32 s21, s47, 3             ; N128")
        a.e("s_lshr_b32 s47, s47, 2")
        a.e("s_lshr_b32 s46, s46, 2")
        a.e("s_lshl_b32 s46, s46, 3")
        a.e("s_add_u32 s22, s46, s47           ; M128")
    else:
        a.e("s_and_b32 s46, s2, 7              ; x")
        a.e("s_lshr_b32 s47, s2, 3             ; j")
        a.e("s_and_b32 s23, s47, 3             ; split s")
        a.e("s_lshr_b32 s21, s47, 2")
        a.e("s_and_b32 s21, s21, 3             ; N128")
        a.e("s_lshr_b32 s47, s47, 4")
        a.e("s_lshl_b32 s46, s46, 1")
        a.e("s_add_u32 s22, s46, s47           ; M128")
    a.e("s_lshr_b32 s30, s20, 1            ; r")
    a.e("s_and_b32 s31, s20, 1             ; c")
    a.e("v_lshlrev_b32 v2, 4, v1           ; lane*16")
    a.e("v_add_u32 v8, 131072, v2")
    a.e("v_add_u32 v9, 44032, v2")
    a.e("s_lshl_b32 s46, s30, 12")
    a.e("v_add_u32 v10, s46, v2")
    a.e("v_add_u32 v11, 0x10000, v10")
    a.e("s_lshl_b32 s46, s31, 12")
    a.e("s_add_u32 s46, s46, 8192")
    a.e("v_add_u32 v12, s46, v2")
    a.e("v_add_u32 v13, 0x10000, v12")
    a.e("s_lshl_b32 s29, s20, 11")
    a.e("s_waitcnt lgkmcnt(0)")
    a.e(f"s_add_u32 s4, s36, {CF}"); a.e("s_addc_u32 s5, s37, 0"); a.e("s_and_b32 s5, s5, 0xffff"); a.e("s_mov_b32 s6, 0x1000000"); a.e("s_mov_b32 s7, 0x20000")
    a.e(f"s_add_u32 s8, s36, {HF}"); a.e("s_addc_u32 s9, s37, 0"); a.e("s_and_b32 s9, s9, 0xffff"); a.e(f"s_mov_b32 s10, {128*43*1024}"); a.e("s_mov_b32 s11, 0x20000")
    a.e("s_lshl_b32 s58, s21, 1")
    a.e("s_add_u32 s58, s58, s30")
    a.e(f"s_mul_i32 s58, s58, {172*4096}")
    a.e(f"s_add_u32 s58, s58, {WF}")
    a.e("s_add_u32 s12, s36, s58"); a.e("s_addc_u32 s13, s37, 0"); a.e("s_and_b32 s13, s13, 0xffff"); a.e(f"s_mov_b32 s14, {171*4096}"); a.e("s_mov_b32 s15, 0x20000")
    srd(a, "s42", "s43", 0x200000, 48)
    srd(a, "s44", "s45", 0x200000, 52)
    a.e(f"s_add_u32 s64, s36, {SLAB}"); a.e("s_addc_u32 s65, s37, 0"); a.e("s_and_b32 s65, s65, 0xffff"); a.e("s_mov_b32 s66, 0x1000000"); a.e("s_mov_b32 s67, 0x20000")
    a.e("s_lshl_b32 s58, s22, 3")
    a.e("s_lshl_b32 s59, s20, 1")
    a.e("s_add_u32 s58, s58, s59")
    a.e("s_lshl_b32 s24, s58, 17")
    a.e("s_lshl_b32 s59, s23, 15")
    a.e("s_add_u32 s24, s24, s59")
    a.e("s_mul_i32 s25, s58, 44032")
    a.e(f"s_mul_i32 s59, s23, {11*1024}")
    a.e("s_add_u32 s25, s25, s59")
    a.e("s_lshl_b32 s59, s31, 11")
    a.e("s_lshl_b32 s26, s23, 17")
    a.e("s_add_u32 s26, s26, s59")
    a.e(f"s_mul_i32 s27, s23, {11*4096}")
    a.e(f"s_add_u32 s27, s27, {128*4096}")
    a.e("s_add_u32 s27, s27, s59")
    a.e("v_and_b32 v3, 15, v1")
    a.e("v_lshlrev_b32 v21, 10, v3")
    a.e("v_lshrrev_b32 v3, 4, v1")
    a.e("v_lshl_add_u32 v21, v3, 3, v21    ; t*1024 + g*8")
    a.e("s_lshl_b32 s56, s22, 7")
    a.e("s_lshl_b32 s57, s23, 5")
    a.e("s_add_u32 s56, s56, s57")
    a.e("s_lshl_b32 s57, s31, 4")
    a.e("s_add_u32 s56, s56, s57           ; row0 = 128M + 32s + 16*(w&1)")
    a.e("s_lshl_b32 s56, s56, 10")
    a.e("s_lshl_b32 s57, s21, 8")
    a.e("s_add_u32 s56, s56, s57")
    a.e("s_lshl_b32 s57, s30, 7")
    a.e("s_add_u32 s56, s56, s57           ; + (128N + 64*(w>>1))*2")
    queue = []
    def dmas(u):
        isA = (u >= 11) if fused else (u < 32)
        sX = "s24" if isA else "s25"; sW = "s26" if isA else "s27"
        srdX = "s[4:7]" if isA else "s[8:11]"; v1_ = "v8" if isA else "v9"
        st = (u % NST) * 16384
        xf = " sc1" if (fused and isA) else ""
        return [[f"s_add_u32 m0, s29, {st}", "s_nop 0", f"buffer_load_dwordx4 v2, {srdX}, {sX} offen{xf} lds"],
                ["s_add_u32 m0, m0, 1024", "s_nop 0", f"buffer_load_dwordx4 {v1_}, {srdX}, {sX} offen{xf} lds"],
                [f"s_add_u32 m0, s29, {st + 8192}", f"s_add_u32 {sX}, {sX}, 1024", f"buffer_load_dwordx4 v2, s[12:15], {sW} offen lds"],
                [f"buffer_load_dwordx4 v2, s[12:15], {sW} offen offset:1024 lds", f"s_add_u32 {sW}, {sW}, 4096"]]
    def reads(u):
        st = u % NST; hi = st >= 4; off = (st & 3) * 16384; b = FB[u & 1]
        return [f"ds_read_b128 v[{b+4*k}:{b+4*k+3}], {'v11' if hi else 'v10'} offset:{off + k*1024}" for k in range(4)] + \
               [f"ds_read_b128 v[{b+16+4*k}:{b+16+4*k+3}], {'v13' if hi else 'v12'} offset:{off + k*1024}" for k in range(4)]
    def wait_for(u):
        nonlocal queue
        last = max(i for i, q in enumerate(queue) if q == u)
        n = len(queue) - 1 - last
        queue = queue[last + 1:]
        return f"s_waitcnt vmcnt({n})"
    for u in range(PD):
        for bnd in dmas(u):
            for o in bnd: a.e(o)
        queue += [u] * 4
    if fused:
        a.e(f"s_waitcnt vmcnt({4*PD})")
        a.e("s_barrier")
        a.e(f"s_add_u32 s68, s36, {DEPS}"); a.e("s_addc_u32 s69, s37, 0")
        a.e("s_cmp_lg_u32 s20, 0"); a.e("s_cbranch_scc1 K3_SIGD")
        a.e("v_mov_b32 v40, s90"); a.e("v_mov_b32 v43, s91"); a.e("v_mov_b32 v41, 1")
        a.e("s_mov_b64 exec, 1")
        a.e("global_atomic_add v40, v41, s[68:69] sc1")
        a.e("global_atomic_add v43, v41, s[68:69] sc1")
        a.e("s_mov_b64 exec, -1")
        a.label("K3_SIGD")
    a.e(wait_for(0)); a.e("s_barrier")
    stamp(a, 1)
    for o in reads(0): a.e(o)
    for u in range(NS):
        fill = {}
        if u + 1 < NS: a.e(wait_for(u + 1))
        a.e("s_waitcnt lgkmcnt(0)")
        if fused and u + PD == 11:
            a.e("s_cmp_lg_u32 s20, 0"); a.e("s_cbranch_scc1 K3_DW")
            a.e("s_lshl_b32 s61, s22, 2"); a.e("s_add_u32 s61, s61, s23"); a.e("s_lshl_b32 s61, s61, 7")
            a.e("v_mov_b32 v40, s61")
            a.e("s_mov_b32 s70, 0x80000")
            a.e("s_mov_b64 exec, 1")
            a.label("K3_DL")
            a.e("global_load_dword v42, v40, s[68:69] sc1")
            a.e("s_sub_u32 s70, s70, 1")
            a.e("s_cbranch_scc1 K3_DX")
            a.e("s_waitcnt vmcnt(0)")
            a.e("v_cmp_gt_u32 vcc, 8, v42")
            a.e("s_nop 4")
            a.e("s_cbranch_vccnz K3_DL")
            a.label("K3_DX")
            a.e("s_waitcnt vmcnt(0)")
            a.e("s_mov_b64 exec, -1")
            a.label("K3_DW")
        if not os.environ.get("K3NOBAR"): a.e("s_barrier")
        if u + 1 < NS and not os.environ.get("K3NORD"):
            for n, o in enumerate(reads(u + 1)): fill.setdefault(n, []).append(o)
        if u + PD < NS:
            for n, bnd in enumerate(dmas(u + PD)): fill.setdefault(8 + 2 * n, []).extend(bnd)
            queue += [u + PD] * 4
        if u == 24:
            fill.setdefault(15, []).extend([f"buffer_load_dwordx2 v[{XR+2*mt}:{XR+2*mt+1}], v21, s[48:51], s56 offen offset:{mt*32}" for mt in range(4)])
        b = FB[u & 1]; n = 0
        for tt in range(4):
            for mt in range(4):
                d = ACC + 4 * (4 * mt + tt)
                cin = "0" if u == 0 else f"v[{d}:{d+3}]"
                a.e(f"v_mfma_f32_16x16x32_bf16 v[{d}:{d+3}], v[{b+16+4*mt}:{b+16+4*mt+3}], v[{b+4*tt}:{b+4*tt+3}], {cin}")
                for o in fill.get(n, []): a.e(o)
                n += 1
    stamp(a, 2)
    a.e("s_barrier")
    a.e("s_lshl_b32 s60, s22, 2")
    a.e("s_add_u32 s60, s60, s21           ; T")
    a.e("s_lshl_b32 s46, s31, 13           ; c*8192")
    a.e("v_add_u32 v14, s46, v2")
    a.e("s_lshl_b32 s47, s31, 12           ; c*4096")
    for oo in range(2):
        lo, lj = a.newlabel("K3_OWN"), a.newlabel("K3_PUB")
        a.e("s_lshl_b32 s61, s30, 1")
        if oo: a.e("s_add_u32 s61, s61, 1")
        a.e("s_lshl_b32 s62, s60, 2")
        a.e("s_add_u32 s62, s62, s61")
        a.e("s_lshl_b32 s62, s62, 2")
        a.e("s_add_u32 s62, s62, s23")
        a.e("s_lshl_b32 s62, s62, 13")
        a.e("s_add_u32 s62, s62, s47")
        a.e("s_cmp_eq_u32 s61, s23")
        a.e(f"s_cbranch_scc1 {lo}")
        for t2 in range(2):
            for mp in range(2):
                q = 32 + 4 * (2 * t2 + mp)
                for h in range(2):
                    d = ACC + 4 * (4 * (2 * mp + h) + 2 * oo + t2)
                    a.e(f"v_cvt_pk_bf16_f32 v{q+2*h}, v{d}, v{d+1}")
                    a.e(f"v_cvt_pk_bf16_f32 v{q+2*h+1}, v{d+2}, v{d+3}")
                a.e(f"buffer_store_dwordx4 v[{q}:{q+3}], v2, s[64:67], s62 offen offset:{(2*t2+mp)*1024} sc1")
        a.raw(f"    s_branch {lj}\n{lo}:")
        for t2 in range(2):
            for mt in range(4):
                d = ACC + 4 * (4 * mt + 2 * oo + t2)
                a.e(f"ds_write_b128 v14, v[{d}:{d+3}] offset:{(t2*4+mt)*1024}")
        a.label(lj)
        a.e("s_nop 1")
    if POLL:
        a.e("s_waitcnt lgkmcnt(0)")
        stamp(a, 6)
        a.e("s_barrier")
    else:
        a.e("s_waitcnt vmcnt(0) lgkmcnt(0)")
        stamp(a, 6)
        a.e("s_barrier")
        a.e("s_lshl_b32 s63, s60, 7")
        a.e("v_mov_b32 v40, s63"); a.e("v_mov_b32 v41, 1")
        a.e(f"s_add_u32 s68, s36, {FLAGS}"); a.e("s_addc_u32 s69, s37, 0")
        a.e("s_cmp_lg_u32 s20, 0"); a.e("s_cbranch_scc1 K3_PW")
        a.e("s_mov_b64 exec, 1")
        a.e("global_atomic_add v40, v41, s[68:69] sc1")
        a.e("s_mov_b32 s70, 0x80000")
        a.label("K3_PL")
        a.e("global_load_dword v42, v40, s[68:69] sc1")
        a.e("s_sub_u32 s70, s70, 1")
        a.e("s_cbranch_scc1 K3_PX")
        a.e("s_waitcnt vmcnt(0)")
        a.e("v_cmp_gt_u32 vcc, 4, v42")
        a.e("s_nop 4")
        a.e("s_cbranch_vccnz K3_PL")
        a.label("K3_PX")
        a.e("s_waitcnt vmcnt(0)")
        a.e("s_mov_b64 exec, -1")
        a.label("K3_PW")
        a.e("s_barrier")
        stamp(a, 7)
    a.e("s_lshl_b32 s46, s20, 12")
    a.e("v_add_u32 v14, s46, v2")
    for mt in range(4): a.e(f"ds_read_b128 v[{64+4*mt}:{64+4*mt+3}], v14 offset:{mt*1024}")
    a.e("s_lshl_b32 s47, s20, 11           ; (c'*2+tt'')*2048")
    if POLL:
        a.e("s_mov_b32 s70, 0x40000")
    if POLL == 2:
        for k in range(1, 4):
            a.e(f"s_add_u32 s61, s23, {k}")
            a.e("s_and_b32 s61, s61, 3")
            a.e("s_lshl_b32 s62, s60, 2")
            a.e("s_add_u32 s62, s62, s23")
            a.e("s_lshl_b32 s62, s62, 2")
            a.e("s_add_u32 s62, s62, s61")
            a.e("s_lshl_b32 s62, s62, 13")
            a.e(f"s_add_u32 s{70+k}, s62, s47")
        a.e("s_mov_b64 exec, 1")
        a.label("K3_SL")
        for k in range(1, 4):
            a.e(f"buffer_load_dword v{40+k}, v2, s[64:67], s{70+k} offen offset:1024 sc1")
        a.e("s_sub_u32 s70, s70, 1")
        a.e("s_cbranch_scc1 K3_SX")
        a.e("s_waitcnt vmcnt(0)")
        a.e("v_max3_u32 v40, v41, v42, v43")
        a.e("v_cmp_eq_u32 vcc, -1, v40")
        a.e("s_nop 4")
        a.e("s_cbranch_vccnz K3_SL")
        a.label("K3_SX")
        a.e("s_mov_b64 exec, -1")
        a.e("s_mov_b32 s70, 0x40000")
    for k in range(1, 4):
        a.e(f"s_add_u32 s61, s23, {k}")
        a.e("s_and_b32 s61, s61, 3")
        a.e("s_lshl_b32 s62, s60, 2")
        a.e("s_add_u32 s62, s62, s23")
        a.e("s_lshl_b32 s62, s62, 2")
        a.e("s_add_u32 s62, s62, s61")
        a.e("s_lshl_b32 s62, s62, 13")
        a.e("s_add_u32 s62, s62, s47")
        if POLL: a.e(f"s_mov_b32 s{70+k}, s62")
        for mp in range(2):
            a.e(f"buffer_load_dwordx4 v[{96+8*(k-1)+4*mp}:{96+8*(k-1)+4*mp+3}], v2, s[64:67], s62 offen offset:{mp*1024} sc1")
    for k in range(8):
        a.e(f"v_lshlrev_b32 v{128+2*k}, 16, v{XR+k}")
        a.e(f"v_and_b32 v{128+2*k+1}, 0xffff0000, v{XR+k}")
    a.e("s_waitcnt lgkmcnt(0)")
    for k in range(16): a.e(f"v_add_f32 v{64+k}, v{64+k}, v{128+k}")
    if POLL:
        a.label("K3_GL")
        a.e("s_waitcnt vmcnt(0)")
        a.e("v_max3_u32 v40, v96, v97, v98")
        for r in range(99, 119, 2): a.e(f"v_max3_u32 v40, v40, v{r}, v{r+1}")
        a.e("v_max_u32 v40, v40, v119")
        a.e("v_cmp_eq_u32 vcc, -1, v40")
        a.e("s_sub_u32 s70, s70, 1")
        a.e("s_cbranch_scc1 K3_GX")
        a.e("s_nop 3")
        a.e("s_cbranch_vccz K3_GX")
        for k in range(1, 4):
            for mp in range(2):
                a.e(f"buffer_load_dwordx4 v[{96+8*(k-1)+4*mp}:{96+8*(k-1)+4*mp+3}], v2, s[64:67], s{70+k} offen offset:{mp*1024} sc1")
        a.e("s_branch K3_GL")
        a.label("K3_GX")
    a.e("s_waitcnt vmcnt(0)")
    stamp(a, 8)
    for src in range(3):
        for k in range(8):
            r = 96 + 8 * src + k
            a.e(f"v_lshlrev_b32 v128, 16, v{r}")
            a.e(f"v_and_b32 v129, 0xffff0000, v{r}")
            a.e(f"v_add_f32 v{64+2*k}, v{64+2*k}, v128")
            a.e(f"v_add_f32 v{64+2*k+1}, v{64+2*k+1}, v129")
    for k in range(8): a.e(f"v_cvt_pk_bf16_f32 v{144+k}, v{64+2*k}, v{64+2*k+1}")
    for mt in range(4):
        a.e(f"buffer_store_dwordx2 v[{144+2*mt}:{144+2*mt+1}], v21, s[52:55], s56 offen offset:{mt*32}{OSTFLAG}")
    if common.DIAG:
        a.e("s_waitcnt vmcnt(0)")
        stamp(a, 3)
        stamp_flush(a, 3, 9)
    a.e("s_endpgm")
    a.cur = None
    if fused: return None
    a.label("K3_END")
    a.e("s_endpgm")
    return kernel_desc(name, 256, 102, 256)

def check_k3(a):
    return check_trace(a.blocks["k3"], "k3")
```
